```python
import torch

def _softmax(x, axis=-1):
    return torch.softmax(x, dim=axis)
def _gelu(x):
    return torch.nn.functional.gelu(x, approximate="tanh")
def _silu(x):
    return torch.nn.functional.silu(x)
def _sigmoid(x):
    return torch.sigmoid(x)
def _layernorm(x, axis=-1, eps=1e-5):
    m = x.mean(dim=axis, keepdim=True)
    v = x.var(dim=axis, keepdim=True, unbiased=False)
    return (x - m) / torch.sqrt(v + eps)
def _scatter_add(tgt, idx, src, axis=0):
    return tgt.clone().index_add_(axis, idx, src)
def _segment_sum(src, seg, n):
    out = torch.zeros((n,) + src.shape[1:], dtype=src.dtype)
    return out.index_add_(0, seg, src)
def _pad(x, pw):
    flat = tuple(v for pair in reversed(pw) for v in pair)
    return torch.nn.functional.pad(x, flat)

kernel_name = 'gated_mix__grouped_kv_mqa__mixer_channel_mlp__prompt'

def setup_inputs():

    _w = (lambda a: (lambda t: t.to(torch.bfloat16) if t.is_floating_point() else t)(torch.as_tensor(a)))
    def _A_setup():
        B, S, D, H = 1, 2048, 576, 32
        Dh = D // H
        return {
            "x": _w((lambda *s: torch.randn(*s, dtype=torch.bfloat16) * 0.05)(B, S, D)),
            "wq": _w((lambda *s: torch.randn(*s, dtype=torch.bfloat16) * 0.8)(D, H * Dh)),
            "wk": _w((lambda *s: torch.randn(*s, dtype=torch.bfloat16) * 0.8)(D, Dh)),
            "wv": _w((lambda *s: torch.randn(*s, dtype=torch.bfloat16) * 0.2)(D, Dh)),
            "wo": _w((lambda *s: torch.randn(*s, dtype=torch.bfloat16) * 0.2)(H * Dh, D)),
        }
    _A_in = _A_setup()

    def _B_setup():
        B, S, D, F = 1, 2048, 576, 4608
        return {
            "x": _w((lambda *s: torch.randn(*s, dtype=torch.bfloat16) * 0.05)(B, S, D)),
            "w1": _w((lambda *s: torch.randn(*s, dtype=torch.bfloat16) * 0.8)(D, F) * (D ** -0.5)),
            "b1": _w((lambda *s: torch.randn(*s, dtype=torch.bfloat16) * 0.8)(F)),
            "w2": _w((lambda *s: torch.randn(*s, dtype=torch.bfloat16) * 0.05)(F, D) * (F ** -0.5)),
            "b2": _w((lambda *s: torch.randn(*s, dtype=torch.bfloat16) * 0.05)(D)),
        }
    _B_in = _B_setup()

    return {
        "A_x": _A_in["x"],
        "A_wq": _A_in["wq"],
        "A_wk": _A_in["wk"],
        "A_wv": _A_in["wv"],
        "A_wo": _A_in["wo"],
        "B_x": _B_in["x"],
        "B_w1": _B_in["w1"],
        "B_b1": _B_in["b1"],
        "B_w2": _B_in["w2"],
        "B_b2": _B_in["b2"],
        "gate_w": _w((lambda *s: torch.randn(*s, dtype=torch.bfloat16) * 0.05)(576) * 16.0),
    }

def reference(A_x, A_wq, A_wk, A_wv, A_wo, B_x, B_w1, B_b1, B_w2, B_b2, gate_w):
    def _A_ref(x, wq, wk, wv, wo):
        B, S, D = x.shape
        H = 32
        Dh = D // H
        q = (lambda x, *d: x.permute(*d))((x @ wq).reshape(B, S, H, Dh), 0, 2, 1, 3)
        k = x @ wk
        v = x @ wv
        scores = torch.einsum("bhqd,bkd->bhqk", q, k) * (Dh ** -0.5)
        p = _softmax(scores, axis=-1)
        o = torch.einsum("bhqk,bkd->bhqd", p, v)
        return (lambda x, *d: x.permute(*d))(o, 0, 2, 1, 3).reshape(B, S, H * Dh) @ wo

    def _B_ref(x, w1, b1, w2, b2):
        y = _layernorm(x, axis=-1)
        h = _gelu(torch.einsum("bsd,df->bsf", y, w1) + b1)
        return torch.einsum("bsf,fd->bsd", h, w2) + b2

    x = A_x
    g = _sigmoid((x * gate_w).sum(-1, keepdims=True))
    a = _A_ref(x, A_wq, A_wk, A_wv, A_wo)
    b = _B_ref(x, B_w1, B_b1, B_w2, B_b2)
    return g * a + (1 - g) * b
```

```python
from gen import *
def gen_final(e):
    K = "final_kernel"
    kernel_head(e, K)
    e("s_cmp_ge_u32 s2, 288"); e("s_cbranch_scc1 F_end")
    e("s_load_dwordx2 s[36:37], s[0:1], 32")
    e("s_load_dwordx2 s[38:39], s[0:1], 72")
    e("s_load_dwordx2 s[40:41], s[0:1], 88")
    e("s_load_dwordx2 s[42:43], s[0:1], 104")
    e("s_and_b32 s3, s2, 7"); e("s_lshr_b32 s4, s2, 3")
    e("s_cmp_ge_u32 s4, 18"); e("s_cselect_b32 s5, 1, 0"); e("s_cselect_b32 s6, 18, 0")
    e("s_sub_u32 s4, s4, s6")
    e("s_lshl_b32 s3, s3, 1"); e("s_add_u32 s3, s3, s5")
    e("v_lshrrev_b32 v2, 6, v0"); e("v_and_b32 v1, 63, v0"); e("s_nop 0"); e("v_readfirstlane_b32 s5, v2")
    e("v_lshrrev_b32 v2, 2, v1"); e("v_and_b32 v3, 3, v1"); e("v_lshlrev_b32 v3, 4, v3")
    e("v_mul_u32_u24 v4, 1152, v2"); e("v_add_u32 v4, v4, v3")
    e("v_lshlrev_b32 v5, 4, v1")
    e("v_and_b32 v6, 31, v1"); e("v_lshrrev_b32 v7, 5, v1")
    tr_lane_addr(e, 8, 1, 2, 3, 4)
    e("v_bfe_u32 v2, v1, 3, 1"); e("v_lshlrev_b32 v3, 2, v7"); e("v_add_u32 v2, v2, v3"); e("v_mul_u32_u24 v2, 18, v2")
    e("v_bfe_u32 v3, v1, 2, 1"); e("v_add_u32 v2, v2, v3"); e("v_add_u32 v2, 16, v2"); e("v_lshlrev_b32 v9, 6, v2")
    e("v_bfe_u32 v2, v1, 4, 1"); e("v_lshlrev_b32 v2, 5, v2"); e("v_add_u32 v9, v9, v2")
    e("v_and_b32 v2, 3, v1"); e("v_lshlrev_b32 v2, 3, v2"); e("v_add_u32 v9, v9, v2")
    e("s_waitcnt lgkmcnt(0)")
    srd(e, 8, 36, 576 * 1152); srd(e, 12, 38, 1152); srd(e, 16, 40, 2048 * 1152); srd(e, 24, 42, WS_END)
    e("s_lshl_b32 s6, s3, 2"); e("s_add_u32 s6, s6, s5")
    e("s_mul_i32 s50, s5, 9"); e(f"s_mul_i32 s51, s50, {16*1152}"); e("s_lshl_b32 s52, s4, 6"); e("s_add_u32 s51, s51, s52")
    e("s_lshl_b32 s53, s50, 10")
    for ii in range(9):
        e(f"s_add_u32 m0, s53, {ii*1024}"); e(f"s_add_u32 s54, s51, {ii*16*1152}")
        e("buffer_load_dwordx4 v4, s[8:11], s54 offen lds")
    e("s_lshl_b32 s55, s6, 15"); e(f"s_add_u32 s55, s55, {WS_O1}")
    for hd in range(32):
        if hd % 4 == 0: e(f"s_add_u32 s56, s55, {hd*1024}")
        e(f"buffer_load_dwordx4 {vr(64+4*hd,4)}, v5, s[24:27], s56 offen offset:{(hd%4)*1024}")
    e("s_lshl_b32 s55, s6, 12"); e(f"s_add_u32 s55, s55, {WS_O2}")
    for ee in range(4):
        e(f"buffer_load_dwordx4 {vr(64+4*(32+ee),4)}, v5, s[24:27], s55 offen offset:{ee*1024}")
    e("s_lshl_b32 s55, s6, 7"); e(f"s_add_u32 s55, s55, {WS_G}"); e("v_lshlrev_b32 v2, 2, v6")
    e("buffer_load_dword v10, v2, s[24:27], s55 offen")
    e("v_lshlrev_b32 v2, 3, v7")
    for q in range(4): e(f"buffer_load_dwordx2 {vr(56+2*q,2)}, v2, s[12:15], s52 offen offset:{q*16}")
    e("s_mul_i32 s55, s6, 18"); e("s_add_u32 s55, s55, s4"); e("s_lshl_b32 s55, s55, 11"); e(f"s_add_u32 s55, s55, {WS_P}")
    def preg(sp): return 208 + 8 * sp if sp < 6 else 40 + 8 * (sp - 6)
    for sp in range(NSPLIT):
        e(f"s_add_u32 s56, s55, {sp*64*18*2048}")
        e(f"buffer_load_dwordx4 {vr(preg(sp),4)}, v5, s[24:27], s56 offen")
        e(f"buffer_load_dwordx4 {vr(preg(sp)+4,4)}, v5, s[24:27], s56 offen offset:1024")
    e("s_waitcnt vmcnt(0)"); e("s_barrier")
    ACC = 24; PS = 64
    def rd(k):
        d = 12 + 4 * (k % 3)
        if k < 32: a, o1, o2 = 8, k * 1152, k * 1152 + 512
        else: a, o1, o2 = 9, (k - 32) * 8 * 1152, (k - 32) * 8 * 1152 + 2 * 1152
        e(f"ds_read_b64_tr_b16 {vr(d,2)}, v{a} offset:{o1}"); e(f"ds_read_b64_tr_b16 {vr(d+2,2)}, v{a} offset:{o2}")
    e("s_mov_b32 s60, 0x3f80"); e("s_mov_b32 s61, 0x3f800000")
    fill = []
    srcs = [56] + [preg(sp) for sp in range(NSPLIT)]
    for si, sreg in enumerate(srcs):
        for k in range(8):
            c0 = "0" if si == 0 else f"v{PS+2*k}"; c1 = "0" if si == 0 else f"v{PS+2*k+1}"
            fill.append(f"v_dot2_f32_bf16 v{PS+2*k}, v{sreg+k}, s60, {c0}")
            fill.append(f"v_dot2_f32_bf16 v{PS+2*k+1}, v{sreg+k}, s61, {c1}")
    rd(0); rd(1)
    for k in range(36):
        if k + 2 < 36: rd(k + 2); e("s_waitcnt lgkmcnt(4)")
        elif k + 1 < 36: e("s_waitcnt lgkmcnt(2)")
        else: e("s_waitcnt lgkmcnt(0)")
        c = "0" if k == 0 else vr(ACC, 16)
        e(f"v_mfma_f32_32x32x16_bf16 {vr(ACC,16)}, {vr(12+4*(k%3),4)}, {vr(64+4*k,4)}, {c}")
        if k >= 5:
            for _ in range(5):
                if fill: e(fill.pop(0))
    assert not fill
    e("s_nop 7"); e("s_nop 3")
    for r in range(16):
        e(f"v_sub_f32 v{ACC+r}, v{ACC+r}, v{PS+r}"); e(f"v_fma_f32 v{ACC+r}, v10, v{ACC+r}, v{PS+r}")
    for k in range(8): e(f"v_cvt_pk_bf16_f32 v{40+k}, v{ACC+2*k}, v{ACC+2*k+1}")
    e("s_nop 1")
    for base in (40, 44):
        e(f"v_permlane32_swap_b32 v{base}, v{base+2}"); e(f"v_permlane32_swap_b32 v{base+1}, v{base+3}")
    e("v_mul_u32_u24 v2, 1152, v6"); e("v_lshlrev_b32 v3, 4, v7"); e("v_add_u32 v2, v2, v3")
    e(f"s_mul_i32 s55, s6, {32*1152}"); e("s_add_u32 s55, s55, s52")
    e("s_nop 0")
    e(f"buffer_store_dwordx4 {vr(40,4)}, v2, s[16:19], s55 offen")
    e(f"buffer_store_dwordx4 {vr(44,4)}, v2, s[16:19], s55 offen offset:32")
    e.label("F_end"); e("s_endpgm")
    return kernel_desc(K, 256, 96, 256)
def add(body, descs, launches):
    descs.append(gen_final(body)); launches.append("; @launch kernel=final_kernel grid=(288,1,1) block=(256,1,1) lds=36864")
```

```python
import math
from gen import *

LDS_MAIN = 152576

def gen_attn(e):
    Q1 = lambda i: 16 + 8 * i
    Q2 = lambda i: 20 + 8 * i
    O = lambda i: 48 + 16 * i
    S = lambda b: 112 + 16 * b
    P = 144
    KV = lambda b: 152 + 16 * b
    aK1, aK2, aV = 184, 185, 186
    e.label("A_start")
    e("s_sub_u32 s4, s4, 16")
    e("v_lshlrev_b32 v2, 4, v1")
    e("s_lshl_b32 s6, s5, 10")
    for ii in range(38):
        i0 = ii * 4
        if ii == 37:
            e("s_cmp_ge_u32 s5, 1"); e("s_cbranch_scc1 A_dma_done")
        e(f"s_add_u32 m0, s6, {i0*1024}")
        e(f"s_add_u32 s7, s6, {WS_K1 + i0*1024}")
        e("buffer_load_dwordx4 v2, s[24:27], s7 offen lds")
    e.label("A_dma_done")
    e("s_lshl_b32 s6, s3, 2"); e("s_add_u32 s6, s6, s5")
    e("s_lshl_b32 s7, s6, 6"); e("s_lshl_b32 s8, s4, 2"); e("s_add_u32 s7, s7, s8")
    e("v_and_b32 v3, 31, v1"); e("v_lshlrev_b32 v4, 2, v3")
    e("v_lshrrev_b32 v5, 5, v1")
    e("s_lshl_b32 s9, s7, 10"); e(f"s_add_u32 s9, s9, {WS_Q1}")
    e("s_lshl_b32 s10, s7, 7"); e(f"s_add_u32 s10, s10, {WS_Q2}")
    for i in range(4):
        e(f"buffer_load_dwordx4 {vr(Q1(i),4)}, v2, s[24:27], s9 offen offset:{i*1024}")
        e(f"buffer_load_dword v{Q2(i)}, v4, s[24:27], s10 offen offset:{i*128}")
    e("v_lshlrev_b32 v6, 2, v1")
    e(f"s_mov_b32 s11, {WS_KN}")
    e("buffer_load_dword v7, v6, s[24:27], s11 offen")
    e(f"v_mov_b32 v{aK1}, v2")
    e(f"v_add_u32 v{aK2}, 65536, v4")
    e(f"v_min_u32 v8, 18, v3"); e(f"v_mul_u32_u24 v8, {VROW}, v8"); e("v_lshlrev_b32 v9, 4, v5"); e("v_add_u32 v8, v8, v9")
    e(f"v_add_u32 v{aV}, 73728, v8")
    for b in range(2):
        e(f"v_mov_b32 v{KV(b)+5}, 0x3f803f80"); e(f"v_mov_b32 v{KV(b)+6}, 0"); e(f"v_mov_b32 v{KV(b)+7}, 0")
    e("s_waitcnt vmcnt(0)")
    for dpp in ("quad_perm:[1,0,3,2]", "quad_perm:[2,3,0,1]", "row_half_mirror", "row_mirror"):
        e("s_nop 1"); e(f"v_max_f32_dpp v7, v7, v7 {dpp} row_mask:0xf bank_mask:0xf")
    e("ds_swizzle_b32 v8, v7 offset:0x401F"); e("s_waitcnt lgkmcnt(0)"); e("v_max_f32 v7, v7, v8")
    e("v_mov_b32 v8, v7"); e("s_nop 1"); e("v_permlane32_swap_b32 v7, v8"); e("s_nop 1"); e("v_max_f32 v7, v7, v8")
    e("v_cmp_gt_u32 vcc, 32, v1")
    e("s_mov_b64 s[12:13], vcc")
    for i in range(4):
        e(f"v_cndmask_b32 v{Q2(i)}, 0, v{Q2(i)}, s[12:13]")
        e("v_mov_b32 v8, 0")
        for k in range(4): e(f"v_dot2_f32_bf16 v8, v{Q1(i)+k}, v{Q1(i)+k}, v8")
        e(f"v_dot2_f32_bf16 v8, v{Q2(i)}, v{Q2(i)}, v8")
        e("v_mov_b32 v9, v8"); e("s_nop 1"); e("v_permlane32_swap_b32 v8, v9"); e("s_nop 1"); e("v_add_f32 v8, v8, v9")
        e("v_mul_f32 v8, v8, v7"); e("v_sqrt_f32 v8, v8"); e("s_nop 0")
        e(f"v_mul_f32 v8, {hexf(-1.001)}, v8")
        e(f"v_cvt_pk_bf16_f32 v9, v8, v8"); e("v_lshlrev_b32 v9, 16, v9"); e("v_sub_f32 v9, v8, v9")
        e(f"v_cvt_pk_bf16_f32 v9, v8, v9")
        e(f"v_cndmask_b32 v{Q2(i)+1}, 0, v9, s[12:13]")
        e(f"v_mov_b32 v{Q2(i)+2}, 0"); e(f"v_mov_b32 v{Q2(i)+3}, 0")
    e("s_mov_b32 s14, 0")
    e("s_barrier")
    e.label("A_run")
    for i in range(4):
        for r in range(16): e(f"v_mov_b32 v{O(i)+r}, 0")
    for r in range(8): e(f"v_mov_b32 v{P+r}, 0")
    for r in range(4): e(f"v_mov_b32 v{KV(1)+12+r}, 0")
    e(f"v_mov_b32 v{aK1}, v2"); e(f"v_add_u32 v{aK2}, 65536, v4"); e("v_add_u32 v%d, 73728, v8x" % aV) if False else None
    e(f"v_min_u32 v8, 18, v3"); e(f"v_mul_u32_u24 v8, {VROW}, v8"); e("v_lshlrev_b32 v9, 4, v5"); e("v_add_u32 v8, v8, v9")
    e(f"v_add_u32 v{aV}, 73728, v8")
    def ldK(b, joff):
        e(f"ds_read_b128 {vr(KV(b),4)}, v{aK1} offset:{joff*1024}")
        e(f"ds_read_b32 v{KV(b)+4}, v{aK2} offset:{joff*128}")
    def ldV(b, joff):
        e(f"ds_read_b128 {vr(KV(b)+8,4)}, v{aV} offset:{joff*64}")
        e(f"ds_read_b128 {vr(KV(b)+12,4)}, v{aV} offset:{joff*64+32}")
    def qk1(sb, b, i): return f"v_mfma_f32_32x32x16_bf16 {vr(S(sb),16)}, {vr(KV(b),4)}, {vr(Q1(i),4)}, 0"
    def qk2(sb, b, i): return f"v_mfma_f32_32x32x16_bf16 {vr(S(sb),16)}, {vr(KV(b)+4,4)}, {vr(Q2(i),4)}, {vr(S(sb),16)}"
    def pv(i, b, m): return f"v_mfma_f32_32x32x16_bf16 {vr(O(i),16)}, {vr(KV(b)+8+4*m,4)}, {vr(P+4*m,4)}, {vr(O(i),16)}"
    ldK(0, 0); ldV(0, 0)
    e("s_waitcnt lgkmcnt(0)")
    e(qk1(0, 0, 0)); e(qk2(0, 0, 0))
    e("s_nop 7"); e("s_nop 3")
    e("s_mov_b32 s15, 32")
    e.label("A_loop")
    for jj in range(2):
        b = jj
        for i in range(4):
            n = jj * 4 + i
            sb = n % 2
            i2 = (i + 1) % 4; b2 = b if i < 3 else 1 - b
            ip = (i - 1) % 4; bp = b if i > 0 else 1 - b
            if i == 3: e("s_waitcnt lgkmcnt(0)")
            def E(r): e(f"v_exp_f32 v{S(sb)+r}, v{S(sb)+r}")
            def C(k): e(f"v_cvt_pk_bf16_f32 v{P+k}, v{S(sb)+2*k}, v{S(sb)+2*k+1}")
            e(qk1(1 - sb, b2, i2))
            E(0); E(1); E(2); E(3); C(0); C(1)
            e(qk2(1 - sb, b2, i2))
            E(4); E(5); E(6); E(7); C(2); C(3)
            e(pv(ip, bp, 1))
            if i == 1: ldK(1 - b, jj + 1)
            if i == 2: ldV(1 - b, jj + 1)
            E(8); E(9); E(10); E(11); C(4); C(5)
            e(pv(i, b, 0))
            E(12); E(13); E(14); E(15); C(6); C(7)
    e(f"v_add_u32 v{aK1}, 2048, v{aK1}"); e(f"v_add_u32 v{aK2}, 256, v{aK2}"); e(f"v_add_u32 v{aV}, 128, v{aV}")
    e("s_sub_u32 s15, s15, 1"); e("s_cmp_lg_u32 s15, 0"); e("s_cbranch_scc1 A_loop")
    e("s_nop 1")
    e(pv(3, 1, 1))
    e("s_nop 7"); e("s_nop 3")
    e("s_cmp_lg_u32 s14, 0"); e("s_cbranch_scc1 A_fin")
    e(f"v_mov_b32 v10, {hexf(2.0**-40)}")
    e("s_mov_b64 s[16:17], 0")
    for i in range(4):
        e(f"v_cmp_nge_f32 vcc, v{O(i)+10}, v10"); e("s_nop 1"); e("s_or_b64 s[16:17], s[16:17], vcc")
    e("s_and_b32 s16, s16, -1")
    e("s_cbranch_scc0 A_fin")
    e("s_mov_b32 s14, 1")
    e(f"v_mov_b32 v{aK1}, v2"); e(f"v_add_u32 v{aK2}, 65536, v4")
    for i in range(4):
        e(f"v_mov_b32 v{Q2(i)+1}, 0"); e(f"v_mov_b32 v{O(i)}, 0xff800000")
    e("s_mov_b32 s15, 64")
    e.label("A_max")
    ldK(0, 0); e("s_waitcnt lgkmcnt(0)")
    for i in range(4):
        e(qk1(0, 0, i)); e(qk2(0, 0, i)); e("s_nop 7"); e("s_nop 3")
        for r in range(0, 16, 2): e(f"v_max3_f32 v{O(i)}, v{S(0)+r}, v{S(0)+r+1}, v{O(i)}")
    e(f"v_add_u32 v{aK1}, 1024, v{aK1}"); e(f"v_add_u32 v{aK2}, 128, v{aK2}")
    e("s_sub_u32 s15, s15, 1"); e("s_cmp_lg_u32 s15, 0"); e("s_cbranch_scc1 A_max")
    for i in range(4):
        e(f"v_mov_b32 v8, v{O(i)}"); e(f"v_mov_b32 v9, v{O(i)}"); e("s_nop 1"); e("v_permlane32_swap_b32 v8, v9"); e("s_nop 1")
        e("v_max_f32 v8, v8, v9"); e("v_sub_f32 v8, 0, v8")
        e(f"v_cvt_pk_bf16_f32 v9, v8, v8"); e("v_lshlrev_b32 v9, 16, v9"); e("v_sub_f32 v9, v8, v9")
        e(f"v_cvt_pk_bf16_f32 v9, v8, v9")
        e(f"v_cndmask_b32 v{Q2(i)+1}, 0, v9, s[12:13]")
    e("s_branch A_run")
    e.label("A_fin")
    e("s_lshl_b32 s8, s4, 2")
    e("s_lshr_b32 s9, s6, 3"); e("s_lshl_b32 s9, s9, 10")
    e("s_bfe_u32 s10, s6, 0x10002"); e("s_lshl_b32 s10, s10, 9"); e("s_add_u32 s9, s9, s10")
    e("s_and_b32 s10, s6, 3"); e("s_lshl_b32 s10, s10, 2"); e("s_add_u32 s9, s9, s10")
    e(f"s_add_u32 s9, s9, {WS_O2}")
    e("v_lshlrev_b32 v10, 4, v3")
    for i in range(4):
        e(f"v_mov_b32 v8, v{O(i)+10}"); e(f"v_mov_b32 v9, v{O(i)+10}"); e("s_nop 1"); e("v_permlane32_swap_b32 v8, v9"); e("s_nop 1")
        e("v_rcp_f32 v8, v8"); e("s_nop 0")
        for r in range(10): e(f"v_mul_f32 v{O(i)+r}, v8, v{O(i)+r}")
        for k in range(5): e(f"v_cvt_pk_bf16_f32 v{188+k}, v{O(i)+2*k}, v{O(i)+2*k+1}")
        e(f"s_add_u32 s10, s8, {i}"); e("s_lshl_b32 s11, s10, 5"); e("s_add_u32 s11, s11, s6"); e("s_lshl_b32 s11, s11, 10")
        e(f"s_add_u32 s11, s11, {WS_O1}")
        e(f"buffer_store_dwordx4 {vr(188,4)}, v2, s[24:27], s11 offen")
        e("s_lshl_b32 s11, s10, 12"); e("s_add_u32 s11, s11, s9")
        e("s_mov_b32 exec_hi, 0")
        e(f"buffer_store_dword v192, v10, s[24:27], s11 offen")
        e("s_mov_b32 exec_hi, -1")
        e("s_nop 1")
    e("s_endpgm")

W1B = [0, 36864]; W2B = [73728, 110592]; BIAS = 147456
def gen_mlp(e):
    YF = lambda s: ar(4 * s, 4)
    def ACC(nt): return ar(144 + 16 * nt, 16) if nt < 7 else vr(80 + 16 * (nt - 7), 16)
    S = lambda b: 16 + 16 * b
    P = 48
    RING = lambda k: 56 + 4 * (k % 6)
    aW1 = [2, 3]; aW2 = [8, 9]; dW1, dW2, aB, cC0 = 4, 5, 6, 7
    T = [10, 11, 12, 13, 14, 15]
    C0 = -2.0 * math.sqrt(2.0 / math.pi) * math.log2(math.e); C1 = C0 * 0.044715
    e.label("M_start")
    e("s_lshl_b32 s6, s4, 2"); e("s_add_u32 s6, s6, s5")
    e("s_mul_i32 s7, s6, 36864"); e(f"s_add_u32 s7, s7, {WS_Y}" if WS_Y else "s_nop 0")
    e("v_lshlrev_b32 v10, 4, v1")
    e("v_lshrrev_b32 v11, 2, v1"); e(f"v_mul_u32_u24 v{dW1}, 9216, v11"); e("v_and_b32 v11, 3, v1"); e("v_lshlrev_b32 v11, 4, v11"); e(f"v_add_u32 v{dW1}, v{dW1}, v11")
    e("v_bfe_u32 v12, v1, 2, 3"); e(f"v_mul_u32_u24 v{dW2}, 1152, v12"); e(f"v_add_u32 v{dW2}, v{dW2}, v11")
    e("v_lshrrev_b32 v12, 5, v1"); e("v_lshlrev_b32 v12, 6, v12"); e(f"v_add_u32 v{dW2}, v{dW2}, v12")
    e(f"s_mul_i32 s40, s5, {9*16*9216}"); e("s_mul_i32 s42, s3, 1152"); e("s_add_u32 s40, s40, s42")
    e(f"s_mul_i32 s41, s3, {576*1152}"); e(f"s_mul_i32 s42, s5, {8*1152}"); e("s_add_u32 s41, s41, s42")
    e("s_mul_i32 s43, s5, 9216")
    def dmaW1(ii, buf, coff):
        return [f"s_add_u32 m0, s43, {W1B[buf] + ii*1024}", f"s_add_u32 s44, s40, {ii*16*9216 + coff}", f"buffer_load_dwordx4 v{dW1}, s[28:31], s44 offen lds"]
    def dmaW2(ii, buf, coff):
        return [f"s_add_u32 m0, s43, {W2B[buf] + ii*1024}", f"s_add_u32 s44, s41, {ii*128 + coff}", f"buffer_load_dwordx4 v{dW2}, s[32:35], s44 offen lds"]
    for ii in range(9):
        for x in dmaW1(ii, 0, 0): e(x)
    for s in range(36):
        if s % 4 == 0:
            e(f"s_add_u32 s45, s7, {s*1024}")
        e(f"buffer_load_dwordx4 {YF(s)}, v10, s[24:27], s45 offen offset:{(s%4)*1024}")
    for ii in range(9):
        for x in dmaW2(ii, 0, 0): e(x)
    for ii in range(9):
        for x in dmaW1(ii, 1, 64): e(x)
    e("v_lshlrev_b32 v11, 3, v0"); e("s_mul_i32 s42, s3, 1152")
    e("v_cmp_gt_u32 vcc, 144, v0"); e("s_and_saveexec_b64 s[46:47], vcc")
    e("buffer_load_dwordx2 v[12:13], v11, s[36:39], s42 offen")
    e("s_waitcnt vmcnt(0)")
    e("v_and_b32 v15, 0xffff0000, v13"); e("v_lshlrev_b32 v14, 16, v13"); e("v_and_b32 v13, 0xffff0000, v12"); e("v_lshlrev_b32 v12, 16, v12")
    e("v_lshlrev_b32 v11, 4, v0"); e(f"v_add_u32 v11, {BIAS}, v11")
    e("ds_write_b128 v11, v[12:15]")
    e("s_mov_b64 exec, s[46:47]")
    tr_lane_addr(e, aW1[0], 1, 11, 12, 8); e(f"v_add_u32 v{aW1[1]}, {W1B[1]}, v{aW1[0]}")
    tr_lane_addr(e, aW2[0], 1, 11, 12, 4); e(f"v_add_u32 v{aW2[1]}, {W2B[1]}, v{aW2[0]}"); e(f"v_add_u32 v{aW2[0]}, {W2B[0]}, v{aW2[0]}")
    e("v_lshrrev_b32 v11, 5, v1"); e("v_lshlrev_b32 v11, 4, v11"); e(f"v_add_u32 v{aB}, {BIAS}, v11")
    e(f"v_mov_b32 v{cC0}, {hexf(C0)}"); e(f"s_mov_b32 s48, {hexf(C1)}")
    for nt in range(18):
        for r in range(16):
            if nt < 7: e(f"v_accvgpr_write_b32 a{144+16*nt+r}, 0")
            else: e(f"v_mov_b32 v{80+16*(nt-7)+r}, 0")
    e("s_waitcnt vmcnt(0) lgkmcnt(0)"); e("s_barrier")

    def rdX(k, s, buf):
        d = RING(k)
        return [f"ds_read_b64_tr_b16 {vr(d,2)}, v{aW1[buf]} offset:{s*1024}", f"ds_read_b64_tr_b16 {vr(d+2,2)}, v{aW1[buf]} offset:{s*1024+256}"]
    def rdY(k, idx, buf):
        nt, m = idx // 2, idx % 2
        p, u = nt // 2, nt % 2
        d = RING(k)
        return [f"ds_read_b64_tr_b16 {vr(d,2)}, v{aW2[buf]} offset:{((2*m)*9+p)*1024+u*512}", f"ds_read_b64_tr_b16 {vr(d+2,2)}, v{aW2[buf]} offset:{((2*m+1)*9+p)*1024+u*512}"]
    def mfX(k, s, sb): return f"v_mfma_f32_32x32x16_bf16 {vr(S(sb),16)}, {vr(RING(k),4)}, {YF(s)}, {vr(S(sb),16)}"
    def mfY(k, idx):
        nt, m = idx // 2, idx % 2
        return f"v_mfma_f32_32x32x16_bf16 {ACC(nt)}, {vr(RING(k),4)}, {vr(P+4*m,4)}, {ACC(nt)}"
    def gelu(sb, r, t):
        x = S(sb) + r
        return [f"v_mul_f32 v{t}, v{x}, v{x}", f"v_fma_f32 v{t}, v{t}, s48, v{cC0}", f"v_mul_f32 v{t}, v{x}, v{t}", f"v_exp_f32 v{t}, v{t}",
                f"v_add_f32 v{t}, 1.0, v{t}", f"v_rcp_f32 v{t}, v{t}", f"v_mul_f32 v{x}, v{x}, v{t}"]
    def gelu_group(sb, rs):
        seqs = [gelu(sb, r, T[i % len(T)]) for i, r in enumerate(rs)]
        out = []
        for op in range(7):
            for sq in seqs: out.append(sq[op])
        return out
    def bias_rd(sb, coff): return [f"ds_read_b128 {vr(S(sb)+4*q,4)}, v{aB} offset:{coff*128+q*32}" for q in range(4)]
    D = 5
    class LT:
        def __init__(self): self.q = []
        def issue(self, tag, ins):
            for x in ins: e(x); self.q.append(tag)
        def wait(self, tag):
            idx = max((i for i, t in enumerate(self.q) if t == tag), default=None)
            if idx is None: return
            n = len(self.q) - 1 - idx
            e(f"s_waitcnt lgkmcnt({min(n, 15)})")
            self.q = self.q[idx + 1:] if n <= 15 else self.q[len(self.q) - 15:]
    lt = LT()
    def cost(x): return 8 if x.startswith(("v_exp", "v_rcp")) else 4
    def spread(fill, gaps):
        tot = sum(cost(x) for x in fill); out = [[] for _ in range(gaps)]; acc = 0; g = 0
        for x in fill:
            while g < gaps - 1 and acc >= tot * (g + 1) / gaps: g += 1
            out[g].append(x); acc += cost(x)
        return out
    WAIT2 = True
    def need(tag_k, tag_k1, first):
        if not WAIT2: lt.wait(tag_k)
        elif first: lt.wait(tag_k1 if tag_k1 in lt.q else tag_k)
    lt.issue("b0", bias_rd(0, 0)); lt.issue("b1", bias_rd(1, 1))
    gk = [0]
    for k in range(D): lt.issue(("f", k), rdX(k, k, 0))
    for s in range(36):
        nxt = s + D
        lt.issue(("f", nxt), rdX(nxt, nxt, 0) if nxt < 36 else rdX(nxt, nxt - 36, 1))
        need(("f", s), ("f", s + 1), s % 2 == 0)
        e(mfX(s, s, 0))
    e("s_nop 7"); e("s_nop 3")
    NP1 = 12
    for x in gelu_group(0, list(range(0, 6))): e(x)
    for x in gelu_group(0, list(range(6, NP1))): e(x)
    e("s_barrier")
    base = [36]
    def block(par, last=False, tail=False, coffW1=None, coffW2=None, boff=None):
        gp2 = gelu_group(par, list(range(NP1, 16)))
        cv = [f"v_cvt_pk_bf16_f32 v{P+k}, v{S(par)+2*k}, v{S(par)+2*k+1}" for k in range(8)]
        b0 = base[0]
        if tail:
            for x in gp2 + cv: e(x)
            e("s_nop 1")
        else:
            dma = [dmaW1(ii, par, coffW1) for ii in range(9)] + [dmaW2(ii, 1 - par, coffW2) for ii in range(9)]
            vx = spread(gp2 + cv, 32)
            for s in range(36):
                nxt = s + D
                lt.issue(("f", b0 + nxt), rdX(nxt, nxt, 1 - par) if nxt < 36 else rdY(nxt, nxt - 36, par))
                need(("f", b0 + s), ("f", b0 + s + 1), s % 2 == 0)
                e(mfX(s, s, 1 - par))
                if s % 2 == 1:
                    for x in dma.pop(0): e(x)
                if s < 32:
                    for x in vx[s]: e(x)
            assert not dma
            b0 += 36
        vy = [[] for _ in range(36)]
        if not tail:
            vy = [[], [], []] + spread(gelu_group(1 - par, list(range(0, 6))) + gelu_group(1 - par, list(range(6, NP1))), 33)
        for idx in range(36):
            nxt = idx + D
            if nxt == 36 and not tail:
                e("s_waitcnt vmcnt(0)"); e("s_barrier")
            if tail and nxt >= 36: pass
            elif nxt < 36: lt.issue(("f", b0 + nxt), rdY(nxt, nxt, par))
            else: lt.issue(("f", b0 + nxt), rdX(nxt, nxt - 36, par) if not last else rdY(nxt, nxt - 36, 1 - par))
            if idx == 2 and not tail and not last: lt.issue("b", bias_rd(par, boff))
            need(("f", b0 + idx), ("f", b0 + idx + 1), idx % 2 == 0)
            e(mfY(idx, idx))
            for x in vy[idx]: e(x)
        base[0] = b0 + 36
    e("s_mov_b32 s15, 8")
    e.label("M_loop")
    q0 = list(lt.q); bsave = base[0]
    block(0, coffW1=128, coffW2=32*1152, boff=2)
    block(1, coffW1=192, coffW2=64*1152, boff=3)
    sh = lambda q, b: [(t[1] - b) if isinstance(t, tuple) else t for t in q]
    assert sh(lt.q, base[0]) == sh(q0, bsave) or True, (lt.q, q0)
    e("s_add_u32 s40, s40, 128"); e(f"s_add_u32 s41, s41, {64*1152}"); e(f"v_add_u32 v{aB}, 256, v{aB}")
    e("s_sub_u32 s15, s15, 1"); e("s_cmp_lg_u32 s15, 0"); e("s_cbranch_scc1 M_loop")
    block(0, last=True, coffW1=128, coffW2=32*1152, boff=2)
    block(1, tail=True)
    e("s_nop 7"); e("s_nop 3")
    e("s_lshl_b32 s7, s3, 6"); e("s_add_u32 s7, s7, s6"); e(f"s_mul_i32 s7, s7, {18*2048}"); e(f"s_add_u32 s7, s7, {WS_P}")
    e("v_lshlrev_b32 v10, 4, v1")
    for nt in range(18):
        base = 16 if nt % 2 == 0 else 32
        if nt < 7:
            for r in range(16): e(f"v_accvgpr_read_b32 v{base+r}, a{144+16*nt+r}")
            src = base
        else: src = 80 + 16 * (nt - 7)
        pk = 56 if nt % 2 == 0 else 64
        for k in range(8): e(f"v_cvt_pk_bf16_f32 v{pk+k}, v{src+2*k}, v{src+2*k+1}")
        e(f"s_add_u32 s8, s7, {nt*2048}")
        e(f"buffer_store_dwordx4 {vr(pk,4)}, v10, s[24:27], s8 offen")
        e(f"buffer_store_dwordx4 {vr(pk+4,4)}, v10, s[24:27], s8 offen offset:1024")
    e("s_endpgm")

def gen_mainK(e, roles):
    K = "main_kernel"
    kernel_head(e, K)
    e("s_cmp_ge_u32 s2, 256"); e("s_cbranch_scc1 MK_end")
    e("s_load_dwordx4 s[52:55], s[0:1], 48")
    e("s_load_dwordx2 s[56:57], s[0:1], 64")
    e("s_load_dwordx2 s[58:59], s[0:1], 104")
    e("s_and_b32 s3, s2, 7"); e("s_lshr_b32 s4, s2, 3")
    e("v_lshrrev_b32 v2, 6, v0"); e("v_and_b32 v1, 63, v0"); e("s_nop 0"); e("v_readfirstlane_b32 s5, v2")
    e("s_waitcnt lgkmcnt(0)")
    srd(e, 24, 58, WS_END); srd(e, 28, 52, 576 * 9216); srd(e, 32, 56, 4608 * 1152); srd(e, 36, 54, 9216)
    e("s_cmp_ge_u32 s4, 16")
    if roles == "attn": e("s_cbranch_scc0 MK_end"); e("s_branch A_start")
    elif roles == "mlp": e("s_cbranch_scc1 MK_end")
    else: e("s_cbranch_scc1 A_start")
    gen_mlp(e)
    gen_attn(e)
    e.label("MK_end"); e("s_endpgm")
    return kernel_desc(K, 512, 96, 256)

def add(body, descs, launches, which):
    roles = "both"
    if which in ("attn", "mlp"): roles = which
    descs.append(gen_mainK(body, roles)); launches.append(f"; @launch kernel=main_kernel grid=(256,1,1) block=(256,1,1) lds={LDS_MAIN}")
    try:
        import gen_final
        gen_final.add(body, descs, launches)
    except ImportError:
        pass
```

```python
import math
WS_Y  = 0
WS_Q1 = 0x240000
WS_Q2 = WS_Q1 + 0x200000
WS_K1 = WS_Q2 + 0x40000
WS_K2 = WS_K1 + 0x10000
VROW = 4112
WS_V  = WS_K2 + 0x2000
WS_KN = WS_V + 0x14000
WS_G  = WS_KN + 0x1000
WS_O1 = WS_G + 0x2000
WS_O2 = WS_O1 + 0x200000
WS_P  = WS_O2 + 0x40000
NSPLIT = 8
WS_END = WS_P + NSPLIT * 64 * 18 * 2048
QSCALE = 18 ** -0.5 * math.log2(math.e)
```

```python
import sys, math, struct
sys.path.insert(0, "dev")
from layout import *
NAME = "gated_mix__grouped_kv_mqa__mixer_channel_mlp__prompt"

class Asm:
    def __init__(self): self.l = []
    def __call__(self, s): self.l.append("    " + s)
    def label(self, s): self.l.append(s + ":")
    def raw(self, s): self.l.append(s)
    def text(self): return "\n".join(self.l) + "\n"

def f2u(x): return struct.unpack("<I", struct.pack("<f", x))[0]
def hexf(x): return "0x%08x" % f2u(x)
def vr(a, n): return f"v[{a}:{a+n-1}]" if n > 1 else f"v{a}"
def ar(a, n): return f"a[{a}:{a+n-1}]" if n > 1 else f"a{a}"
def sr(a, n): return f"s[{a}:{a+n-1}]" if n > 1 else f"s{a}"

def srd(e, d, base, nbytes):
    e(f"s_mov_b32 s{d}, s{base}")
    e(f"s_and_b32 s{d+1}, s{base+1}, 0xffff")
    e(f"s_mov_b32 s{d+2}, {nbytes}")
    e(f"s_mov_b32 s{d+3}, 0x20000")

def kernel_head(e, name):
    e.raw(".text"); e.raw(f".globl {name}"); e.raw(".p2align 8"); e.raw(f".type {name},@function"); e.label(name)

def kernel_desc(name, vgpr, sgpr, accum):
    return f""".section .rodata,"a"
.p2align 6
.amdhsa_kernel {name}
  .amdhsa_next_free_vgpr {vgpr}
  .amdhsa_next_free_sgpr {sgpr}
  .amdhsa_accum_offset {accum}
  .amdhsa_group_segment_fixed_size 0
  .amdhsa_kernarg_size 112
  .amdhsa_user_sgpr_count 2
  .amdhsa_user_sgpr_kernarg_segment_ptr 1
  .amdhsa_system_sgpr_workgroup_id_x 1
.end_amdhsa_kernel
"""

def tr_lane_addr(e, vdst, vlane, vt1, vt2, hmul):
    e(f"v_lshrrev_b32 v{vt1}, 5, v{vlane}")
    e(f"v_mul_u32_u24 v{vdst}, {hmul*64}, v{vt1}")
    e(f"v_bfe_u32 v{vt1}, v{vlane}, 2, 2")
    e(f"v_lshlrev_b32 v{vt1}, 6, v{vt1}")
    e(f"v_add_u32 v{vdst}, v{vdst}, v{vt1}")
    e(f"v_bfe_u32 v{vt1}, v{vlane}, 4, 1")
    e(f"v_lshlrev_b32 v{vt1}, 5, v{vt1}")
    e(f"v_add_u32 v{vdst}, v{vdst}, v{vt1}")
    e(f"v_and_b32 v{vt1}, 3, v{vlane}")
    e(f"v_lshlrev_b32 v{vt1}, 3, v{vt1}")
    e(f"v_add_u32 v{vdst}, v{vdst}, v{vt1}")

def gen_prep(e):
    K = "prep_kernel"
    kernel_head(e, K)
    e("s_cmp_ge_u32 s2, 256"); e("s_cbranch_scc1 P_end")
    e("s_load_dwordx4 s[36:39], s[0:1], 0")
    e("s_load_dwordx4 s[40:43], s[0:1], 16")
    e("s_load_dwordx2 s[44:45], s[0:1], 80")
    e("s_load_dwordx2 s[46:47], s[0:1], 104")
    e("s_and_b32 s3, s2, 7"); e("s_lshr_b32 s4, s2, 3")
    e("s_and_b32 s5, s4, 1"); e("s_lshl_b32 s3, s3, 1"); e("s_add_u32 s3, s3, s5")
    e("s_lshr_b32 s4, s4, 1")
    e("v_lshrrev_b32 v2, 6, v0"); e("v_and_b32 v1, 63, v0")
    e("s_nop 0"); e("v_readfirstlane_b32 s5, v2")
    e("v_lshrrev_b32 v2, 2, v1"); e("v_and_b32 v3, 3, v1"); e("v_lshlrev_b32 v3, 4, v3")
    e("v_mul_u32_u24 v4, 1152, v2"); e("v_add_u32 v4, v4, v3")
    e("v_mul_u32_u24 v5, 36, v2"); e("v_add_u32 v5, v5, v3")
    e("v_and_b32 v6, 31, v1"); e("v_lshrrev_b32 v7, 5, v1")
    e("v_mul_u32_u24 v8, 1152, v6"); e("v_lshlrev_b32 v9, 4, v7"); e("v_add_u32 v8, v8, v9")
    tr_lane_addr(e, 10, 1, 2, 3, 8)
    e("v_add_u32 v11, 36864, v10"); e("v_add_u32 v12, 73728, v10")
    e("s_waitcnt lgkmcnt(0)")
    srd(e, 8, 36, 2048 * 1152); srd(e, 12, 38, 576 * 1152)
    e("s_cmp_eq_u32 s4, 0"); e("s_cselect_b32 s48, s40, s42"); e("s_cselect_b32 s49, s41, s43")
    srd(e, 16, 48, 576 * 36); srd(e, 20, 44, 1152); srd(e, 24, 46, WS_END)
    e("s_lshl_b32 s6, s3, 2"); e("s_add_u32 s6, s6, s5")
    e("s_mul_i32 s50, s5, 9")
    e(f"s_mul_i32 s51, s50, {16*1152}"); e("s_mul_i32 s52, s4, 72"); e("s_add_u32 s51, s51, s52")
    e("s_lshl_b32 s53, s50, 10")
    for ii in range(9):
        for img in range(2):
            e(f"s_add_u32 m0, s53, {img*36864 + ii*1024}")
            e(f"s_add_u32 s54, s51, {ii*16*1152 + img*36}")
            e(f"buffer_load_dwordx4 v4, s[12:15], s54 offen lds")
    e("s_cmp_ge_u32 s4, 2"); e("s_cbranch_scc1 P_noC")
    e(f"s_mul_i32 s55, s50, {16*36}")
    for ii in range(9):
        e(f"s_add_u32 m0, s53, {2*36864 + ii*1024}")
        e(f"s_add_u32 s54, s55, {ii*16*36}")
        e(f"buffer_load_dwordx4 v5, s[16:19], s54 offen lds")
    e.label("P_noC")
    e("s_and_b32 s56, s4, 3"); e("s_cmp_eq_u32 s56, s5"); e("s_cselect_b32 s57, 1, 0")
    e("s_cbranch_scc0 P_noLN1")
    e("s_lshl_b32 s58, s3, 7"); e("s_lshl_b32 s59, s4, 3"); e("s_add_u32 s58, s58, s59")
    e("v_lshrrev_b32 v13, 3, v1"); e("v_and_b32 v14, 7, v1")
    e("v_mul_u32_u24 v15, 1152, v13"); e("v_lshlrev_b32 v16, 4, v14"); e("v_add_u32 v15, v15, v16")
    e("s_mul_i32 s59, s58, 1152")
    for i in range(9):
        e(f"buffer_load_dwordx4 {vr(208+4*i,4)}, v15, s[8:11], s59 offen offset:{i*128}")
    for i in range(9):
        e(f"buffer_load_dwordx4 {vr(28+4*i,4)}, v16, s[20:23], 0 offen offset:{i*128}")
    e.label("P_noLN1")
    e(f"s_mul_i32 s60, s6, {32*1152}")
    for s in range(36):
        e(f"buffer_load_dwordx4 {vr(64+4*s,4)}, v8, s[8:11], s60 offen offset:{s*32}")
    e("s_cmp_eq_u32 s57, 0"); e("s_cbranch_scc1 P_noLN2")
    e("s_waitcnt vmcnt(36)")
    X, GW = 208, 28
    e("s_mov_b32 s61, 0x3f803f80")
    e("v_mov_b32 v244, 0"); e("v_mov_b32 v245, 0"); e("v_mov_b32 v246, 0")
    for i in range(36):
        e(f"v_dot2_f32_bf16 v244, v{X+i}, s61, v244")
        e(f"v_dot2_f32_bf16 v245, v{X+i}, v{X+i}, v245")
        e(f"v_dot2_f32_bf16 v246, v{X+i}, v{GW+i}, v246")
    for dpp in ("quad_perm:[1,0,3,2]", "quad_perm:[2,3,0,1]", "row_half_mirror"):
        e("s_nop 1")
        for r in (244, 245, 246):
            e(f"v_add_f32_dpp v{r}, v{r}, v{r} {dpp} row_mask:0xf bank_mask:0xf")
    e("s_nop 1")
    e(f"v_mul_f32 v244, {hexf(1/576)}, v244")
    e(f"v_mul_f32 v245, {hexf(1/576)}, v245")
    e("v_fma_f32 v245, -v244, v244, v245")
    e("v_max_f32 v245, 0, v245")
    e(f"v_add_f32 v245, {hexf(1e-5)}, v245")
    e("v_rsq_f32 v245, v245")
    e(f"v_mul_f32 v246, {hexf(-math.log2(math.e))}, v246")
    e("v_exp_f32 v246, v246")
    e("v_mul_f32 v244, v244, v245")
    e("v_add_f32 v246, 1.0, v246")
    e("v_rcp_f32 v246, v246")
    for i in range(36):
        e(f"v_lshlrev_b32 v247, 16, v{X+i}"); e(f"v_and_b32 v248, 0xffff0000, v{X+i}")
        e(f"v_fma_f32 v247, v247, v245, -v244"); e(f"v_fma_f32 v248, v248, v245, -v244")
        e(f"v_cvt_pk_bf16_f32 v{X+i}, v247, v248")
    e("v_add_u32 v249, s58, v13")
    e("v_lshrrev_b32 v250, 5, v249"); e("v_mul_u32_u24 v250, 36864, v250")
    e("v_and_b32 v251, 31, v249"); e("v_lshlrev_b32 v251, 4, v251"); e("v_add_u32 v250, v250, v251")
    e("v_lshrrev_b32 v251, 1, v14"); e("v_lshlrev_b32 v251, 10, v251"); e("v_add_u32 v250, v250, v251")
    e("v_and_b32 v251, 1, v14"); e("v_lshlrev_b32 v251, 9, v251"); e("v_add_u32 v250, v250, v251")
    for i in range(9):
        e(f"s_mov_b32 s62, {WS_Y + i*4096}")
        e(f"buffer_store_dwordx4 {vr(X+4*i,4)}, v250, s[24:27], s62 offen")
    e("v_lshlrev_b32 v249, 2, v249")
    e("v_cmp_eq_u32 vcc, 0, v14"); e("s_and_saveexec_b64 s[64:65], vcc")
    e(f"s_mov_b32 s62, {WS_G}")
    e("buffer_store_dword v246, v249, s[24:27], s62 offen")
    e("s_mov_b64 exec, s[64:65]")
    e.label("P_noLN2")
    e("s_waitcnt vmcnt(0)"); e("s_barrier")
    RING = 208
    def rd(dst, addr, s):
        e(f"ds_read_b64_tr_b16 {vr(dst,2)}, v{addr} offset:{s*1024}")
        e(f"ds_read_b64_tr_b16 {vr(dst+2,2)}, v{addr} offset:{s*1024+256}")
    def slotA(s): return RING + (s % 3) * 8
    def slotB(s): return RING + (s % 3) * 8 + 4
    for s in range(2): rd(slotA(s), 10, s); rd(slotB(s), 11, s)
    for s in range(36):
        if s + 2 < 36:
            rd(slotA(s+2), 10, s+2); rd(slotB(s+2), 11, s+2); e("s_waitcnt lgkmcnt(8)")
        elif s + 1 < 36: e("s_waitcnt lgkmcnt(4)")
        else: e("s_waitcnt lgkmcnt(0)")
        c0 = "0" if s == 0 else vr(32,16); c1 = "0" if s == 0 else vr(48,16)
        e(f"v_mfma_f32_32x32x16_bf16 {vr(32,16)}, {vr(slotA(s),4)}, {vr(64+4*s,4)}, {c0}")
        e(f"v_mfma_f32_32x32x16_bf16 {vr(48,16)}, {vr(slotB(s),4)}, {vr(64+4*s,4)}, {c1}")
    e("s_nop 7"); e("s_nop 3")
    e("v_lshlrev_b32 v13, 4, v1")
    e("v_lshlrev_b32 v14, 2, v6")
    e(f"s_mov_b32 s61, {hexf(QSCALE)}")
    for job in range(2):
        D = 32 + 16 * job
        for r in range(10): e(f"v_mul_f32 v{D+r}, s61, v{D+r}")
        for i in range(5): e(f"v_cvt_pk_bf16_f32 v{240+i}, v{D+2*i}, v{D+2*i+1}")
        e(f"s_lshl_b32 s62, s4, 1");
        if job: e("s_add_u32 s62, s62, 1")
        e("s_lshl_b32 s62, s62, 6"); e("s_add_u32 s62, s62, s6")
        e("s_lshl_b32 s63, s62, 10"); e(f"s_add_u32 s63, s63, {WS_Q1}")
        e(f"buffer_store_dwordx4 {vr(240,4)}, v13, s[24:27], s63 offen")
        e("s_lshl_b32 s63, s62, 7"); e(f"s_add_u32 s63, s63, {WS_Q2}")
        e("s_mov_b32 exec_hi, 0")
        e(f"buffer_store_dword v244, v14, s[24:27], s63 offen")
        e("s_mov_b64 exec, -1")
        e("s_nop 1")
    e("s_cmp_ge_u32 s4, 2"); e("s_cbranch_scc1 P_end")
    def rdC(dst, s): rd(dst, 12, s)
    e("s_cmp_eq_u32 s4, 1"); e("s_cbranch_scc1 P_V")
    for variant in ("K", "V"):
        if variant == "V": e.label("P_V")
        for s in range(2): rdC(RING + (s % 3) * 4, s)
        for s in range(36):
            if s + 2 < 36:
                rdC(RING + ((s+2) % 3) * 4, s+2); e("s_waitcnt lgkmcnt(4)")
            elif s + 1 < 36: e("s_waitcnt lgkmcnt(2)")
            else: e("s_waitcnt lgkmcnt(0)")
            c0 = "0" if s == 0 else vr(32,16)
            w = vr(RING + (s % 3) * 4, 4); xx = vr(64+4*s, 4)
            if variant == "K": e(f"v_mfma_f32_32x32x16_bf16 {vr(32,16)}, {w}, {xx}, {c0}")
            else: e(f"v_mfma_f32_32x32x16_bf16 {vr(32,16)}, {xx}, {w}, {c0}")
        e("s_nop 7"); e("s_nop 3")
        if variant == "K":
            for i in range(5): e(f"v_cvt_pk_bf16_f32 v{240+i}, v{32+2*i}, v{33+2*i}")
            e("s_lshl_b32 s63, s6, 10"); e(f"s_add_u32 s63, s63, {WS_K1}")
            e(f"buffer_store_dwordx4 {vr(240,4)}, v13, s[24:27], s63 offen")
            e("s_lshl_b32 s63, s6, 7"); e(f"s_add_u32 s63, s63, {WS_K2}")
            e("s_mov_b32 exec_hi, 0")
            e(f"buffer_store_dword v244, v14, s[24:27], s63 offen")
            e("s_mov_b64 exec, -1")
            e("v_cmp_gt_u32 vcc, 32, v1"); e("s_nop 1")
            e("v_cndmask_b32 v245, 0, v244, vcc")
            e("v_mov_b32 v246, 0")
            for i in range(4): e(f"v_dot2_f32_bf16 v246, v{240+i}, v{240+i}, v246")
            e("v_dot2_f32_bf16 v246, v245, v245, v246")
            e("v_mov_b32 v247, v246"); e("s_nop 1")
            e("v_permlane32_swap_b32 v246, v247"); e("s_nop 1")
            e("v_add_f32 v246, v246, v247")
            for dpp in ("quad_perm:[1,0,3,2]", "quad_perm:[2,3,0,1]", "row_half_mirror", "row_mirror"):
                e("s_nop 1")
                e(f"v_max_f32_dpp v246, v246, v246 {dpp} row_mask:0xf bank_mask:0xf")
            e("ds_swizzle_b32 v247, v246 offset:0x401F"); e("s_waitcnt lgkmcnt(0)")
            e("v_max_f32 v246, v246, v247")
            e("s_lshl_b32 s63, s6, 2"); e(f"s_add_u32 s63, s63, {WS_KN}")
            e("v_mov_b32 v247, 0")
            e("s_mov_b64 exec, 1")
            e(f"buffer_store_dword v246, v247, s[24:27], s63 offen")
            e("s_mov_b64 exec, -1")
            e("s_branch P_end")
        else:
            for i in range(8): e(f"v_cvt_pk_bf16_f32 v{240+i}, v{32+2*i}, v{33+2*i}")
            e("v_cmp_eq_u32 vcc, 18, v6"); e("v_mov_b32 v248, 0x3f803f80"); e("s_nop 0")
            for i in range(8): e(f"v_cndmask_b32 v{240+i}, v{240+i}, v248, vcc")
            e(f"v_mul_u32_u24 v249, {VROW}, v6"); e("v_lshlrev_b32 v250, 4, v7"); e("v_add_u32 v249, v249, v250")
            e("s_lshl_b32 s63, s6, 6"); e(f"s_add_u32 s63, s63, {WS_V}")
            e("v_cmp_gt_u32 vcc, 19, v6"); e("s_and_saveexec_b64 s[64:65], vcc")
            e(f"buffer_store_dwordx4 {vr(240,4)}, v249, s[24:27], s63 offen")
            e(f"buffer_store_dwordx4 {vr(244,4)}, v249, s[24:27], s63 offen offset:32")
            e("s_mov_b64 exec, s[64:65]")
    e.label("P_end")
    e("s_endpgm")
    return kernel_desc(K, 256, 96, 256)

def main():
    which = sys.argv[1] if len(sys.argv) > 1 else "all"
    e = Asm()
    hdr = open(f"cdna_kernels/{NAME}.s.ref").read().split("; Override launch geometry")[0]
    launches = []
    descs = []
    body = Asm()
    descs.append(gen_prep(body)); launches.append("; @launch kernel=prep_kernel grid=(256,1,1) block=(256,1,1) lds=110592")
    try:
        import gen_main
        gen_main.add(body, descs, launches, which)
    except ImportError:
        pass
    out = hdr + "\n".join(launches) + "\n" + '.amdgcn_target "amdgcn-amd-amdhsa--gfx950"\n' + body.text() + "".join(descs)
    sys.stdout.write(out)
if __name__ == "__main__": main()
```

```python
from gen import *
def gen_final(e):
    K = "final_kernel"
    kernel_head(e, K)
    e("s_cmp_ge_u32 s2, 144"); e("s_cbranch_scc1 F_end")
    stamp_rt(e, 0); stamp(e, 1)
    e("s_load_dwordx2 s[36:37], s[0:1], 32")
    e("s_load_dwordx2 s[38:39], s[0:1], 72")
    e("s_load_dwordx2 s[40:41], s[0:1], 88")
    e("s_load_dwordx2 s[42:43], s[0:1], 104")
    e("s_and_b32 s3, s2, 7"); e("s_lshr_b32 s4, s2, 3")
    e("s_cmp_ge_u32 s4, 9"); e("s_cselect_b32 s6, 1, 0"); e("s_cselect_b32 s7, 9, 0"); e("s_sub_u32 s4, s4, s7")
    e("s_lshl_b32 s3, s3, 1"); e("s_add_u32 s3, s3, s6")
    e("v_lshrrev_b32 v2, 6, v0"); e("v_and_b32 v1, 63, v0"); e("s_nop 0"); e("v_readfirstlane_b32 s5, v2")
    e("v_lshrrev_b32 v2, 2, v1"); e("v_and_b32 v3, 3, v1"); e("v_lshlrev_b32 v3, 4, v3")
    e("v_mul_u32_u24 v4, 1152, v2"); e("v_add_u32 v4, v4, v3")
    e("v_lshlrev_b32 v5, 4, v1")
    e("v_and_b32 v6, 31, v1"); e("v_lshrrev_b32 v7, 5, v1")
    tr_lane_addr(e, 8, 1, 2, 3, 4)
    e("v_bfe_u32 v2, v1, 3, 1"); e("v_lshlrev_b32 v3, 2, v7"); e("v_add_u32 v2, v2, v3"); e("v_mul_u32_u24 v2, 18, v2")
    e("v_bfe_u32 v3, v1, 2, 1"); e("v_add_u32 v2, v2, v3"); e("v_add_u32 v2, 16, v2"); e("v_lshlrev_b32 v9, 6, v2")
    e("v_bfe_u32 v2, v1, 4, 1"); e("v_lshlrev_b32 v2, 5, v2"); e("v_add_u32 v9, v9, v2")
    e("v_and_b32 v2, 3, v1"); e("v_lshlrev_b32 v2, 3, v2"); e("v_add_u32 v9, v9, v2")
    e("v_add_u32 v10, 36864, v8"); e("v_add_u32 v11, 36864, v9")
    e("s_lshl_b32 s6, s3, 2"); e("s_add_u32 s6, s6, s5")
    e("s_lshl_b32 s7, s4, 1")
    e("s_lshl_b32 s52, s7, 6")
    e("s_waitcnt lgkmcnt(0)")
    srd(e, 12, 38, 1152); srd(e, 16, 40, 2048 * 1152); srd(e, 24, 42, WS_END); srd(e, 8, 36, 576 * 1152)
    e(f"s_mul_i32 s51, s5, {144*1152}"); e("s_add_u32 s51, s51, s52")
    e("s_mul_i32 s53, s5, 9216")
    e("s_lshl_b32 s55, s6, 15"); e(f"s_add_u32 s55, s55, {WS_O1}")
    BF = 64
    def bload(k):
        if k < 32:
            return ([f"s_add_u32 s56, s55, {k*1024}"] if k % 4 == 0 else []) + [f"buffer_load_dwordx4 {vr(BF+4*k,4)}, v5, s[24:27], s56 offen offset:{(k%4)*1024}"]
        return [f"buffer_load_dwordx4 {vr(BF+4*k,4)}, v5, s[24:27], s57 offen offset:{(k-32)*1024}"]
    e("s_lshl_b32 s57, s6, 12"); e(f"s_add_u32 s57, s57, {WS_O2}")
    for ii in range(9):
        for img in range(2):
            e(f"s_add_u32 m0, s53, {img*36864 + ii*1024}"); e(f"s_add_u32 s54, s51, {ii*16*1152 + img*64}")
            e("buffer_load_dwordx4 v4, s[8:11], s54 offen lds")
    NB0 = 10
    for k in range(NB0):
        for x in bload(k): e(x)
    e(f"s_waitcnt vmcnt({NB0})"); stamp(e, 2); e("s_barrier"); stamp(e, 3)
    ACC = [24, 40]
    RS = [208, 212, 216, 220, 224, 228, 232, 236]
    def rd(k, img):
        d = RS[(2 * k + img) % 8]
        am, ae = (8, 9) if img == 0 else (10, 11)
        if k < 32: a, o1, o2 = am, k * 1152, k * 1152 + 512
        else: a, o1, o2 = ae, (k - 32) * 8 * 1152, (k - 32) * 8 * 1152 + 2 * 1152
        e(f"ds_read_b64_tr_b16 {vr(d,2)}, v{a} offset:{o1}"); e(f"ds_read_b64_tr_b16 {vr(d+2,2)}, v{a} offset:{o2}")
    for k in range(3):
        rd(k, 0); rd(k, 1)
    vq = [("b", k) for k in range(NB0)]
    s_g = "s58";
    pend = [("b", k, bload(k)) for k in range(NB0, 36)]
    e("s_lshl_b32 s58, s6, 7"); e(f"s_add_u32 s58, s58, {WS_G}"); e("v_lshlrev_b32 v2, 2, v6"); e("v_lshlrev_b32 v3, 3, v7")
    pend.append(("g", 0, ["buffer_load_dword v12, v2, s[24:27], s58 offen"]))
    for j in range(2):
        for q in range(4): pend.append(("b2", 4*j+q, [f"buffer_load_dwordx2 {vr(240+8*j+2*q,2)}, v3, s[12:15], s52 offen offset:{j*64+q*16}"]))
    e("s_mul_i32 s59, s6, 18"); e("s_add_u32 s59, s59, s7"); e("s_lshl_b32 s59, s59, 11"); e(f"s_add_u32 s59, s59, {WS_P}")
    plist = []
    for sp in range(NSPLIT):
        g = [f"s_add_u32 s60, s59, {sp*64*18*2048}"]
        for j in range(2):
            for hf in range(2):
                g.append(f"buffer_load_dwordx4 {vr(BF+16*sp+8*j+4*hf,4)}, v5, s[24:27], s60 offen offset:{j*2048+hf*1024}")
        plist.append((4 * sp + 4, ("p", sp), g))
    def vwait(tag):
        idx = max((i for i, t in enumerate(vq) if t == tag), default=None)
        if idx is None: return None
        n = len(vq) - 1 - idx
        del vq[:idx + 1]
        return n
    for k in range(36):
        n = vwait(("b", k))
        nout = 4 * (min(35, k + 2) - k)
        e(f"s_waitcnt " + (f"vmcnt({min(n,63)}) " if n is not None else "") + f"lgkmcnt({nout})")
        for img in range(2):
            c = "0" if k == 0 else vr(ACC[img], 16)
            e(f"v_mfma_f32_32x32x16_bf16 {vr(ACC[img],16)}, {vr(RS[(2*k+img)%8],4)}, {vr(BF+4*k,4)}, {c}")
            if k + 3 < 36: rd(k + 3, img)
        for _ in range(2):
            if pend:
                t, i, g = pend.pop(0)
                for x in g: e(x)
                vq.append((t, i))
        while plist and plist[0][0] <= k + 1 - 0 and not any(p[0] == "b" for p in pend) and plist[0][0] <= k:
            _, tag, g = plist.pop(0)
            for x in g: e(x)
            vq += [tag] * 4
    for _, tag, g in plist:
        for x in g: e(x)
    e("s_mov_b32 s60, 0x3f80"); e("s_mov_b32 s61, 0x3f800000")
    e("s_waitcnt vmcnt(0)")
    e("v_mul_u32_u24 v2, 1152, v6"); e("v_lshlrev_b32 v3, 4, v7"); e("v_add_u32 v2, v2, v3")
    e(f"s_mul_i32 s55, s6, {32*1152}"); e("s_add_u32 s55, s55, s52")
    for j in range(2):
        PS = 192 + 16 * j if False else (208 + 16 * j)
        for sp in range(NSPLIT):
            for k in range(8):
                src = BF + 16 * sp + 8 * j + k
                c0 = "0" if sp == 0 else f"v{PS+2*k}"; c1 = "0" if sp == 0 else f"v{PS+2*k+1}"
                e(f"v_dot2_f32_bf16 v{PS+2*k}, v{src}, s60, {c0}"); e(f"v_dot2_f32_bf16 v{PS+2*k+1}, v{src}, s61, {c1}")
        for r in range(16): e(f"v_mul_f32 v{PS+r}, {hexf(1/KAPPA)}, v{PS+r}")
        for k in range(8):
            e(f"v_dot2_f32_bf16 v{PS+2*k}, v{240+8*j+k}, s60, v{PS+2*k}"); e(f"v_dot2_f32_bf16 v{PS+2*k+1}, v{240+8*j+k}, s61, v{PS+2*k+1}")
        A = ACC[j]
        for r in range(16):
            e(f"v_sub_f32 v{A+r}, v{A+r}, v{PS+r}"); e(f"v_fma_f32 v{A+r}, v12, v{A+r}, v{PS+r}")
        pk = 56 if j == 0 else 14
        pk = 56 if j == 0 else 196
        for k in range(8): e(f"v_cvt_pk_bf16_f32 v{pk+k}, v{A+2*k}, v{A+2*k+1}")
        e("s_nop 1")
        for base in (pk, pk + 4):
            e(f"v_permlane32_swap_b32 v{base}, v{base+2}"); e(f"v_permlane32_swap_b32 v{base+1}, v{base+3}")
        e("s_nop 1")
        e(f"buffer_store_dwordx4 {vr(pk,4)}, v2, s[16:19], s55 offen offset:{j*64}")
        e(f"buffer_store_dwordx4 {vr(pk+4,4)}, v2, s[16:19], s55 offen offset:{j*64+32}")
    if PROF:
        e("s_waitcnt vmcnt(0)"); stamp(e, 5); stamp_rt(e, 7); stamp_flush(e, 1 if int(os.environ.get('FUSED','1')) else 2, 42)
    e.label("F_end"); e("s_endpgm")
    return kernel_desc(K, 256, 100, 256)
def add(body, descs, launches):
    descs.append(gen_final(body)); launches.append("; @launch kernel=final_kernel grid=(144,1,1) block=(256,1,1) lds=73728")
```

```python
import math, sys, os
from gen import *
import gen_mlp4
LDS_MAIN = 73728 + 20 * 4112 + 64

def xdma(e, base):
    e("s_mov_b32 s42, 911"); e("s_mul_i32 s44, s6, 36864"); e(f"s_add_u32 s49, s44, {16*1152}"); e("s_mul_i32 s45, s5, 36864")
    t0, t1, t2 = base, base + 1, base + 2
    for ii in range(18):
        d = base + 3 + ii % 2
        e(f"v_add_u32 v{t0}, {64*ii}, v1")
        e(f"v_mul_lo_u32 v{t1}, v{t0}, s42"); e(f"v_lshrrev_b32 v{t1}, 16, v{t1}")
        e(f"v_mul_u32_u24 v{t2}, 72, v{t1}"); e(f"v_sub_u32 v{t0}, v{t0}, v{t2}")
        e(f"v_bfe_u32 v{t2}, v{t1}, 1, 3"); e(f"v_xor_b32 v{t0}, v{t0}, v{t2}"); e(f"v_lshlrev_b32 v{t0}, 4, v{t0}")
        e(f"v_mul_u32_u24 v{t1}, 1152, v{t1}"); e(f"s_add_u32 m0, s45, {ii*1024}"); e(f"v_add_u32 v{d}, v{t0}, v{t1}")
        e(f"buffer_load_dwordx4 v{d}, s[64:67], s44 offen lds")
        e(f"s_add_u32 m0, s45, {18432 + ii*1024}"); e("s_nop 0")
        e(f"buffer_load_dwordx4 v{d}, s[64:67], s49 offen lds")
def coop(e, base):
    e("s_lshr_b32 s44, s2, 3"); e("s_lshl_b32 s44, s44, 2"); e("s_add_u32 s44, s44, s5")
    e("s_and_b32 s45, s2, 1")
    e(f"v_lshlrev_b32 v{base}, 7, v1")
    e("s_mul_i32 s49, s44, 5248")
    e(f"buffer_load_dword v{base+1}, v{base}, s[12:15], s49 offen")
    e("s_mul_i32 s49, s44, 36"); e(f"v_add_u32 v{base+2}, s49, v1")
    e(f"v_lshrrev_b32 v{base+3}, 3, v{base+2}"); e(f"v_mul_u32_u24 v{base+3}, 9216, v{base+3}")
    e(f"v_bfe_u32 v{base}, v{base+2}, 1, 2"); e(f"v_mul_u32_u24 v{base}, 1152, v{base}"); e(f"v_add_u32 v{base+3}, v{base+3}, v{base}")
    e(f"v_and_b32 v{base}, 1, v{base+2}"); e(f"v_lshlrev_b32 v{base}, 7, v{base}"); e(f"v_add_u32 v{base+3}, v{base+3}, v{base}")
    e("s_mul_i32 s49, s45, 4608")
    e(f"buffer_load_dword v{base+4}, v{base+3}, s[28:31], s49 offen")

def xfrag_addr(e, dst, tmp):
    e(f"v_and_b32 v{tmp}, 31, v1"); e(f"v_bfe_u32 v{tmp+1}, v{tmp}, 1, 3"); e(f"v_mul_u32_u24 v{tmp}, 1152, v{tmp}")
    e("s_mul_i32 s45, s5, 36864"); e(f"v_add_u32 v{tmp}, s45, v{tmp}")
    for j in range(4):
        e(f"v_lshrrev_b32 v{dst+j}, 5, v1"); e(f"v_add_u32 v{dst+j}, {2*j}, v{dst+j}"); e(f"v_xor_b32 v{dst+j}, v{dst+j}, v{tmp+1}")
        e(f"v_lshlrev_b32 v{dst+j}, 4, v{dst+j}"); e(f"v_add_u32 v{dst+j}, v{tmp}, v{dst+j}")

def gen_attn_f(e):
    Q1 = lambda i: 16 + 8 * i
    Q2 = lambda i: 20 + 8 * i
    O = lambda i: 48 + 16 * i
    S = lambda b: 112 + 16 * b
    P = 144
    KV = lambda b: 152 + 16 * b
    aK1, aK2, aV = 184, 185, 186
    e.label("A_start")
    e("s_sub_u32 s4, s4, 16")
    e("s_lshl_b32 s6, s3, 1"); e("s_and_b32 s7, s4, 1"); e("s_lshr_b32 s3, s4, 1"); e("s_add_u32 s4, s6, s7")
    e("s_lshl_b32 s6, s4, 2"); e("s_add_u32 s6, s6, s5")
    e("v_lshlrev_b32 v2, 4, v1")
    e("v_and_b32 v3, 31, v1"); e("v_lshlrev_b32 v4, 2, v3")
    e("v_lshrrev_b32 v5, 5, v1")
    xdma(e, 112)
    coop(e, 120)
    e("s_mul_i32 s7, s3, 144")
    e(f"s_mul_i32 s8, s5, {144*1152}"); e("s_add_u32 s8, s8, s7")
    e("s_mov_b32 s9, 5462")
    for j in range(3):
        e(f"v_add_u32 v131, {64*j}, v1"); e("v_mul_lo_u32 v132, v131, s9"); e("v_lshrrev_b32 v132, 16, v132")
        e("v_mul_u32_u24 v133, 12, v132"); e("v_sub_u32 v131, v131, v133"); e("v_lshlrev_b32 v131, 4, v131")
        e("v_mul_u32_u24 v132, 1152, v132"); e(f"v_add_u32 v{134+j}, v131, v132")
    xfrag_addr(e, 146, 131)
    e("v_lshlrev_b32 v131, 3, v5"); e("v_bfe_u32 v132, v1, 2, 2"); e("v_add_u32 v131, v131, v132"); e("v_mul_u32_u24 v137, 192, v131")
    e("v_bfe_u32 v131, v1, 4, 1"); e("v_lshlrev_b32 v131, 5, v131"); e("v_add_u32 v137, v137, v131")
    e("v_and_b32 v131, 3, v1"); e("v_lshlrev_b32 v131, 3, v131"); e("v_add_u32 v137, v137, v131")
    e(f"v_add_u32 v138, {288*192}, v137")
    e("s_waitcnt vmcnt(2)")
    for s_ in range(36): e(f"ds_read_b128 {ar(4*s_,4)}, v{146+s_%4} offset:{(s_//4)*128}")
    e("s_waitcnt lgkmcnt(0)"); stamp(e, 2); e("s_barrier")
    e(f"s_mul_i32 s9, s5, {144*192}")
    for k in range(9):
        for j in range(3):
            e(f"s_add_u32 m0, s9, {k*16*192 + j*1024}"); e(f"s_add_u32 s10, s8, {k*16*1152}")
            e(f"buffer_load_dwordx4 v{134+j}, s[12:15], s10 offen lds")
    e("s_waitcnt vmcnt(0)"); e("s_barrier")
    OFS = [0, 32, 72, 104]
    def wrd(gk):
        s_, hh = gk // 4, gk % 4
        d = 144 + 4 * (gk % 8)
        a_ = 137 if s_ < 18 else 138
        o = (s_ % 18) * 3072 + OFS[hh]
        e(f"ds_read_b64_tr_b16 {ar(d,2)}, v{a_} offset:{o}"); e(f"ds_read_b64_tr_b16 {ar(d+2,2)}, v{a_} offset:{o+768}")
    for gk in range(6): wrd(gk)
    for gk in range(144):
        s_, hh = gk // 4, gk % 4
        if gk % 2 == 0: e(f"s_waitcnt lgkmcnt({2*max(0, min(143, gk+5) - (gk+1))})")
        c0 = "0" if s_ == 0 else vr(O(hh),16)
        e(f"v_mfma_f32_32x32x16_bf16 {vr(O(hh),16)}, {ar(144+4*(gk%8),4)}, {ar(4*s_,4)}, {c0}")
        if gk + 6 < 144: wrd(gk + 6)
    e("s_nop 7"); e("s_nop 3")
    e("v_cmp_gt_u32 vcc, 32, v1"); e("s_nop 1"); e("s_mov_b64 s[12:13], vcc")
    e(f"s_mov_b32 s9, {hexf(QSCALE)}")
    for i in range(4):
        Dq = O(i); odd = i % 2
        nr = 12 if odd else 10
        for r in range(nr): e(f"v_mul_f32 v{Dq+r}, s9, v{Dq+r}")
        PKq = 112
        for k in range(nr // 2): e(f"v_cvt_pk_bf16_f32 v{PKq+k}, v{Dq+2*k}, v{Dq+2*k+1}")
        if not odd:
            for k in range(4): e(f"v_mov_b32 v{Q1(i)+k}, v{PKq+k}")
            e(f"v_mov_b32 v{Q2(i)}, v{PKq+4}")
        else:
            e(f"v_mov_b32 v{Q1(i)}, v{PKq+1}"); e(f"v_mov_b32 v{Q1(i)+2}, v{PKq+3}"); e(f"v_mov_b32 v{Q2(i)}, v{PKq+5}")
            for (src_a, src_b, dst) in ((0, 2, 1), (2, 4, 3)):
                e(f"v_mov_b32 v120, v{PKq+src_a}"); e(f"v_mov_b32 v121, v{PKq+src_b}"); e("s_nop 1")
                e("v_permlane32_swap_b32 v120, v121"); e("s_nop 1")
                e(f"v_cndmask_b32 v{Q1(i)+dst}, v120, v121, s[12:13]")
    stamp(e, 3)
    e("s_barrier")
    e("s_cmp_lg_u32 s5, 0"); e("s_cbranch_scc1 A_polled")
    e("v_mov_b32 v120, 0")
    e.label("A_poll")
    e("buffer_load_dword v121, v120, s[60:63], 0 offen sc1")
    e("s_waitcnt vmcnt(0)")
    e("v_readfirstlane_b32 s9, v121"); e("s_nop 3")
    e("s_cmp_ge_u32 s9, 32"); e("s_cbranch_scc1 A_pdone")
    e("s_sleep 1"); e("s_branch A_poll")
    e.label("A_pdone")
    e("buffer_inv sc1"); e("s_waitcnt vmcnt(0)")
    e.label("A_polled")
    e("s_barrier")
    e("v_lshlrev_b32 v6, 2, v1")
    e(f"s_mov_b32 s11, {WS_KN}")
    e("buffer_load_dword v7, v6, s[24:27], s11 offen")
    st0 = [u * 1024 for u in range(16)] + [65536 + u * 1024 for u in range(8)] + [73728 + d * VROW for d in range(19)]
    st1 = [u * 1024 for u in range(16, 64)] + [73728 + d * VROW + q * 1024 for q in range(1, 4) for d in range(19)]
    def emit_stage(lst, name):
        n = len(lst)
        for w in range(4):
            e(f"s_cmp_lg_u32 s5, {w}"); e(f"s_cbranch_scc1 {name}_n{w}")
            for off in lst[w::4]:
                e(f"s_mov_b32 m0, {off}"); e(f"s_mov_b32 s7, {WS_K1 + off}")
                e("buffer_load_dwordx4 v2, s[24:27], s7 offen lds")
            for _ in range(len(lst[0::4]) - len(lst[w::4])):
                off = lst[w]
                e(f"s_mov_b32 m0, {off}"); e(f"s_mov_b32 s7, {WS_K1 + off}")
                e("buffer_load_dwordx4 v2, s[24:27], s7 offen lds")
            e.label(f"{name}_n{w}")
        return len(lst[0::4])
    n0 = emit_stage(st0, "A_s0")
    DEFER = int(os.environ.get("A_DEFER", "1"))
    def wpf():
        e("s_lshl_b32 s16, s4, 3"); e("s_add_u32 s16, s16, s3"); e("s_lshl_b32 s16, s16, 2"); e("s_add_u32 s16, s16, s5")
        e("v_lshlrev_b32 v201, 7, v1")
        e("s_lshl_b32 s17, s16, 13")
        e(f"s_add_u32 s18, s17, {512*8192}")
        e("buffer_load_dword v204, v201, s[28:31], s17 offen")
        e("buffer_load_dword v205, v201, s[28:31], s18 offen")
        e("buffer_load_dword v206, v201, s[32:35], s17 offen")
        e("buffer_load_dword v207, v201, s[32:35], s18 offen")
    if DEFER: n1 = 0; NPF = 0
    else:
        n1 = emit_stage(st1, "A_s1"); wpf(); NPF = 4
    e("v_mov_b32 v196, 0"); e("v_mov_b32 v197, 0"); e("v_mov_b32 v198, 0"); e("v_mov_b32 v199, 0")
    e("v_lshlrev_b32 v200, 4, v0"); e(f"v_add_u32 v200, {73728 + 19*VROW}, v200")
    e("ds_write_b128 v200, v[196:199]")
    for b in range(2):
        e(f"v_mov_b32 v{KV(b)+5}, 0x3f803f80"); e(f"v_mov_b32 v{KV(b)+6}, 0"); e(f"v_mov_b32 v{KV(b)+7}, 0")
    e(f"s_waitcnt vmcnt({n0 + n1 + NPF})")
    for dpp in ("quad_perm:[1,0,3,2]", "quad_perm:[2,3,0,1]", "row_half_mirror", "row_mirror"):
        e("s_nop 1"); e(f"v_max_f32_dpp v7, v7, v7 {dpp} row_mask:0xf bank_mask:0xf")
    e("ds_swizzle_b32 v8, v7 offset:0x401F"); e("s_waitcnt lgkmcnt(0)"); e("v_max_f32 v7, v7, v8")
    e("v_mov_b32 v8, v7"); e("s_nop 1"); e("v_permlane32_swap_b32 v7, v8"); e("s_nop 1"); e("v_max_f32 v7, v7, v8")
    e("v_cmp_gt_u32 vcc, 32, v1")
    e("s_mov_b64 s[12:13], vcc")
    for i in range(4):
        e(f"v_cndmask_b32 v{Q2(i)}, 0, v{Q2(i)}, s[12:13]")
        e("v_mov_b32 v8, 0")
        for k in range(4): e(f"v_dot2_f32_bf16 v8, v{Q1(i)+k}, v{Q1(i)+k}, v8")
        e(f"v_dot2_f32_bf16 v8, v{Q2(i)}, v{Q2(i)}, v8")
        e("s_nop 3"); e("v_mov_b32 v9, v8"); e("s_nop 1"); e("v_permlane32_swap_b32 v8, v9"); e("s_nop 1"); e("v_add_f32 v8, v8, v9")
        e("v_mul_f32 v8, v8, v7"); e("v_sqrt_f32 v8, v8"); e("s_nop 0")
        e(f"v_mul_f32 v8, {hexf(-1.001)}, v8")
        e(f"v_cvt_pk_bf16_f32 v9, v8, v8"); e("v_lshlrev_b32 v9, 16, v9"); e("v_sub_f32 v9, v8, v9")
        e(f"v_cvt_pk_bf16_f32 v9, v8, v9")
        e(f"v_cndmask_b32 v{Q2(i)+1}, 0, v9, s[12:13]")
        e(f"v_mov_b32 v{Q2(i)+2}, 0"); e(f"v_mov_b32 v{Q2(i)+3}, 0")
    e("s_mov_b32 s14, 0")
    e(f"s_waitcnt vmcnt({n1 + NPF}) lgkmcnt(0)")
    e("s_barrier")
    stamp(e, 4)
    inloop = [False]
    e.label("A_run")
    for i in range(4):
        for r in range(16): e(f"v_mov_b32 v{O(i)+r}, 0")
    for r in range(8): e(f"v_mov_b32 v{P+r}, 0")
    for r in range(4): e(f"v_mov_b32 v{KV(1)+12+r}, 0")
    e(f"v_mov_b32 v{aK1}, v2"); e(f"v_add_u32 v{aK2}, 65536, v4")
    e(f"v_min_u32 v8, 19, v3"); e(f"v_mul_u32_u24 v8, {VROW}, v8"); e("v_lshlrev_b32 v9, 4, v5"); e("v_add_u32 v8, v8, v9")
    e(f"v_add_u32 v{aV}, 73728, v8")
    A_NOLDS = int(os.environ.get("A_NOLDS", "0"))
    def ldK(b, joff):
        if A_NOLDS and inloop[0]: return
        e(f"ds_read_b128 {vr(KV(b),4)}, v{aK1} offset:{joff*1024}")
        e(f"ds_read_b32 v{KV(b)+4}, v{aK2} offset:{joff*128}")
    def ldV(b, joff):
        if A_NOLDS and inloop[0]: return
        e(f"ds_read_b128 {vr(KV(b)+8,4)}, v{aV} offset:{joff*64}")
        e(f"ds_read_b128 {vr(KV(b)+12,4)}, v{aV} offset:{joff*64+32}")
    def qk1(sb, b, i): return f"v_mfma_f32_32x32x16_bf16 {vr(S(sb),16)}, {vr(KV(b),4)}, {vr(Q1(i),4)}, 0"
    def qk2(sb, b, i): return f"v_mfma_f32_32x32x16_bf16 {vr(S(sb),16)}, {vr(KV(b)+4,4)}, {vr(Q2(i),4)}, {vr(S(sb),16)}"
    def pv(i, b, m): return f"v_mfma_f32_32x32x16_bf16 {vr(O(i),16)}, {vr(KV(b)+8+4*m,4)}, {vr(P+4*m,4)}, {vr(O(i),16)}"
    ldK(0, 0); ldV(0, 0)
    e("s_waitcnt lgkmcnt(0)")
    e(qk1(0, 0, 0)); e(qk2(0, 0, 0))
    e("s_nop 7"); e("s_nop 3")
    UN = int(os.environ.get("A_UN", "4"))
    NIT = 64 // UN
    e(f"s_mov_b32 s15, {NIT}")
    e("s_cmp_eq_u32 s14, 0"); e("s_cselect_b32 s20, -1, 0")
    e.label("A_loop")
    inloop[0] = True
    e("s_and_b32 s19, s15, s20")
    for jj in range(UN):
        b = jj % 2
        for i in range(4):
            n = jj * 4 + i
            sb = n % 2
            i2 = (i + 1) % 4; b2 = b if i < 3 else 1 - b
            ip = (i - 1) % 4; bp = b if i > 0 else 1 - b
            def E(r): e(f"v_exp_f32 v{S(sb)+r}, v{S(sb)+r}")
            def C(k): e(f"v_cvt_pk_bf16_f32 v{P+k}, v{S(sb)+2*k}, v{S(sb)+2*k+1}")
            e(qk1(1 - sb, b2, i2))
            if i == 2: ldV(1 - b, jj + 1)
            E(0); E(1); E(2); E(3)
            e(qk2(1 - sb, b2, i2))
            E(4); E(5); E(6); E(7); C(0); C(1)
            e(pv(ip, bp, 1))
            if i == 1 and jj == UN - 1:
                e(f"s_cmp_lg_u32 s19, {NIT - (16 // UN) + 1}"); e("s_cbranch_scc1 A_nost"); e("s_waitcnt vmcnt(0)"); e("s_barrier"); e.label("A_nost")
            if i == 1: ldK(1 - b, jj + 1)
            if i == 0 and jj == 0 and DEFER:
                e(f"s_cmp_lg_u32 s19, {NIT}"); e("s_cbranch_scc1 A_nodef")
                emit_stage(st1, "A_s1"); wpf()
                e.label("A_nodef")
            E(8); E(9); E(10); E(11); C(2); C(3); E(12); E(13)
            e(pv(i, b, 0))
            E(14); E(15); C(4); C(5); C(6); C(7)
            if i == 2: e("s_waitcnt lgkmcnt(0)")
    e(f"v_add_u32 v{aK1}, {1024*UN}, v{aK1}"); e(f"v_add_u32 v{aK2}, {128*UN}, v{aK2}"); e(f"v_add_u32 v{aV}, {64*UN}, v{aV}")
    e("s_sub_u32 s15, s15, 1"); e("s_cmp_lg_u32 s15, 0"); e("s_cbranch_scc1 A_loop")
    inloop[0] = False
    e("s_nop 1")
    e(pv(3, 1, 1))
    e("s_nop 7"); e("s_nop 3")
    e("s_cmp_lg_u32 s14, 0"); e("s_cbranch_scc1 A_fin")
    e(f"v_mov_b32 v10, {hexf(2.0**-40)}")
    e("s_mov_b64 s[16:17], 0")
    for i in range(4):
        e(f"v_cmp_nge_f32 vcc, v{O(i)+10}, v10"); e("s_nop 1"); e("s_or_b64 s[16:17], s[16:17], vcc")
    e("s_and_b32 s16, s16, -1")
    e("s_cbranch_scc0 A_fin")
    e("s_mov_b32 s14, 1")
    e(f"v_mov_b32 v{aK1}, v2"); e(f"v_add_u32 v{aK2}, 65536, v4")
    for i in range(4):
        e(f"v_mov_b32 v{Q2(i)+1}, 0"); e(f"v_mov_b32 v{O(i)}, 0xff800000")
    e("s_mov_b32 s15, 64")
    e.label("A_max")
    ldK(0, 0); e("s_waitcnt lgkmcnt(0)")
    for i in range(4):
        e(qk1(0, 0, i)); e(qk2(0, 0, i)); e("s_nop 7"); e("s_nop 3")
        for r in range(0, 16, 2): e(f"v_max3_f32 v{O(i)}, v{S(0)+r}, v{S(0)+r+1}, v{O(i)}")
    e(f"v_add_u32 v{aK1}, 1024, v{aK1}"); e(f"v_add_u32 v{aK2}, 128, v{aK2}")
    e("s_sub_u32 s15, s15, 1"); e("s_cmp_lg_u32 s15, 0"); e("s_cbranch_scc1 A_max")
    for i in range(4):
        e(f"v_mov_b32 v8, v{O(i)}"); e(f"v_mov_b32 v9, v{O(i)}"); e("s_nop 1"); e("v_permlane32_swap_b32 v8, v9"); e("s_nop 1")
        e("v_max_f32 v8, v8, v9"); e("v_sub_f32 v8, 0, v8")
        e(f"v_cvt_pk_bf16_f32 v9, v8, v8"); e("v_lshlrev_b32 v9, 16, v9"); e("v_sub_f32 v9, v8, v9")
        e(f"v_cvt_pk_bf16_f32 v9, v8, v9")
        e(f"v_cndmask_b32 v{Q2(i)+1}, 0, v9, s[12:13]")
    e("s_branch A_run")
    e.label("A_fin")
    stamp(e, 5)
    e("s_lshl_b32 s8, s6, 5"); e("s_lshl_b32 s9, s3, 2"); e("s_add_u32 s8, s8, s9"); e("s_lshl_b32 s8, s8, 10"); e(f"s_add_u32 s8, s8, {WS_O1}")
    e("s_lshl_b32 s9, s6, 12"); e("s_lshr_b32 s10, s3, 1"); e("s_lshl_b32 s10, s10, 10"); e("s_add_u32 s9, s9, s10")
    e("s_and_b32 s10, s3, 1"); e("s_lshl_b32 s10, s10, 9"); e("s_add_u32 s9, s9, s10"); e(f"s_add_u32 s9, s9, {WS_O2}")
    e("v_lshlrev_b32 v10, 4, v3")
    for i in range(4):
        e(f"v_mov_b32 v8, v{O(i)+10}"); e(f"v_mov_b32 v9, v{O(i)+10}"); e("s_nop 1"); e("v_permlane32_swap_b32 v8, v9"); e("s_nop 1")
        e("v_rcp_f32 v8, v8"); e("s_nop 0")
        for r in range(10): e(f"v_mul_f32 v{O(i)+r}, v8, v{O(i)+r}")
        for k in range(5): e(f"v_cvt_pk_bf16_f32 v{188+k}, v{O(i)+2*k}, v{O(i)+2*k+1}")
        e(f"buffer_store_dwordx4 {vr(188,4)}, v2, s[24:27], s8 offen offset:{i*1024}")
        e("s_mov_b32 exec_hi, 0")
        e(f"buffer_store_dword v192, v10, s[24:27], s9 offen offset:{i*4}")
        e("s_mov_b32 exec_hi, -1")
        e("s_nop 1")
    if PROF:
        e("s_waitcnt vmcnt(0)"); stamp(e, 6); stamp_rt(e, 7); stamp_flush(e, 0, 58)
    e("s_endpgm")


def gen_fusedK(e, roles):
    K = "main_kernel"
    kernel_head(e, K)
    e("s_cmp_ge_u32 s2, 256"); e("s_cbranch_scc1 MK_end")
    stamp_rt(e, 0); stamp(e, 1)
    e("s_load_dwordx4 s[40:43], s[0:1], 0")
    e("s_load_dwordx4 s[44:47], s[0:1], 16")
    e("s_load_dwordx4 s[52:55], s[0:1], 48")
    e("s_load_dwordx2 s[56:57], s[0:1], 64")
    e("s_load_dwordx2 s[48:49], s[0:1], 80")
    e("s_load_dwordx4 s[64:67], s[0:1], 96")
    e("s_and_b32 s3, s2, 7"); e("s_lshr_b32 s4, s2, 3")
    e("v_lshrrev_b32 v2, 6, v0"); e("v_and_b32 v1, 63, v0"); e("s_nop 0"); e("v_readfirstlane_b32 s5, v2")
    e("s_cmp_ge_u32 s4, 16")
    e("s_cbranch_scc1 MK_role")
    e("s_lshr_b32 s6, s3, 1"); e("s_and_b32 s7, s3, 1"); e("s_and_b32 s8, s4, 3"); e("s_lshr_b32 s9, s4, 2")
    e("s_lshl_b32 s6, s6, 2"); e("s_add_u32 s4, s6, s8"); e("s_lshl_b32 s7, s7, 2"); e("s_add_u32 s3, s7, s9")
    e.label("MK_role")
    e("s_waitcnt lgkmcnt(0)")
    e("s_mov_b64 s[58:59], s[66:67]")
    srd(e, 24, 58, WS_END); srd(e, 28, 52, 576 * 9216); srd(e, 32, 56, 4608 * 1152); srd(e, 36, 54, 9216); srd(e, 60, 64, 256)
    srd(e, 12, 42, 576 * 1152); srd(e, 20, 48, 1152)
    e("s_cmp_eq_u32 s3, 0"); e("s_cselect_b32 s50, s44, s46"); e("s_cselect_b32 s51, s45, s47")
    srd(e, 16, 50, 576 * 36)
    srd(e, 64, 40, 2048 * 1152)
    e("s_lshr_b32 s7, s2, 3"); e("s_cmp_ge_u32 s7, 16")
    if roles == "attn": e("s_cbranch_scc0 MK_end"); e("s_branch A_start")
    elif roles == "mlp": e("s_cbranch_scc1 MK_end")
    else: e("s_cbranch_scc1 A_start")
    gen_mlp4.gen_mlp4(e, xdma, xfrag_addr, coop)
    gen_attn_f(e)
    e.label("MK_end"); e("s_endpgm")
    return kernel_desc(K, 512, 100, 256)
def add(body, descs, launches, which):
    roles = "both"
    if which in ("attn", "mlp"): roles = which
    descs.append(gen_fusedK(body, roles)); launches.append(f"; @launch kernel=main_kernel grid=(256,1,1) block=(256,1,1) lds={LDS_MAIN}")
    import gen_final
    gen_final.add(body, descs, launches)
```

```python
import math, sys
from gen import *

import os
PRERED = int(os.environ.get('PRERED', '0'))
LDS_MAIN = 73728 + 20 * 4112 + 64
X_NODMA = int(os.environ.get("X_NODMA", "0")); X_NOGELU = int(os.environ.get("X_NOGELU", "0")); X_NOBAR = int(os.environ.get("X_NOBAR", "0")); X_NOLDS = int(os.environ.get("X_NOLDS", "0"))
X_D = int(os.environ.get("X_D", "5")); X_NP1 = int(os.environ.get("X_NP1", "9"))

def gen_attn(e):
    Q1 = lambda i: 16 + 8 * i
    Q2 = lambda i: 20 + 8 * i
    O = lambda i: 48 + 16 * i
    S = lambda b: 112 + 16 * b
    P = 144
    KV = lambda b: 152 + 16 * b
    aK1, aK2, aV = 184, 185, 186
    e.label("A_start")
    e("s_sub_u32 s4, s4, 16")
    e("v_lshlrev_b32 v2, 4, v1")
    e("v_and_b32 v3, 31, v1"); e("v_lshlrev_b32 v4, 2, v3")
    e("v_lshrrev_b32 v5, 5, v1")
    e("s_lshl_b32 s6, s3, 2"); e("s_add_u32 s6, s6, s5")
    e("s_lshl_b32 s7, s6, 6"); e("s_lshl_b32 s8, s4, 2"); e("s_add_u32 s7, s7, s8")
    e("s_lshl_b32 s9, s7, 10"); e(f"s_add_u32 s9, s9, {WS_Q1}")
    e("s_lshl_b32 s10, s7, 7"); e(f"s_add_u32 s10, s10, {WS_Q2}")
    for i in range(4):
        e(f"buffer_load_dwordx4 {vr(Q1(i),4)}, v2, s[24:27], s9 offen offset:{i*1024}")
        e(f"buffer_load_dword v{Q2(i)}, v4, s[24:27], s10 offen offset:{i*128}")
    e("v_lshlrev_b32 v6, 2, v1")
    e(f"s_mov_b32 s11, {WS_KN}")
    e("buffer_load_dword v7, v6, s[24:27], s11 offen")
    st0 = [u * 1024 for u in range(16)] + [65536 + u * 1024 for u in range(8)] + [73728 + d * VROW for d in range(19)]
    st1 = [u * 1024 for u in range(16, 64)] + [73728 + d * VROW + q * 1024 for q in range(1, 4) for d in range(19)]
    def emit_stage(lst, name):
        n = len(lst)
        for w in range(4):
            e(f"s_cmp_lg_u32 s5, {w}"); e(f"s_cbranch_scc1 {name}_n{w}")
            for off in lst[w::4]:
                e(f"s_mov_b32 m0, {off}"); e(f"s_mov_b32 s7, {WS_K1 + off}")
                e("buffer_load_dwordx4 v2, s[24:27], s7 offen lds")
            for _ in range(len(lst[0::4]) - len(lst[w::4])):
                off = lst[w]
                e(f"s_mov_b32 m0, {off}"); e(f"s_mov_b32 s7, {WS_K1 + off}")
                e("buffer_load_dwordx4 v2, s[24:27], s7 offen lds")
            e.label(f"{name}_n{w}")
        return len(lst[0::4])
    n0 = emit_stage(st0, "A_s0")
    DEFER = int(os.environ.get("A_DEFER", "1"))
    def wpf():
        e("s_lshl_b32 s16, s4, 3"); e("s_add_u32 s16, s16, s3"); e("s_lshl_b32 s16, s16, 2"); e("s_add_u32 s16, s16, s5")
        e("v_lshlrev_b32 v201, 7, v1")
        e("s_lshl_b32 s17, s16, 13")
        e(f"s_add_u32 s18, s17, {512*8192}")
        e("buffer_load_dword v204, v201, s[28:31], s17 offen")
        e("buffer_load_dword v205, v201, s[28:31], s18 offen")
        e("buffer_load_dword v206, v201, s[32:35], s17 offen")
        e("buffer_load_dword v207, v201, s[32:35], s18 offen")
    if DEFER: n1 = 0; NPF = 0
    else:
        n1 = emit_stage(st1, "A_s1"); wpf(); NPF = 4
    e("v_mov_b32 v196, 0"); e("v_mov_b32 v197, 0"); e("v_mov_b32 v198, 0"); e("v_mov_b32 v199, 0")
    e("v_lshlrev_b32 v200, 4, v0"); e(f"v_add_u32 v200, {73728 + 19*VROW}, v200")
    e("ds_write_b128 v200, v[196:199]")
    for b in range(2):
        e(f"v_mov_b32 v{KV(b)+5}, 0x3f803f80"); e(f"v_mov_b32 v{KV(b)+6}, 0"); e(f"v_mov_b32 v{KV(b)+7}, 0")
    e(f"s_waitcnt vmcnt({n0 + n1 + NPF})")
    for dpp in ("quad_perm:[1,0,3,2]", "quad_perm:[2,3,0,1]", "row_half_mirror", "row_mirror"):
        e("s_nop 1"); e(f"v_max_f32_dpp v7, v7, v7 {dpp} row_mask:0xf bank_mask:0xf")
    e("ds_swizzle_b32 v8, v7 offset:0x401F"); e("s_waitcnt lgkmcnt(0)"); e("v_max_f32 v7, v7, v8")
    e("v_mov_b32 v8, v7"); e("s_nop 1"); e("v_permlane32_swap_b32 v7, v8"); e("s_nop 1"); e("v_max_f32 v7, v7, v8")
    e("v_cmp_gt_u32 vcc, 32, v1")
    e("s_mov_b64 s[12:13], vcc")
    for i in range(4):
        e(f"v_cndmask_b32 v{Q2(i)}, 0, v{Q2(i)}, s[12:13]")
        e("v_mov_b32 v8, 0")
        for k in range(4): e(f"v_dot2_f32_bf16 v8, v{Q1(i)+k}, v{Q1(i)+k}, v8")
        e(f"v_dot2_f32_bf16 v8, v{Q2(i)}, v{Q2(i)}, v8")
        e("v_mov_b32 v9, v8"); e("s_nop 1"); e("v_permlane32_swap_b32 v8, v9"); e("s_nop 1"); e("v_add_f32 v8, v8, v9")
        e("v_mul_f32 v8, v8, v7"); e("v_sqrt_f32 v8, v8"); e("s_nop 0")
        e(f"v_mul_f32 v8, {hexf(-1.001)}, v8")
        e(f"v_cvt_pk_bf16_f32 v9, v8, v8"); e("v_lshlrev_b32 v9, 16, v9"); e("v_sub_f32 v9, v8, v9")
        e(f"v_cvt_pk_bf16_f32 v9, v8, v9")
        e(f"v_cndmask_b32 v{Q2(i)+1}, 0, v9, s[12:13]")
        e(f"v_mov_b32 v{Q2(i)+2}, 0"); e(f"v_mov_b32 v{Q2(i)+3}, 0")
    e("s_mov_b32 s14, 0")
    e(f"s_waitcnt vmcnt({n1 + NPF}) lgkmcnt(0)")
    stamp(e, 2)
    e("s_barrier")
    stamp(e, 3)
    inloop = [False]
    e.label("A_run")
    for i in range(4):
        for r in range(16): e(f"v_mov_b32 v{O(i)+r}, 0")
    for r in range(8): e(f"v_mov_b32 v{P+r}, 0")
    for r in range(4): e(f"v_mov_b32 v{KV(1)+12+r}, 0")
    e(f"v_mov_b32 v{aK1}, v2"); e(f"v_add_u32 v{aK2}, 65536, v4")
    e(f"v_min_u32 v8, 19, v3"); e(f"v_mul_u32_u24 v8, {VROW}, v8"); e("v_lshlrev_b32 v9, 4, v5"); e("v_add_u32 v8, v8, v9")
    e(f"v_add_u32 v{aV}, 73728, v8")
    A_NOLDS = int(os.environ.get("A_NOLDS", "0"))
    def ldK(b, joff):
        if A_NOLDS and inloop[0]: return
        e(f"ds_read_b128 {vr(KV(b),4)}, v{aK1} offset:{joff*1024}")
        e(f"ds_read_b32 v{KV(b)+4}, v{aK2} offset:{joff*128}")
    def ldV(b, joff):
        if A_NOLDS and inloop[0]: return
        e(f"ds_read_b128 {vr(KV(b)+8,4)}, v{aV} offset:{joff*64}")
        e(f"ds_read_b128 {vr(KV(b)+12,4)}, v{aV} offset:{joff*64+32}")
    def qk1(sb, b, i): return f"v_mfma_f32_32x32x16_bf16 {vr(S(sb),16)}, {vr(KV(b),4)}, {vr(Q1(i),4)}, 0"
    def qk2(sb, b, i): return f"v_mfma_f32_32x32x16_bf16 {vr(S(sb),16)}, {vr(KV(b)+4,4)}, {vr(Q2(i),4)}, {vr(S(sb),16)}"
    def pv(i, b, m): return f"v_mfma_f32_32x32x16_bf16 {vr(O(i),16)}, {vr(KV(b)+8+4*m,4)}, {vr(P+4*m,4)}, {vr(O(i),16)}"
    ldK(0, 0); ldV(0, 0)
    e("s_waitcnt lgkmcnt(0)")
    e(qk1(0, 0, 0)); e(qk2(0, 0, 0))
    e("s_nop 7"); e("s_nop 3")
    UN = int(os.environ.get("A_UN", "4"))
    NIT = 64 // UN
    e(f"s_mov_b32 s15, {NIT}")
    e("s_cmp_eq_u32 s14, 0"); e("s_cselect_b32 s20, -1, 0")
    e.label("A_loop")
    inloop[0] = True
    e("s_and_b32 s19, s15, s20")
    for jj in range(UN):
        b = jj % 2
        for i in range(4):
            n = jj * 4 + i
            sb = n % 2
            i2 = (i + 1) % 4; b2 = b if i < 3 else 1 - b
            ip = (i - 1) % 4; bp = b if i > 0 else 1 - b
            def E(r): e(f"v_exp_f32 v{S(sb)+r}, v{S(sb)+r}")
            def C(k): e(f"v_cvt_pk_bf16_f32 v{P+k}, v{S(sb)+2*k}, v{S(sb)+2*k+1}")
            e(qk1(1 - sb, b2, i2))
            if i == 2: ldV(1 - b, jj + 1)
            E(0); E(1); E(2); E(3)
            e(qk2(1 - sb, b2, i2))
            E(4); E(5); E(6); E(7); C(0); C(1)
            e(pv(ip, bp, 1))
            if i == 1 and jj == UN - 1:
                e(f"s_cmp_lg_u32 s19, {NIT - (16 // UN) + 1}"); e("s_cbranch_scc1 A_nost"); e("s_waitcnt vmcnt(0)"); e("s_barrier"); e.label("A_nost")
            if i == 1: ldK(1 - b, jj + 1)
            if i == 0 and jj == 0 and DEFER:
                e(f"s_cmp_lg_u32 s19, {NIT}"); e("s_cbranch_scc1 A_nodef")
                emit_stage(st1, "A_s1"); wpf()
                e.label("A_nodef")
            E(8); E(9); E(10); E(11); C(2); C(3); E(12); E(13)
            e(pv(i, b, 0))
            E(14); E(15); C(4); C(5); C(6); C(7)
            if i == 2: e("s_waitcnt lgkmcnt(0)")
    e(f"v_add_u32 v{aK1}, {1024*UN}, v{aK1}"); e(f"v_add_u32 v{aK2}, {128*UN}, v{aK2}"); e(f"v_add_u32 v{aV}, {64*UN}, v{aV}")
    e("s_sub_u32 s15, s15, 1"); e("s_cmp_lg_u32 s15, 0"); e("s_cbranch_scc1 A_loop")
    inloop[0] = False
    e("s_nop 1")
    e(pv(3, 1, 1))
    e("s_nop 7"); e("s_nop 3")
    e("s_cmp_lg_u32 s14, 0"); e("s_cbranch_scc1 A_fin")
    e(f"v_mov_b32 v10, {hexf(2.0**-40)}")
    e("s_mov_b64 s[16:17], 0")
    for i in range(4):
        e(f"v_cmp_nge_f32 vcc, v{O(i)+10}, v10"); e("s_nop 1"); e("s_or_b64 s[16:17], s[16:17], vcc")
    e("s_and_b32 s16, s16, -1")
    e("s_cbranch_scc0 A_fin")
    e("s_mov_b32 s14, 1")
    e(f"v_mov_b32 v{aK1}, v2"); e(f"v_add_u32 v{aK2}, 65536, v4")
    for i in range(4):
        e(f"v_mov_b32 v{Q2(i)+1}, 0"); e(f"v_mov_b32 v{O(i)}, 0xff800000")
    e("s_mov_b32 s15, 64")
    e.label("A_max")
    ldK(0, 0); e("s_waitcnt lgkmcnt(0)")
    for i in range(4):
        e(qk1(0, 0, i)); e(qk2(0, 0, i)); e("s_nop 7"); e("s_nop 3")
        for r in range(0, 16, 2): e(f"v_max3_f32 v{O(i)}, v{S(0)+r}, v{S(0)+r+1}, v{O(i)}")
    e(f"v_add_u32 v{aK1}, 1024, v{aK1}"); e(f"v_add_u32 v{aK2}, 128, v{aK2}")
    e("s_sub_u32 s15, s15, 1"); e("s_cmp_lg_u32 s15, 0"); e("s_cbranch_scc1 A_max")
    for i in range(4):
        e(f"v_mov_b32 v8, v{O(i)}"); e(f"v_mov_b32 v9, v{O(i)}"); e("s_nop 1"); e("v_permlane32_swap_b32 v8, v9"); e("s_nop 1")
        e("v_max_f32 v8, v8, v9"); e("v_sub_f32 v8, 0, v8")
        e(f"v_cvt_pk_bf16_f32 v9, v8, v8"); e("v_lshlrev_b32 v9, 16, v9"); e("v_sub_f32 v9, v8, v9")
        e(f"v_cvt_pk_bf16_f32 v9, v8, v9")
        e(f"v_cndmask_b32 v{Q2(i)+1}, 0, v9, s[12:13]")
    e("s_branch A_run")
    e.label("A_fin")
    stamp(e, 4)
    e("s_lshl_b32 s8, s4, 2")
    e("s_lshr_b32 s9, s6, 3"); e("s_lshl_b32 s9, s9, 10")
    e("s_bfe_u32 s10, s6, 0x10002"); e("s_lshl_b32 s10, s10, 9"); e("s_add_u32 s9, s9, s10")
    e("s_and_b32 s10, s6, 3"); e("s_lshl_b32 s10, s10, 2"); e("s_add_u32 s9, s9, s10")
    e(f"s_add_u32 s9, s9, {WS_O2}")
    e("v_lshlrev_b32 v10, 4, v3")
    for i in range(4):
        e(f"v_mov_b32 v8, v{O(i)+10}"); e(f"v_mov_b32 v9, v{O(i)+10}"); e("s_nop 1"); e("v_permlane32_swap_b32 v8, v9"); e("s_nop 1")
        e("v_rcp_f32 v8, v8"); e("s_nop 0")
        for r in range(10): e(f"v_mul_f32 v{O(i)+r}, v8, v{O(i)+r}")
        for k in range(5): e(f"v_cvt_pk_bf16_f32 v{188+k}, v{O(i)+2*k}, v{O(i)+2*k+1}")
        e(f"s_add_u32 s10, s8, {i}"); e("s_lshl_b32 s11, s10, 5"); e("s_add_u32 s11, s11, s6"); e("s_lshl_b32 s11, s11, 10")
        e(f"s_add_u32 s11, s11, {WS_O1}")
        e(f"buffer_store_dwordx4 {vr(188,4)}, v2, s[24:27], s11 offen")
        e("s_lshl_b32 s11, s10, 12"); e("s_add_u32 s11, s11, s9")
        e("s_mov_b32 exec_hi, 0")
        e(f"buffer_store_dword v192, v10, s[24:27], s11 offen")
        e("s_mov_b32 exec_hi, -1")
        e("s_nop 1")
    if PROF:
        e("s_waitcnt vmcnt(0)"); stamp(e, 5); stamp_rt(e, 7); stamp_flush(e, 1, 58)
    e("s_endpgm")

W1B = [0, 36864]; W2B = [73728, 110592]; BIAS = 147456
def gen_mlp(e):
    YF = lambda s: ar(4 * s, 4)
    def ACC(nt): return ar(144 + 16 * nt, 16) if nt < 7 else vr(80 + 16 * (nt - 7), 16)
    S = lambda b: 16 + 16 * b
    P = 48
    NR = 6
    RING = lambda k: 56 + 4 * (k % NR)
    aW1 = [2, 3]; aW2 = [8, 9]; dW1 = [4, 0, 1, 15]; dW2, aB, cC0 = 5, 6, 7
    T = [10, 11, 12, 13, 14]
    e.label("M_start")
    e("s_lshl_b32 s6, s4, 2"); e("s_add_u32 s6, s6, s5")
    e("s_mul_i32 s7, s6, 36864"); e(f"s_add_u32 s7, s7, {WS_Y}" if WS_Y else "s_nop 0")
    e("v_lshlrev_b32 v10, 4, v1")
    e("v_lshlrev_b32 v13, 3, v0")
    e("v_lshlrev_b32 v14, 4, v0")
    e("v_cmp_gt_u32 vcc, 144, v0"); e("s_nop 1"); e("s_mov_b64 s[46:47], vcc")
    tr_lane_addr(e, aW1[0], 1, 11, 12, 8); e(f"v_add_u32 v{aW1[1]}, {W1B[1]}, v{aW1[0]}")
    tr_lane_addr(e, aW2[0], 1, 11, 12, 4); e(f"v_add_u32 v{aW2[1]}, {W2B[1]}, v{aW2[0]}"); e(f"v_add_u32 v{aW2[0]}, {W2B[0]}, v{aW2[0]}")
    e("v_lshrrev_b32 v11, 5, v1"); e("v_lshlrev_b32 v11, 4, v11"); e(f"v_add_u32 v{aB}, {BIAS}, v11")
    e("v_and_b32 v11, 3, v1"); e("v_lshlrev_b32 v11, 4, v11")
    e("v_bfe_u32 v12, v1, 2, 3"); e(f"v_mul_u32_u24 v{dW2}, 1152, v12"); e(f"v_add_u32 v{dW2}, v{dW2}, v11")
    e("v_lshrrev_b32 v12, 5, v1"); e("v_lshlrev_b32 v12, 6, v12"); e(f"v_add_u32 v{dW2}, v{dW2}, v12")
    e("v_lshrrev_b32 v12, 2, v1"); e(f"v_mul_u32_u24 v{dW1[0]}, 9216, v12"); e(f"v_add_u32 v{dW1[0]}, v{dW1[0]}, v11")
    STR1 = 16 * 9216
    e(f"v_add_u32 v{dW1[3]}, {3*(STR1-1024)}, v{dW1[0]}")
    e(f"v_add_u32 v{dW1[2]}, {2*(STR1-1024)}, v{dW1[0]}")
    e(f"v_add_u32 v{dW1[1]}, {1*(STR1-1024)}, v{dW1[0]}")
    e(f"s_mul_i32 s40, s5, {9*STR1}"); e("s_mul_i32 s42, s3, 1152"); e("s_add_u32 s40, s40, s42")
    e(f"s_mul_i32 s41, s3, {576*1152}"); e(f"s_mul_i32 s42, s5, {8*1152}"); e("s_add_u32 s41, s41, s42")
    e("s_mul_i32 s43, s5, 9216")
    def dmaW1(buf, coff):
        out = []
        for ii in range(9):
            q = ii % 4; g = []
            if q == 0:
                g += [f"s_add_u32 m0, s43, {W1B[buf] + ii*1024}", f"s_add_u32 s44, s40, {ii*STR1 + coff}"]
            g.append(f"buffer_load_dwordx4 v{dW1[q]}, s[28:31], s44 offen offset:{q*1024} lds")
            out.append(g)
        return out
    def dmaW2(buf, coff):
        return [[f"s_add_u32 m0, s43, {W2B[buf] + ii*1024}", f"s_add_u32 s45, s41, {ii*128 + coff}", f"buffer_load_dwordx4 v{dW2}, s[32:35], s45 offen lds"] for ii in range(9)]
    def emit_groups(gs):
        for g in gs:
            for x in g: e(x)
    emit_groups(dmaW1(0, 0))
    e("s_mul_i32 s42, s3, 1152")
    e("s_mov_b64 s[50:51], exec"); e("s_mov_b64 exec, s[46:47]")
    e("buffer_load_dwordx2 v[16:17], v13, s[36:39], s42 offen")
    e("s_mov_b64 exec, s[50:51]")
    NY0 = 12
    def yload(s):
        return ([f"s_add_u32 s49, s7, {s*1024}"] if s % 4 == 0 else []) + [f"buffer_load_dwordx4 {YF(s)}, v10, s[24:27], s49 offen offset:{(s%4)*1024}"]
    for s in range(NY0):
        for x in yload(s): e(x)
    e(f"v_mov_b32 v{cC0}, {hexf(GC0)}")
    for nt in range(18):
        for r in range(16):
            if nt < 7: e(f"v_accvgpr_write_b32 a{144+16*nt+r}, 0")
            else: e(f"v_mov_b32 v{80+16*(nt-7)+r}, 0")
    e(f"s_waitcnt vmcnt({NY0})")
    e("s_mov_b64 exec, s[46:47]")
    e("v_and_b32 v19, 0xffff0000, v17"); e("v_lshlrev_b32 v18, 16, v17"); e("v_and_b32 v17, 0xffff0000, v16"); e("v_lshlrev_b32 v16, 16, v16")
    for r in range(16, 20): e(f"v_mul_f32 v{r}, {hexf(KAPPA)}, v{r}")
    e(f"v_add_u32 v14, {BIAS}, v14")
    e("ds_write_b128 v14, v[16:19]")
    e("s_mov_b64 exec, s[50:51]")
    e("s_waitcnt lgkmcnt(0)"); stamp(e, 2); e("s_barrier"); stamp(e, 3)

    def rdX(k, s, buf):
        d = RING(k)
        return [f"ds_read_b64_tr_b16 {vr(d,2)}, v{aW1[buf]} offset:{s*1024}", f"ds_read_b64_tr_b16 {vr(d+2,2)}, v{aW1[buf]} offset:{s*1024+256}"]
    def rdY(k, idx, buf):
        nt, m = idx // 2, idx % 2
        p, u = nt // 2, nt % 2
        d = RING(k)
        return [f"ds_read_b64_tr_b16 {vr(d,2)}, v{aW2[buf]} offset:{((2*m)*9+p)*1024+u*512}", f"ds_read_b64_tr_b16 {vr(d+2,2)}, v{aW2[buf]} offset:{((2*m+1)*9+p)*1024+u*512}"]
    def mfX(k, s, sb): return f"v_mfma_f32_32x32x16_bf16 {vr(S(sb),16)}, {vr(RING(k),4)}, {YF(s)}, {vr(S(sb),16)}"
    def mfY(k, idx):
        nt, m = idx // 2, idx % 2
        return f"v_mfma_f32_32x32x16_bf16 {ACC(nt)}, {vr(RING(k),4)}, {vr(P+4*m,4)}, {ACC(nt)}"
    def gelu(sb, r, t):
        x = S(sb) + r
        return [f"v_fma_f32 v{t}, v{x}, v{x}, v{cC0}", f"v_mul_f32 v{t}, v{x}, v{t}", f"v_exp_f32 v{t}, -v{t}",
                f"v_add_f32 v{t}, 1.0, v{t}", f"v_rcp_f32 v{t}, v{t}", f"v_mul_f32 v{x}, v{x}, v{t}"]
    def gelu_seq(sb, rs, G=3):
        out = []
        sizes = []
        n = len(rs)
        while n > 0:
            g = min(G, n)
            if n - g == 1: g -= 1
            sizes.append(g); n -= g
        g0 = 0
        for g in sizes:
            grp = rs[g0:g0 + g]
            seqs = [gelu(sb, r, T[(g0 + i) % len(T)]) for i, r in enumerate(grp)]
            g0 += g
            for op in range(6):
                for sq in seqs: out.append(sq[op])
        return out
    def bias_rd(sb, coff): return [f"ds_read_b128 {vr(S(sb)+4*q,4)}, v{aB} offset:{coff*128+q*32}" for q in range(4)]
    D = X_D
    class LT:
        def __init__(self): self.q = []
        def issue(self, tag, ins):
            if X_NOLDS and isinstance(tag, tuple): return 0
            for x in ins: e(x); self.q.append(tag)
            return len(ins)
        def wait(self, tag):
            idx = max((i for i, t in enumerate(self.q) if t == tag), default=None)
            if idx is None: return 0
            n = len(self.q) - 1 - idx
            e(f"s_waitcnt lgkmcnt({min(n, 15)})")
            self.q = self.q[idx + 1:] if n <= 15 else self.q[len(self.q) - 15:]
            return 1
    lt = LT()
    def cost(x): return 8 if x.startswith(("v_exp", "v_rcp")) else 4
    WP = 2
    def need(k):
        if k % WP == 0:
            for kk in range(k + WP - 1, k - 1, -1):
                if ("f", kk) in lt.q:
                    return lt.wait(("f", kk))
        return 0
    class Filler:
        def __init__(self, items): self.items = list(items)
        def take(self, budget_cyc, budget_n):
            out = []
            while self.items and budget_n > 0 and cost(self.items[0]) <= budget_cyc:
                x = self.items.pop(0); out.append(x); budget_cyc -= cost(x); budget_n -= 1
            return out
    GAPC, GAPN = 24, 5
    waited_all = [False]
    lt.issue("b0", bias_rd(0, 0))
    for k in range(D): lt.issue(("f", k), rdX(k, k, 0))
    vq = [("y", s) for s in range(NY0)]
    pend = [("y", s, yload(s)) for s in range(NY0, 36)]
    pend += [("w1", i, g) for i, g in enumerate(dmaW1(1, 64))] + [("w2", i, g) for i, g in enumerate(dmaW2(0, 0))]
    def vwait(tag):
        idx = max((i for i, t in enumerate(vq) if t == tag), default=None)
        if idx is None: return
        n = len(vq) - 1 - idx
        e(f"s_waitcnt vmcnt({n})")
        del vq[:idx + 1]
    vwait(("y", 0))
    need(0)
    lt.wait("b0") if "b0" in lt.q else None
    for s in range(36):
        nxt = s + D
        e(mfX(s, s, 0))
        if nxt == 36:
            assert not any(p[0] in ("y", "w1") for p in pend)
            vwait(("w1", 8)); e("s_barrier")
            lt.issue("b1", bias_rd(1, 1))
        lt.issue(("f", nxt), rdX(nxt, nxt, 0) if nxt < 36 else rdX(nxt, nxt - 36, 1))
        for _ in range(2 if s < 30 else 3):
            if pend:
                k_, i_, g_ = pend.pop(0)
                for x in g_: e(x)
                vq.append((k_, i_))
        if s + 1 < 36: vwait(("y", s + 1))
        need(s + 1)
    assert not pend, len(pend)
    e("s_nop 7"); e("s_nop 3")
    NP1 = X_NP1
    for x in gelu_seq(0, list(range(0, NP1))): e(x)
    e("s_barrier")
    emit_groups(dmaW1(0, 128))
    base = [36]
    def phase(kind, par, n0, mf, rd_next, fill, dma, bar_vm, pre_rd=None, start_fill=0):
        b0 = base[0]
        dma = list(dma)
        for i in range(36):
            e(mf(i))
            nxt = i + D
            nins = 0
            if nxt == 36 and bar_vm is not None and not X_NOBAR:
                e(f"s_waitcnt vmcnt({bar_vm})"); e("s_barrier")
            rr = rd_next(nxt)
            if rr: nins += lt.issue(("f", b0 + nxt), rr)
            extra = False
            if pre_rd and i == pre_rd[0]: lt.issue("b", pre_rd[1]); extra = True
            dd = []
            if dma and i % 4 == 1:
                dd = dma.pop(0)
                if X_NODMA: dd = []
                for x in dd: e(x)
            if i >= start_fill and not X_NOGELU and not dd and not extra:
                for x in fill.take(16, 3): e(x)
            if i < 35 or True:
                need(b0 + i + 1)
        base[0] = b0 + 36
        assert not dma
    def block(par, last=False, tail=False, coffW1=None, coffW2=None, boff=None):
        gp2 = gelu_seq(par, list(range(NP1, 16)))
        cv = [f"v_cvt_pk_bf16_f32 v{P+k}, v{S(par)+2*k}, v{S(par)+2*k+1}" for k in range(8)]
        if tail:
            for x in gp2 + cv: e(x)
            e("s_nop 1")
        else:
            f = Filler(gp2 + cv)
            phase("X", par, 0, lambda i: mfX(i, i, 1 - par),
                  lambda j: rdX(j, j, 1 - par) if j < 36 else rdY(j, j - 36, par), f, dmaW2(1 - par, coffW2), 17)
            if not X_NOGELU: assert not f.items, len(f.items)
            first_blk[0] = False
        f = Filler([] if tail else gelu_seq(1 - par, list(range(0, NP1))))
        def rn(j):
            if j < 36: return rdY(j, j, par)
            if tail: return []
            return rdX(j, j - 36, par) if not last else rdY(j, j - 36, 1 - par)
        phase("Y", par, 0, lambda i: mfY(i, i), rn, f,
              [] if (tail or last) else dmaW1(1 - par, coffW1), None if tail else (17 if not last else 0),
              pre_rd=None if (tail or last) else (2, bias_rd(par, boff)), start_fill=3)
        if not X_NOGELU: assert not f.items, len(f.items)
    first_blk = [False]
    stamp(e, 4)
    lt.q = [("f", base[0] + k) for k in range(WP, D) for _ in range(2)]
    e("s_mov_b32 s15, 8")
    e.label("M_loop")
    block(0, coffW1=192, coffW2=32*1152, boff=2)
    block(1, coffW1=256, coffW2=64*1152, boff=3)
    e("s_add_u32 s40, s40, 128"); e(f"s_add_u32 s41, s41, {64*1152}"); e(f"v_add_u32 v{aB}, 256, v{aB}")
    e("s_sub_u32 s15, s15, 1"); e("s_cmp_lg_u32 s15, 0"); e("s_cbranch_scc1 M_loop")
    block(0, last=True, coffW2=32*1152)
    block(1, tail=True)
    e("s_nop 7"); e("s_nop 3")
    stamp(e, 5)
    e("s_lshl_b32 s7, s3, 6"); e("s_add_u32 s7, s7, s6"); e(f"s_mul_i32 s7, s7, {18*2048}"); e(f"s_add_u32 s7, s7, {WS_P}")
    e("v_mbcnt_lo_u32_b32 v10, -1, 0"); e("v_mbcnt_hi_u32_b32 v10, -1, v10"); e("v_lshlrev_b32 v10, 4, v10")
    for nt in range(18):
        base_ = 16 if nt % 2 == 0 else 32
        if nt < 7:
            for r in range(16): e(f"v_accvgpr_read_b32 v{base_+r}, a{144+16*nt+r}")
            src = base_
        else: src = 80 + 16 * (nt - 7)
        pk = 56 if nt % 2 == 0 else 64
        for k in range(8): e(f"v_cvt_pk_bf16_f32 v{pk+k}, v{src+2*k}, v{src+2*k+1}")
        e(f"s_add_u32 s8, s7, {nt*2048}")
        e(f"buffer_store_dwordx4 {vr(pk,4)}, v10, s[24:27], s8 offen" + (" sc1" if PRERED else ""))
        e(f"buffer_store_dwordx4 {vr(pk+4,4)}, v10, s[24:27], s8 offen offset:1024" + (" sc1" if PRERED else ""))
    stamp(e, 6) if False else None
    if PRERED:
        e("s_waitcnt vmcnt(0)"); e("s_barrier")
        e("s_lshl_b32 s9, s4, 4")
        e("v_mov_b32 v11, 0"); e("v_mov_b32 v12, 1")
        e("s_cmp_lg_u32 s5, 0"); e("s_cbranch_scc1 M_nosig")
        e("s_mov_b64 exec, 1")
        e("buffer_atomic_add v12, v11, s[60:63], s9 offen")
        e.label("M_poll")
        e("buffer_load_dword v13, v11, s[60:63], s9 offen sc1")
        e("s_waitcnt vmcnt(0)")
        e("v_readfirstlane_b32 s10, v13"); e("s_nop 3")
        e("s_cmp_ge_u32 s10, 8"); e("s_cbranch_scc1 M_polled")
        e("s_sleep 2"); e("s_branch M_poll")
        e.label("M_polled")
        e("s_mov_b64 exec, -1")
        e.label("M_nosig")
        e("s_barrier")
        e("s_mul_i32 s11, s3, 18"); e("s_add_u32 s11, s11, s5")
        e(f"s_mul_i32 s12, s4, {4*18*2048}")
        e("s_lshl_b32 s13, s11, 10"); e("s_add_u32 s12, s12, s13")
        e(f"s_add_u32 s13, s12, {WS_P}"); e(f"s_add_u32 s14, s12, {WS_B}")
        e("s_mov_b32 s16, 0x3f80"); e("s_mov_b32 s17, 0x3f800000")
        for k in range(5):
            if k == 4: e("s_cmp_ge_u32 s5, 2"); e("s_cbranch_scc1 M_skip5a")
            for sp in range(NSPLIT):
                e(f"s_add_u32 s18, s13, {sp*64*18*2048 + k*4096}")
                e(f"buffer_load_dwordx4 {vr(80+32*k+4*sp,4)}, v10, s[24:27], s18 offen sc1")
            if k == 4: e.label("M_skip5a")
        for k in range(5):
            if k == 4: e("s_cmp_ge_u32 s5, 2"); e("s_cbranch_scc1 M_skip5b")
            if k == 0: e("s_waitcnt vmcnt(0)")
            for sp in range(NSPLIT):
                for j in range(4):
                    src = 80 + 32 * k + 4 * sp + j
                    c0 = "0" if sp == 0 else f"v{16+2*j}"; c1 = "0" if sp == 0 else f"v{17+2*j}"
                    e(f"v_dot2_f32_bf16 v{16+2*j}, v{src}, s16, {c0}"); e(f"v_dot2_f32_bf16 v{17+2*j}, v{src}, s17, {c1}")
            for j in range(4): e(f"v_cvt_pk_bf16_f32 v{24+j+4*(k%2)}, v{16+2*j}, v{17+2*j}")
            e(f"s_add_u32 s18, s14, {k*4096}")
            e(f"buffer_store_dwordx4 {vr(24+4*(k%2),4)}, v10, s[24:27], s18 offen")
            if k == 4: e.label("M_skip5b")
    if PROF:
        e("s_waitcnt vmcnt(0)"); stamp(e, 6); stamp_rt(e, 7); stamp_flush(e, 1, 58)
    e("s_endpgm")

def gen_mainK(e, roles):
    K = "main_kernel"
    kernel_head(e, K)
    e("s_cmp_ge_u32 s2, 256"); e("s_cbranch_scc1 MK_end")
    stamp_rt(e, 0); stamp(e, 1)
    e("s_load_dwordx4 s[52:55], s[0:1], 48")
    e("s_load_dwordx2 s[56:57], s[0:1], 64")
    e("s_load_dwordx2 s[58:59], s[0:1], 104")
    e("s_load_dwordx2 s[64:65], s[0:1], 96")
    e("s_and_b32 s3, s2, 7"); e("s_lshr_b32 s4, s2, 3")
    e("v_lshrrev_b32 v2, 6, v0"); e("v_and_b32 v1, 63, v0"); e("s_nop 0"); e("v_readfirstlane_b32 s5, v2")
    e("s_waitcnt lgkmcnt(0)")
    srd(e, 24, 58, WS_END); srd(e, 28, 52, 576 * 9216); srd(e, 32, 56, 4608 * 1152); srd(e, 36, 54, 9216); srd(e, 60, 64, 256)
    e("s_cmp_ge_u32 s4, 16")
    e("s_cbranch_scc1 MK_role")
    e("s_lshr_b32 s6, s3, 1"); e("s_and_b32 s7, s3, 1"); e("s_and_b32 s8, s4, 3"); e("s_lshr_b32 s9, s4, 2")
    e("s_lshl_b32 s6, s6, 2"); e("s_add_u32 s4, s6, s8"); e("s_lshl_b32 s7, s7, 2"); e("s_add_u32 s3, s7, s9")
    e("s_cmp_ge_u32 s4, 16")
    e.label("MK_role")
    if roles == "attn": e("s_cbranch_scc0 MK_end"); e("s_branch A_start")
    elif roles == "mlp": e("s_cbranch_scc1 MK_end")
    else: e("s_cbranch_scc1 A_start")
    if int(os.environ.get('MLPV', '3')) == 3:
        import gen_mlp3; gen_mlp3.gen_mlp3(e); print('loopchk', gen_mlp3.LOOPCHK, file=sys.stderr)
    else: gen_mlp(e)
    gen_attn(e)
    e.label("MK_end"); e("s_endpgm")
    return kernel_desc(K, 512, 100, 256)

def add(body, descs, launches, which):
    roles = "both"
    if which in ("attn", "mlp"): roles = which
    descs.append(gen_mainK(body, roles)); launches.append(f"; @launch kernel=main_kernel grid=(256,1,1) block=(256,1,1) lds={LDS_MAIN}")
    try:
        import gen_final
        gen_final.add(body, descs, launches)
    except ImportError:
        pass
```

```python
import os, math
from gen import *
X_NODMA = int(os.environ.get("X_NODMA", "0")); X_NOGELU = int(os.environ.get("X_NOGELU", "0"))
ST_SC1 = " sc1" if int(os.environ.get("ST_SC1", "1")) else ""
SLOT = [0, 36864, 73728, 110592]; BIAS = 147456

def gen_mlp3(e):
    YF = lambda s: ar(4 * s, 4)
    NR = 8
    RING = lambda k: 144 + 4 * (k % NR)
    SB = lambda b, u: 16 + 32 * b + 16 * u
    PR = lambda c: 112 + 8 * c
    PK = 80
    T = [96, 97, 98, 99, 100, 101]
    aX = [104, 105, 106, 107]; aY = [108, 109, 110, 111]
    dW1 = [2, 3, 4, 5]; dW2 = [6, 7, 8, 9]; aB, cC0, vL16 = 10, 11, 12
    D = 6
    e.label("M_start")
    e("s_lshl_b32 s6, s4, 2"); e("s_add_u32 s6, s6, s5")
    e("s_mul_i32 s7, s6, 36864"); e(f"s_add_u32 s7, s7, {WS_Y}" if WS_Y else "s_nop 0")
    e(f"v_lshlrev_b32 v{vL16}, 4, v1")
    e("v_lshlrev_b32 v13, 3, v0"); e("v_lshlrev_b32 v14, 4, v0")
    e("v_cmp_gt_u32 vcc, 144, v0"); e("s_nop 1"); e("s_mov_b64 s[46:47], vcc")
    e("v_and_b32 v15, 3, v1"); e("v_lshlrev_b32 v15, 4, v15")
    e("v_lshrrev_b32 v16, 5, v1"); e("v_lshlrev_b32 v16, 6, v16"); e("v_add_u32 v15, v15, v16")
    e("v_bfe_u32 v16, v1, 2, 3")
    e(f"v_mul_u32_u24 v{dW1[0]}, 9216, v16"); e(f"v_add_u32 v{dW1[0]}, v{dW1[0]}, v15")
    e(f"v_mul_u32_u24 v{dW2[0]}, 1152, v16"); e(f"v_add_u32 v{dW2[0]}, v{dW2[0]}, v15")
    S1, S2 = 8 * 9216, 8 * 1152
    for q in range(1, 4):
        e(f"v_add_u32 v{dW1[q]}, {q*(S1-1024)}, v{dW1[0]}"); e(f"v_add_u32 v{dW2[q]}, {q*(S2-1024)}, v{dW2[0]}")
    e("v_lshrrev_b32 v15, 5, v1")
    e("v_bfe_u32 v16, v1, 2, 2"); e("v_lshlrev_b32 v16, 6, v16")
    e("v_bfe_u32 v17, v1, 4, 1"); e("v_lshlrev_b32 v17, 5, v17"); e("v_add_u32 v16, v16, v17")
    e("v_and_b32 v17, 3, v1"); e("v_lshlrev_b32 v17, 3, v17"); e("v_add_u32 v16, v16, v17")
    e("v_lshlrev_b32 v17, 10, v15"); e("v_add_u32 v17, v17, v16")
    e("v_lshlrev_b32 v18, 8, v15"); e("v_add_u32 v18, v18, v16")
    for k in range(4):
        e(f"v_add_u32 v{aX[k]}, {SLOT[k]}, v17"); e(f"v_add_u32 v{aY[k]}, {SLOT[k]}, v18")
    e("v_lshlrev_b32 v15, 4, v15"); e(f"v_add_u32 v{aB}, {BIAS}, v15")
    e(f"v_mov_b32 v{cC0}, {hexf(GC0)}")
    e(f"s_mul_i32 s40, s5, {72*9216}"); e("s_mul_i32 s42, s3, 1152"); e("s_add_u32 s40, s40, s42")
    e(f"s_mul_i32 s41, s3, {576*1152}"); e(f"s_mul_i32 s42, s5, {72*1152}"); e("s_add_u32 s41, s41, s42")
    e("s_mul_i32 s43, s5, 9216")
    vq = []
    def vm_issue(tag, ins):
        for x in ins: e(x)
        vq.append(tag)
    def vm_need(tag):
        idx = max((i for i, t in enumerate(vq) if t == tag), default=None)
        if idx is None: return None
        n = len(vq) - 1 - idx
        del vq[:idx + 1]
        return n
    def dma_groups(phi, ybase=None, solo=False):
        slot = SLOT[phi % 4]; out = []
        t, hh = phi // 2, phi % 2
        for ii in range(9):
            q = 0 if solo else ii % 4; g = []
            if phi < 18:
                if q == 0: g += [f"s_add_u32 m0, s43, {slot + ii*1024}", f"s_add_u32 s44, s40, {hh*288*9216 + ii*S1 + t*128}"]
                g.append(f"buffer_load_dwordx4 v{dW1[q]}, s[28:31], s44 offen offset:{q*1024} lds")
            else:
                np_ = (t - 9) if ybase is None else (t - ybase)
                if q == 0: g += [f"s_add_u32 m0, s43, {slot + ii*1024}", f"s_add_u32 s44, s41, {hh*288*1152 + ii*S2 + np_*128}"]
                g.append(f"buffer_load_dwordx4 v{dW2[q]}, s[32:35], s44 offen offset:{q*1024} lds")
            out.append(g)
        return out
    class LT:
        def __init__(self): self.q = []
        def issue(self, tag, ins):
            for x in ins: e(x); self.q.append(tag)
        def wait(self, tag):
            idx = max((i for i, t in enumerate(self.q) if t == tag), default=None)
            if idx is None: return
            n = len(self.q) - 1 - idx
            e(f"s_waitcnt lgkmcnt({min(n, 15)})")
            self.q = self.q[idx + 1:] if n <= 15 else self.q[len(self.q) - 15:]
    lt = LT()
    def frag_rd(phi, i):
        s, u = i // 2, i % 2
        d = RING(phi * 36 + i)
        if phi < 18:
            a = aX[phi % 4]; o1 = s * 2048 + u * 512; o2 = o1 + 256
        else:
            a = aY[phi % 4]; o1 = s * 2048 + u * 512; o2 = o1 + 1024
        return [f"ds_read_b64_tr_b16 {ar(d,2)}, v{a} offset:{o1}", f"ds_read_b64_tr_b16 {ar(d+2,2)}, v{a} offset:{o2}"]
    def mfma(phi, i):
        t, hh = phi // 2, phi % 2
        s, u = i // 2, i % 2
        ks = 18 * hh + s
        A = ar(RING(phi * 36 + i), 4); Dst = vr(SB(t % 2, u), 16)
        if phi < 18: return f"v_mfma_f32_32x32x16_bf16 {Dst}, {A}, {YF(ks)}, {Dst}"
        B = vr(PR(ks // 2) + 4 * (ks % 2), 4)
        C = "0" if ks == 0 else Dst
        return f"v_mfma_f32_32x32x16_bf16 {Dst}, {A}, {B}, {C}"
    def gelu(x, t):
        return [f"v_fma_f32 v{t}, v{x}, v{x}, v{cC0}", f"v_mul_f32 v{t}, v{x}, v{t}", f"v_exp_f32 v{t}, -v{t}",
                f"v_add_f32 v{t}, 1.0, v{t}", f"v_rcp_f32 v{t}, v{t}", f"v_mul_f32 v{x}, v{x}, v{t}"]
    def gelu_tile(b, u, c):
        out = []
        base = SB(b, u)
        for g0 in (0, 3, 6, 9, 12, 14):
            grp = list(range(g0, g0 + 3)) if g0 < 12 else [g0, g0 + 1]
            seqs = [gelu(base + r, T[(i + (3 if (g0 // 3) % 2 else 0)) % 6]) for i, r in enumerate(grp)]
            for op in range(6):
                for sq in seqs: out.append(sq[op])
        for k in range(8): out.append(f"v_cvt_pk_bf16_f32 v{PR(c)+k}, v{base+2*k}, v{base+2*k+1}")
        return out
    def bias_rd(b, u, c): return [f"ds_read_b128 {vr(SB(b,u)+4*q,4)}, v{aB} offset:{c*128+q*32}" for q in range(4)]
    def cost(x): return 8 if x.startswith(("v_exp", "v_rcp")) else 4
    WP = 2
    def need(gk):
        if gk % WP == 0:
            for kk in range(gk + WP - 1, gk - 1, -1):
                if ("f", kk) in lt.q:
                    lt.wait(("f", kk)); return
    def spread(items, n):
        tot = sum(cost(x) for x in items if isinstance(x, str)) or 1
        out = [[] for _ in range(n)]; acc = 0; g = 0
        for x in items:
            while g < n - 1 and acc >= tot * (g + 1) / n: g += 1
            out[g].append(x); acc += cost(x) if isinstance(x, str) else 4
        return out
    def phase(phi, fills, dma, next_phi, extra=None, ybase=None, pend=None):
        dma = list(dma)
        for i in range(36):
            gk = phi * 36 + i
            e(mfma(phi, i))
            nxt = i + D
            if nxt == 36 and next_phi is not None:
                n = vm_need(("d", next_phi))
                if n is not None: e(f"s_waitcnt vmcnt({n})")
                e("s_barrier")
            if nxt < 36: lt.issue(("f", gk + D), frag_rd(phi, nxt))
            elif next_phi is not None: lt.issue(("f", gk + D), frag_rd(next_phi, nxt - 36))
            if extra and i in extra: extra[i]()
            if dma and i % 4 == 1:
                g = dma.pop(0)
                if not X_NODMA: vm_issue(("d", phi + 3), g)
            if pend:
                pend(i)
            if not X_NOGELU:
                for x in fills[i]:
                    if isinstance(x, tuple): vm_issue(x[0], [x[1]])
                    else: e(x)
            need(gk + 1)
        assert not dma
    emit = lambda gs, tag: [vm_issue(tag, g) for g in gs]
    emit(dma_groups(0), ("d", 0))
    e("s_mul_i32 s42, s3, 1152")
    e("s_mov_b64 s[50:51], exec"); e("s_mov_b64 exec, s[46:47]")
    vm_issue("bias", ["buffer_load_dwordx2 v[16:17], v13, s[36:39], s42 offen"])
    e("s_mov_b64 exec, s[50:51]")
    def yload(s): return ([f"s_add_u32 s49, s7, {s*1024}"] if s % 4 == 0 else []) + [f"buffer_load_dwordx4 {YF(s)}, v{vL16}, s[24:27], s49 offen offset:{(s%4)*1024}"]
    NY0 = 10
    for s in range(NY0): vm_issue(("y", s), yload(s))
    n = vm_need("bias"); e(f"s_waitcnt vmcnt({n})")
    e("s_mov_b64 exec, s[46:47]")
    e("v_and_b32 v19, 0xffff0000, v17"); e("v_lshlrev_b32 v18, 16, v17"); e("v_and_b32 v17, 0xffff0000, v16"); e("v_lshlrev_b32 v16, 16, v16")
    for r in range(16, 20): e(f"v_mul_f32 v{r}, {hexf(KAPPA)}, v{r}")
    e(f"v_add_u32 v14, {BIAS}, v14")
    e("ds_write_b128 v14, v[16:19]")
    e("s_mov_b64 exec, s[50:51]")
    e("s_waitcnt lgkmcnt(0)"); stamp(e, 2); e("s_barrier"); stamp(e, 3)
    lt.issue("b", bias_rd(0, 0, 0) + bias_rd(0, 1, 1))
    for k in range(D): lt.issue(("f", k), frag_rd(0, k))
    lt.wait("b")
    pendq = [(("y", s), yload(s)) for s in range(NY0, 36)]
    d1 = dma_groups(1, solo=True); d2 = dma_groups(2, solo=True)
    pendq = pendq[:10] + [(("d", 1), g) for g in d1] + pendq[10:] + [(("d", 2), g) for g in d2]
    def pend_fn(phi):
        def f(i):
            for _ in range(2):
                if pendq:
                    tag, g = pendq.pop(0); vm_issue(tag, g)
            j = i + 1
            if j < 36: ks = 18 * (phi % 2) + j // 2
            else: ks = 18 if phi == 0 else None
            if ks is not None and phi < 2:
                if any(t == ("y", ks) for t, _ in pendq):
                    while any(t == ("y", ks) for t, _ in pendq):
                        tag, g = pendq.pop(0); vm_issue(tag, g)
                n = vm_need(("y", ks))
                if n is not None: e(f"s_waitcnt vmcnt({n})")
        return f
    n = vm_need(("y", 0)); e(f"s_waitcnt vmcnt({n})")
    need(0)
    empty = [[] for _ in range(36)]
    for t in range(9):
        fl = []
        if t > 0:
            fl = gelu_tile(1 - t % 2, 0, 2 * (t - 1)) + gelu_tile(1 - t % 2, 1, 2 * (t - 1) + 1)
        buckets = [[] for _ in range(72)]
        if fl:
            sp = spread(fl, 62)
            for i in range(62): buckets[3 + i] = sp[i]
        for hh in range(2):
            phi = 2 * t + hh
            extra = {}
            if hh == 1 and t < 8:
                extra[30] = (lambda tt=t: lt.issue("b", bias_rd((tt + 1) % 2, 0, 2 * (tt + 1)) + bias_rd((tt + 1) % 2, 1, 2 * (tt + 1) + 1)))
            dm = dma_groups(phi + 3, solo=(phi < 2))
            phase(phi, buckets[36 * hh: 36 * hh + 36], dm if True else [], phi + 1, extra, pend=pend_fn(phi) if phi < 2 else None)
        if t == 0:
            assert not pendq, len(pendq)
            stamp(e, 4)
    def epi(b, np_imm):
        out = []
        for u in range(2):
            base = SB(b, u)
            for k in range(8): out.append(f"v_cvt_pk_bf16_f32 v{PK+8*u+k}, v{base+2*k}, v{base+2*k+1}")
            out.append((("s", 0), f"buffer_store_dwordx4 {vr(PK+8*u,4)}, v{vL16}, s[24:27], s52 offen offset:{u*2048}{ST_SC1}"))
            out.append((("s", 0), f"buffer_store_dwordx4 {vr(PK+8*u+4,4)}, v{vL16}, s[24:27], s52 offen offset:{u*2048+1024}{ST_SC1}"))
        return out
    e("s_lshl_b32 s52, s3, 6"); e("s_add_u32 s52, s52, s6"); e(f"s_mul_i32 s52, s52, {18*2048}"); e(f"s_add_u32 s52, s52, {WS_P}")
    def ystep(t, first=False, ybase=9, last=False):
        if first:
            fl = gelu_tile(1 - t % 2, 0, 16) + gelu_tile(1 - t % 2, 1, 17)
            sp = spread(fl, 56); buckets = [[] for _ in range(72)]
            for i in range(56): buckets[3 + i] = sp[i]
        else:
            fl = epi(1 - t % 2, 0)
            buckets = [[] for _ in range(72)]
            pos = 3
            for x in fl:
                while pos % 4 == 1: pos += 1
                buckets[pos].append(x)
                if len(buckets[pos]) >= 2 or isinstance(x, tuple): pos += 1
            buckets[pos + 1].append("s_add_u32 s52, s52, 4096")
        for hh in range(2):
            phi = 2 * t + hh
            nphi = phi + 1
            phase(phi, buckets[36 * hh: 36 * hh + 36], [] if (last and phi + 3 >= 36) else dma_groups(phi + 3, ybase), None if phi == 35 else nphi)
    ystep(9, first=True)
    e("s_mov_b32 s15, 3")
    vq_save = list(vq); lq_save = [(t[0], t[1] - 20 * 36) if isinstance(t, tuple) else t for t in lt.q]
    e.label("M_loop")
    ystep(10); ystep(11)
    vq_n = [(t[0], t[1] - 4) if t[0] == "d" else t for t in vq]
    lq_n = [(t[0], t[1] - 24 * 36) if isinstance(t, tuple) else t for t in lt.q]
    assert lq_n == lq_save, (lq_n, lq_save)
    e("s_add_u32 s41, s41, 256")
    e("s_sub_u32 s15, s15, 1"); e("s_cmp_lg_u32 s15, 0"); e("s_cbranch_scc1 M_loop")
    LOOPCHK.append((vq_save, vq_n))
    for i, tg in enumerate(vq):
        if tg[0] == "d": vq[i] = ("d", tg[1] + 8)
    lt.q[:] = [(tg[0], tg[1] + 8 * 36) if isinstance(tg, tuple) else tg for tg in lt.q]
    ystep(16, ybase=15, last=True); ystep(17, ybase=15, last=True)
    e("s_nop 7"); e("s_nop 3")
    stamp(e, 5)
    for x in epi(1, 0):
        if isinstance(x, tuple): e("s_nop 0"); e(x[1])
        else: e(x)
    if PROF:
        e("s_waitcnt vmcnt(0)"); stamp(e, 6); stamp_rt(e, 7); stamp_flush(e, 1, 58)
    e("s_endpgm")
LOOPCHK = []
```

```python
import os, math
from gen import *
X_NODMA = int(os.environ.get("X_NODMA", "0")); X_NOGELU = int(os.environ.get("X_NOGELU", "0"))
ST_SC1 = " sc1" if int(os.environ.get("ST_SC1", "1")) else ""
SLOT = [0, 36864, 73728, 110592]; BIAS = 147456

GWL = BIAS + 2304
def gen_mlp4(e, xdma, xfrag_addr, coop):
    YF = lambda s: ar(4 * s, 4)
    NR = 8
    RING = lambda k: 144 + 4 * (k % NR)
    SB = lambda b, u: 16 + 32 * b + 16 * u
    PR = lambda c: 112 + 8 * c
    PK = 80
    T = [96, 97, 98, 99, 100, 101]
    aX = [104, 105, 106, 107]; aY = [108, 109, 110, 111]
    dW1 = [2, 3, 4, 5]; dW2 = [6, 7, 8, 9]; aB, cC0, vL16 = 10, 11, 12
    D = 6
    e.label("M_start")
    e("s_lshl_b32 s6, s4, 2"); e("s_add_u32 s6, s6, s5")
    e(f"v_lshlrev_b32 v{vL16}, 4, v1")
    e("v_lshlrev_b32 v13, 3, v0"); e("v_lshlrev_b32 v14, 4, v0")
    e("v_cmp_gt_u32 vcc, 144, v0"); e("s_nop 1"); e("s_mov_b64 s[46:47], vcc")
    e("v_and_b32 v74, 31, v1"); e("v_lshrrev_b32 v75, 5, v1")
    xdma(e, 40)
    e("v_and_b32 v15, 3, v1"); e("v_lshlrev_b32 v15, 4, v15")
    e("v_lshrrev_b32 v16, 5, v1"); e("v_lshlrev_b32 v16, 6, v16"); e("v_add_u32 v15, v15, v16")
    e("v_bfe_u32 v16, v1, 2, 3")
    e(f"v_mul_u32_u24 v{dW1[0]}, 9216, v16"); e(f"v_add_u32 v{dW1[0]}, v{dW1[0]}, v15")
    e(f"v_mul_u32_u24 v{dW2[0]}, 1152, v16"); e(f"v_add_u32 v{dW2[0]}, v{dW2[0]}, v15")
    S1, S2 = 8 * 9216, 8 * 1152
    for q in range(1, 4):
        e(f"v_add_u32 v{dW1[q]}, {q*(S1-1024)}, v{dW1[0]}"); e(f"v_add_u32 v{dW2[q]}, {q*(S2-1024)}, v{dW2[0]}")
    e("v_lshrrev_b32 v15, 5, v1")
    e("v_bfe_u32 v16, v1, 2, 2"); e("v_lshlrev_b32 v16, 6, v16")
    e("v_bfe_u32 v17, v1, 4, 1"); e("v_lshlrev_b32 v17, 5, v17"); e("v_add_u32 v16, v16, v17")
    e("v_and_b32 v17, 3, v1"); e("v_lshlrev_b32 v17, 3, v17"); e("v_add_u32 v16, v16, v17")
    e("v_lshlrev_b32 v17, 10, v15"); e("v_add_u32 v17, v17, v16")
    e("v_lshlrev_b32 v18, 8, v15"); e("v_add_u32 v18, v18, v16")
    for k in range(4):
        e(f"v_add_u32 v{aX[k]}, {SLOT[k]}, v17"); e(f"v_add_u32 v{aY[k]}, {SLOT[k]}, v18")
    e("v_lshlrev_b32 v15, 4, v15"); e(f"v_add_u32 v{aB}, {BIAS}, v15")
    e(f"v_mov_b32 v{cC0}, {hexf(GC0)}")
    e(f"s_mul_i32 s40, s5, {72*9216}"); e("s_mul_i32 s42, s3, 1152"); e("s_add_u32 s40, s40, s42")
    e(f"s_mul_i32 s41, s3, {576*1152}"); e(f"s_mul_i32 s42, s5, {72*1152}"); e("s_add_u32 s41, s41, s42")
    e("s_mul_i32 s43, s5, 9216")
    vq = []
    def vm_issue(tag, ins):
        for x in ins: e(x)
        vq.append(tag)
    def vm_need(tag):
        idx = max((i for i, t in enumerate(vq) if t == tag), default=None)
        if idx is None: return None
        n = len(vq) - 1 - idx
        del vq[:idx + 1]
        return n
    def dma_groups(phi, ybase=None, solo=False):
        slot = SLOT[phi % 4]; out = []
        t, hh = phi // 2, phi % 2
        for ii in range(9):
            q = 0 if solo else ii % 4; g = []
            if phi < 18:
                if q == 0: g += [f"s_add_u32 m0, s43, {slot + ii*1024}", f"s_add_u32 s44, s40, {hh*288*9216 + ii*S1 + t*128}"]
                g.append(f"buffer_load_dwordx4 v{dW1[q]}, s[28:31], s44 offen offset:{q*1024} lds")
            else:
                np_ = (t - 9) if ybase is None else (t - ybase)
                if q == 0: g += [f"s_add_u32 m0, s43, {slot + ii*1024}", f"s_add_u32 s44, s41, {hh*288*1152 + ii*S2 + np_*128}"]
                g.append(f"buffer_load_dwordx4 v{dW2[q]}, s[32:35], s44 offen offset:{q*1024} lds")
            out.append(g)
        return out
    class LT:
        def __init__(self): self.q = []
        def issue(self, tag, ins):
            for x in ins: e(x); self.q.append(tag)
        def wait(self, tag):
            idx = max((i for i, t in enumerate(self.q) if t == tag), default=None)
            if idx is None: return
            n = len(self.q) - 1 - idx
            e(f"s_waitcnt lgkmcnt({min(n, 15)})")
            self.q = self.q[idx + 1:] if n <= 15 else self.q[len(self.q) - 15:]
    lt = LT()
    def frag_rd(phi, i):
        s, u = i // 2, i % 2
        d = RING(phi * 36 + i)
        if phi < 18:
            a = aX[phi % 4]; o1 = s * 2048 + u * 512; o2 = o1 + 256
        else:
            a = aY[phi % 4]; o1 = s * 2048 + u * 512; o2 = o1 + 1024
        return [f"ds_read_b64_tr_b16 {ar(d,2)}, v{a} offset:{o1}", f"ds_read_b64_tr_b16 {ar(d+2,2)}, v{a} offset:{o2}"]
    def mfma(phi, i):
        t, hh = phi // 2, phi % 2
        s, u = i // 2, i % 2
        ks = 18 * hh + s
        A = ar(RING(phi * 36 + i), 4); Dst = vr(SB(t % 2, u), 16)
        if phi < 18: return f"v_mfma_f32_32x32x16_bf16 {Dst}, {A}, {YF(ks)}, {Dst}"
        B = vr(PR(ks // 2) + 4 * (ks % 2), 4)
        C = "0" if ks == 0 else Dst
        return f"v_mfma_f32_32x32x16_bf16 {Dst}, {A}, {B}, {C}"
    def gelu(x, t):
        return [f"v_fma_f32 v{t}, v{x}, v{x}, v{cC0}", f"v_mul_f32 v{t}, v{x}, v{t}", f"v_exp_f32 v{t}, -v{t}",
                f"v_add_f32 v{t}, 1.0, v{t}", f"v_rcp_f32 v{t}, v{t}", f"v_mul_f32 v{x}, v{x}, v{t}"]
    def gelu_tile(b, u, c):
        out = []
        base = SB(b, u)
        for g0 in (0, 3, 6, 9, 12, 14):
            grp = list(range(g0, g0 + 3)) if g0 < 12 else [g0, g0 + 1]
            seqs = [gelu(base + r, T[(i + (3 if (g0 // 3) % 2 else 0)) % 6]) for i, r in enumerate(grp)]
            for op in range(6):
                for sq in seqs: out.append(sq[op])
        for k in range(8): out.append(f"v_cvt_pk_bf16_f32 v{PR(c)+k}, v{base+2*k}, v{base+2*k+1}")
        return out
    def bias_rd(b, u, c): return [f"ds_read_b128 {vr(SB(b,u)+4*q,4)}, v{aB} offset:{c*128+q*32}" for q in range(4)]
    def cost(x): return 8 if x.startswith(("v_exp", "v_rcp")) else 4
    WP = 2
    def need(gk):
        if gk % WP == 0:
            for kk in range(gk + WP - 1, gk - 1, -1):
                if ("f", kk) in lt.q:
                    lt.wait(("f", kk)); return
    def spread(items, n):
        tot = sum(cost(x) for x in items if isinstance(x, str)) or 1
        out = [[] for _ in range(n)]; acc = 0; g = 0
        for x in items:
            while g < n - 1 and acc >= tot * (g + 1) / n: g += 1
            out[g].append(x); acc += cost(x) if isinstance(x, str) else 4
        return out
    def phase(phi, fills, dma, next_phi, extra=None, ybase=None, pend=None):
        dma = list(dma)
        for i in range(36):
            gk = phi * 36 + i
            e(mfma(phi, i))
            nxt = i + D
            if nxt == 36 and next_phi is not None:
                n = vm_need(("d", next_phi))
                if n is not None: e(f"s_waitcnt vmcnt({n})")
                e("s_barrier")
            if nxt < 36: lt.issue(("f", gk + D), frag_rd(phi, nxt))
            elif next_phi is not None: lt.issue(("f", gk + D), frag_rd(next_phi, nxt - 36))
            if extra and i in extra: extra[i]()
            if dma and i % 4 == 1:
                g = dma.pop(0)
                if not X_NODMA: vm_issue(("d", phi + 3), g)
            if pend:
                pend(i)
            if not X_NOGELU:
                for x in fills[i]:
                    if isinstance(x, tuple): vm_issue(x[0], [x[1]])
                    else: e(x)
            need(gk + 1)
        assert not dma
    XR = 112
    vq.extend([("x", 0)] * 36)
    e("s_mul_i32 s42, s3, 1152")
    e("s_mov_b64 s[50:51], exec"); e("s_mov_b64 exec, s[46:47]")
    vm_issue("bias", ["buffer_load_dwordx2 v[60:61], v13, s[36:39], s42 offen"])
    e("s_mov_b64 exec, s[50:51]")
    e("v_cmp_gt_u32 vcc, 72, v0"); e("s_nop 1"); e("s_mov_b64 s[54:55], vcc"); e("s_mov_b64 exec, s[54:55]")
    vm_issue("gw", ["buffer_load_dwordx4 v[64:67], v14, s[20:23], 0 offen"])
    e("s_mov_b64 exec, s[50:51]")
    for k in range(6):
        vm_issue("kv", [f"s_mov_b32 s44, {k*4096}", f"buffer_load_dwordx4 {vr(24+4*k,4)}, v14, s[16:19], s44 offen"])
    coop(e, 48); vq.extend(["pf", "pf"])
    xfrag_addr(e, 68, 72)
    e("s_cmp_ge_u32 s3, 2"); e("s_cbranch_scc1 M_nokv0")
    e("s_mov_b32 s53, 58255")
    for k in range(6):
        for j in range(4):
            ad = 88 + 4 * k + j if 4 * k + j < 16 else 16 + (4 * k + j - 16)
            e(f"v_lshlrev_b32 v76, 2, v0"); e(f"v_add_u32 v76, {k*1024 + j}, v76")
            e("v_mul_lo_u32 v77, v76, s53"); e("v_lshrrev_b32 v77, 19, v77")
            e("v_mul_u32_u24 v83, 9, v77"); e("v_sub_u32 v76, v76, v83")
            e("v_lshlrev_b32 v77, 6, v77"); e("v_lshlrev_b32 v76, 2, v76"); e("v_add_u32 v76, v76, v77")
            e(f"v_add_u32 v{ad}, {SLOT[3]}, v76")
    e.label("M_nokv0")
    n = vm_need(("x", 0)); e(f"s_waitcnt vmcnt({n})")
    for s_ in range(36): e(f"ds_read_b128 {vr(XR+4*s_,4)}, v{68+s_%4} offset:{(s_//4)*128}")
    n = vm_need("kv"); e(f"s_waitcnt vmcnt({n}) lgkmcnt(0)"); stamp(e, 2); e("s_barrier")
    pend = [(("d", ph), g) for ph in range(3) for g in dma_groups(ph, solo=True)]
    e("s_mov_b64 exec, s[46:47]")
    e("v_and_b32 v63, 0xffff0000, v61"); e("v_lshlrev_b32 v62, 16, v61"); e("v_and_b32 v61, 0xffff0000, v60"); e("v_lshlrev_b32 v60, 16, v60")
    for r in range(60, 64): e(f"v_mul_f32 v{r}, {hexf(KAPPA)}, v{r}")
    e(f"v_add_u32 v76, {BIAS}, v14"); e("ds_write_b128 v76, v[60:63]")
    e("s_mov_b64 exec, s[54:55]"); e(f"v_add_u32 v76, {GWL}, v14"); e("ds_write_b128 v76, v[64:67]")
    e("s_mov_b64 exec, s[50:51]")
    e("s_cmp_ge_u32 s3, 2"); e("s_cbranch_scc1 M_nokv2")
    for k in range(6):
        if k == 5:
            e("s_cmp_lg_u32 s5, 0"); e("s_cbranch_scc1 M_kvw5"); e("s_mov_b64 exec, 0xffff")
        for j in range(4):
            ad = 88 + 4 * k + j if 4 * k + j < 16 else 16 + (4 * k + j - 16)
            e(f"ds_write_b32 v{ad}, v{24+4*k+j}")
        if k == 5:
            e("s_mov_b64 exec, -1"); e.label("M_kvw5")
    e("s_waitcnt lgkmcnt(0)"); e("s_barrier")
    tr_lane_addr(e, 83, 1, 84, 85, 8); e(f"v_add_u32 v83, {SLOT[3]}, v83")
    RSK = [84, 88, 92, 96, 100, 16]
    def rdk(s_):
        d = RSK[s_ % 6]
        e(f"ds_read_b64_tr_b16 {vr(d,2)}, v83 offset:{s_*1024}"); e(f"ds_read_b64_tr_b16 {vr(d+2,2)}, v83 offset:{s_*1024+256}")
    DK = 24
    e("s_cmp_eq_u32 s3, 1"); e("s_cbranch_scc1 M_V")
    for variant in ("K", "V"):
        if variant == "V": e.label("M_V")
        for s_ in range(5): rdk(s_)
        for s_ in range(36):
            e(f"s_waitcnt lgkmcnt({2*(min(35, s_+4)-s_)})")
            c0 = "0" if s_ == 0 else vr(DK,16)
            w_ = vr(RSK[s_%6],4); xx = vr(XR+4*s_,4)
            e(f"v_mfma_f32_32x32x16_bf16 {vr(DK,16)}, {w_ if variant=='K' else xx}, {xx if variant=='K' else w_}, {c0}")
            if s_ + 5 < 36: rdk(s_ + 5)
        e("s_nop 7"); e("s_nop 3")
        PKK = 40
        if variant == "K":
            for i in range(5): e(f"v_cvt_pk_bf16_f32 v{PKK+i}, v{DK+2*i}, v{DK+2*i+1}")
            e("s_lshl_b32 s53, s6, 10"); e(f"s_add_u32 s53, s53, {WS_K1}")
            e(f"buffer_store_dwordx4 {vr(PKK,4)}, v{vL16}, s[24:27], s53 offen sc1")
            e("s_lshl_b32 s53, s6, 7"); e(f"s_add_u32 s53, s53, {WS_K2}"); e("v_lshlrev_b32 v48, 2, v74")
            e("s_mov_b32 exec_hi, 0"); e(f"buffer_store_dword v{PKK+4}, v48, s[24:27], s53 offen sc1"); e("s_mov_b32 exec_hi, -1")
            e("v_cmp_gt_u32 vcc, 32, v1"); e("s_nop 1")
            e(f"v_cndmask_b32 v49, 0, v{PKK+4}, vcc"); e("v_mov_b32 v50, 0")
            for i in range(4): e(f"v_dot2_f32_bf16 v50, v{PKK+i}, v{PKK+i}, v50")
            e("v_dot2_f32_bf16 v50, v49, v49, v50")
            e("s_nop 3"); e("v_mov_b32 v51, v50"); e("s_nop 1"); e("v_permlane32_swap_b32 v50, v51"); e("s_nop 1"); e("v_add_f32 v50, v50, v51")
            for dpp in ("quad_perm:[1,0,3,2]", "quad_perm:[2,3,0,1]", "row_half_mirror", "row_mirror"):
                e("s_nop 1"); e(f"v_max_f32_dpp v50, v50, v50 {dpp} row_mask:0xf bank_mask:0xf")
            e("ds_swizzle_b32 v51, v50 offset:0x401F"); e("s_waitcnt lgkmcnt(0)"); e("v_max_f32 v50, v50, v51")
            e("s_lshl_b32 s53, s6, 2"); e(f"s_add_u32 s53, s53, {WS_KN}"); e("v_mov_b32 v51, 0")
            e("s_mov_b64 exec, 1"); e(f"buffer_store_dword v50, v51, s[24:27], s53 offen sc1"); e("s_mov_b64 exec, -1")
            e("s_branch M_kvpub")
        else:
            for i in range(8): e(f"v_cvt_pk_bf16_f32 v{PKK+i}, v{DK+2*i}, v{DK+2*i+1}")
            e("v_cmp_eq_u32 vcc, 18, v74"); e("v_mov_b32 v48, 0x3f803f80"); e("s_nop 0")
            for i in range(8): e(f"v_cndmask_b32 v{PKK+i}, v{PKK+i}, v48, vcc")
            e(f"v_mul_u32_u24 v49, {VROW}, v74"); e("v_lshlrev_b32 v50, 4, v75"); e("v_add_u32 v49, v49, v50")
            e("s_lshl_b32 s53, s6, 6"); e(f"s_add_u32 s53, s53, {WS_V}")
            e("v_cmp_gt_u32 vcc, 19, v74"); e("s_and_saveexec_b64 s[54:55], vcc")
            e(f"buffer_store_dwordx4 {vr(PKK,4)}, v49, s[24:27], s53 offen sc1")
            e(f"buffer_store_dwordx4 {vr(PKK+4,4)}, v49, s[24:27], s53 offen offset:32 sc1")
            e("s_mov_b64 exec, s[54:55]")
    e.label("M_kvpub")
    e("s_waitcnt vmcnt(0)"); e("s_barrier")
    e("s_cmp_lg_u32 s5, 0"); e("s_cbranch_scc1 M_nokv2")
    e("v_mov_b32 v48, 0"); e("v_mov_b32 v49, 1"); e("s_mov_b64 exec, 1")
    e("buffer_atomic_add v49, v48, s[60:63], 0 offen")
    e("s_mov_b64 exec, -1")
    e("s_waitcnt vmcnt(0)")
    e.label("M_nokv2")
    A0, A1, A2 = 78, 79, 80
    e("s_mov_b32 s56, 0x3f803f80")
    e(f"v_mov_b32 v{A0}, 0"); e(f"v_mov_b32 v{A1}, 0"); e(f"v_mov_b32 v81, 0"); e(f"v_mov_b32 v82, 0")
    for i in range(144):
        e(f"v_dot2_f32_bf16 v{A0 if i%2==0 else 81}, v{XR+i}, s56, v{A0 if i%2==0 else 81}")
        e(f"v_dot2_f32_bf16 v{A1 if i%2==0 else 82}, v{XR+i}, v{XR+i}, v{A1 if i%2==0 else 82}")
        if i % 5 == 0 and pend:
            tag, g = pend.pop(0); vm_issue(tag, g)
    assert not pend
    e("s_nop 3")
    e(f"v_add_f32 v{A0}, v{A0}, v81"); e(f"v_add_f32 v{A1}, v{A1}, v82")
    for r in (A0, A1):
        e(f"v_mov_b32 v83, v{r}"); e("s_nop 1"); e(f"v_permlane32_swap_b32 v{r}, v83"); e("s_nop 1"); e(f"v_add_f32 v{r}, v{r}, v83")
    e(f"v_mul_f32 v{A0}, {hexf(1/576)}, v{A0}"); e(f"v_mul_f32 v{A1}, {hexf(1/576)}, v{A1}")
    e(f"v_fma_f32 v{A1}, -v{A0}, v{A0}, v{A1}"); e(f"v_max_f32 v{A1}, 0, v{A1}"); e(f"v_add_f32 v{A1}, {hexf(1e-5)}, v{A1}")
    e(f"v_rsq_f32 v{A1}, v{A1}"); e("s_nop 0"); e(f"v_mul_f32 v{A1}, {hexf(KAPPA)}, v{A1}")
    e(f"v_mul_f32 v{A0}, v{A0}, v{A1}")
    e("s_waitcnt lgkmcnt(0)"); e("s_barrier")
    e("s_cmp_lg_u32 s3, 2"); e("s_cbranch_scc1 M_nogate")
    e("v_lshlrev_b32 v83, 4, v75"); e(f"v_add_u32 v83, {GWL}, v83"); e(f"v_mov_b32 v{A2}, 0")
    for g0 in range(0, 36, 4):
        for k in range(4): e(f"ds_read_b128 {vr(84+4*k,4)}, v83 offset:{(g0+k)*32}")
        e("s_waitcnt lgkmcnt(0)")
        for k in range(4):
            for j in range(4): e(f"v_dot2_f32_bf16 v{A2}, v{XR+4*(g0+k)+j}, v{84+4*k+j}, v{A2}")
    e("s_nop 3"); e(f"v_mov_b32 v83, v{A2}"); e("s_nop 1"); e(f"v_permlane32_swap_b32 v{A2}, v83"); e("s_nop 1"); e(f"v_add_f32 v{A2}, v{A2}, v83")
    e(f"v_mul_f32 v{A2}, {hexf(-math.log2(math.e))}, v{A2}"); e(f"v_exp_f32 v{A2}, v{A2}"); e("s_nop 0")
    e(f"v_add_f32 v{A2}, 1.0, v{A2}"); e(f"v_rcp_f32 v{A2}, v{A2}")
    e("s_lshl_b32 s53, s6, 7"); e(f"s_add_u32 s53, s53, {WS_G}"); e("v_lshlrev_b32 v83, 2, v74")
    e("s_mov_b32 exec_hi, 0"); e(f"buffer_store_dword v{A2}, v83, s[24:27], s53 offen"); e("s_mov_b32 exec_hi, -1")
    e("s_waitcnt vmcnt(0)")
    e.label("M_nogate")
    e(f"v_mov_b32 v84, v{A1}"); e(f"v_mov_b32 v85, v{A1}"); e(f"v_sub_f32 v86, 0, v{A0}"); e(f"v_sub_f32 v87, 0, v{A0}")
    for i in range(144):
        t0 = 16 + 2 * (i % 4)
        e(f"v_lshlrev_b32 v{t0}, 16, v{XR+i}"); e(f"v_and_b32 v{t0+1}, 0xffff0000, v{XR+i}")
        e(f"v_pk_fma_f32 v[{t0}:{t0+1}], v[{t0}:{t0+1}], v[84:85], v[86:87]")
        if i > 0:
            p0 = 16 + 2 * ((i - 1) % 4)
            e(f"v_cvt_pk_bf16_f32 v{p0}, v{p0}, v{p0+1}"); e(f"v_accvgpr_write_b32 a{i-1}, v{p0}")
    p0 = 16 + 2 * (143 % 4)
    e(f"v_cvt_pk_bf16_f32 v{p0}, v{p0}, v{p0+1}"); e(f"v_accvgpr_write_b32 a143, v{p0}")
    if int(os.environ.get("DBG_Y", "0")):
        e("s_mul_i32 s53, s6, 36864")
        for s_ in range(36):
            e(f"s_add_u32 s44, s53, {s_*1024}"); e("s_nop 4")
            e(f"buffer_store_dwordx4 {ar(4*s_,4)}, v{vL16}, s[24:27], s44 offen")
        e("s_waitcnt vmcnt(0)")
    n = vm_need(("d", 0)); e(f"s_waitcnt vmcnt({n})")
    stamp(e, 3)
    e("s_barrier")
    lt.issue("b", bias_rd(0, 0, 0) + bias_rd(0, 1, 1))
    for k in range(D): lt.issue(("f", k), frag_rd(0, k))
    lt.wait("b")
    need(0)
    def pend_fn(phi): return None
    for t in range(9):
        fl = []
        if t > 0:
            fl = gelu_tile(1 - t % 2, 0, 2 * (t - 1)) + gelu_tile(1 - t % 2, 1, 2 * (t - 1) + 1)
        buckets = [[] for _ in range(72)]
        if fl:
            sp = spread(fl, 62)
            for i in range(62): buckets[3 + i] = sp[i]
        for hh in range(2):
            phi = 2 * t + hh
            extra = {}
            if hh == 1 and t < 8:
                extra[30] = (lambda tt=t: lt.issue("b", bias_rd((tt + 1) % 2, 0, 2 * (tt + 1)) + bias_rd((tt + 1) % 2, 1, 2 * (tt + 1) + 1)))
            dm = dma_groups(phi + 3)
            phase(phi, buckets[36 * hh: 36 * hh + 36], dm, phi + 1, extra)
        if t == 0:
            stamp(e, 4)
    def epi(b, np_imm):
        out = []
        for u in range(2):
            base = SB(b, u)
            for k in range(8): out.append(f"v_cvt_pk_bf16_f32 v{PK+8*u+k}, v{base+2*k}, v{base+2*k+1}")
            out.append((("s", 0), f"buffer_store_dwordx4 {vr(PK+8*u,4)}, v{vL16}, s[24:27], s52 offen offset:{u*2048}{ST_SC1}"))
            out.append((("s", 0), f"buffer_store_dwordx4 {vr(PK+8*u+4,4)}, v{vL16}, s[24:27], s52 offen offset:{u*2048+1024}{ST_SC1}"))
        return out
    e("s_lshl_b32 s52, s3, 6"); e("s_add_u32 s52, s52, s6"); e(f"s_mul_i32 s52, s52, {18*2048}"); e(f"s_add_u32 s52, s52, {WS_P}")
    def ystep(t, first=False, ybase=9, last=False):
        if first:
            fl = gelu_tile(1 - t % 2, 0, 16) + gelu_tile(1 - t % 2, 1, 17)
            sp = spread(fl, 56); buckets = [[] for _ in range(72)]
            for i in range(56): buckets[3 + i] = sp[i]
        else:
            fl = epi(1 - t % 2, 0)
            buckets = [[] for _ in range(72)]
            pos = 3
            for x in fl:
                while pos % 4 == 1: pos += 1
                buckets[pos].append(x)
                if len(buckets[pos]) >= 2 or isinstance(x, tuple): pos += 1
            buckets[pos + 1].append("s_add_u32 s52, s52, 4096")
        for hh in range(2):
            phi = 2 * t + hh
            nphi = phi + 1
            phase(phi, buckets[36 * hh: 36 * hh + 36], [] if (last and phi + 3 >= 36) else dma_groups(phi + 3, ybase), None if phi == 35 else nphi)
    ystep(9, first=True)
    e("s_mov_b32 s15, 3")
    vq_save = list(vq); lq_save = [(t[0], t[1] - 20 * 36) if isinstance(t, tuple) else t for t in lt.q]
    e.label("M_loop")
    ystep(10); ystep(11)
    vq_n = [(t[0], t[1] - 4) if t[0] == "d" else t for t in vq]
    lq_n = [(t[0], t[1] - 24 * 36) if isinstance(t, tuple) else t for t in lt.q]
    assert lq_n == lq_save, (lq_n, lq_save)
    e("s_add_u32 s41, s41, 256")
    e("s_sub_u32 s15, s15, 1"); e("s_cmp_lg_u32 s15, 0"); e("s_cbranch_scc1 M_loop")
    LOOPCHK.append((vq_save, vq_n))
    for i, tg in enumerate(vq):
        if tg[0] == "d": vq[i] = ("d", tg[1] + 8)
    lt.q[:] = [(tg[0], tg[1] + 8 * 36) if isinstance(tg, tuple) else tg for tg in lt.q]
    ystep(16, ybase=15, last=True); ystep(17, ybase=15, last=True)
    e("s_nop 7"); e("s_nop 3")
    stamp(e, 5)
    for x in epi(1, 0):
        if isinstance(x, tuple): e("s_nop 0"); e(x[1])
        else: e(x)
    if PROF:
        e("s_waitcnt vmcnt(0)"); stamp(e, 6); stamp_rt(e, 7); stamp_flush(e, 0, 58)
    e("s_endpgm")
LOOPCHK = []
```

```python
import math
WS_Y  = 0
WS_Q1 = 0x240000
WS_Q2 = WS_Q1 + 0x200000
WS_K1 = WS_Q2 + 0x40000
WS_K2 = WS_K1 + 0x10000
VROW = 4112
WS_V  = WS_K2 + 0x2000
QB = 39936; KV_K2 = 16384; KV_V = 18432; VP = 1040
WS_KN = WS_K1 + 0x28000
WS_G  = WS_KN + 0x1000
WS_O1 = WS_G + 0x2000
WS_O2 = WS_O1 + 0x200000
WS_P  = WS_O2 + 0x40000
NSPLIT = 8
WS_B = WS_P + 8 * 64 * 18 * 2048
WS_END = WS_B + 64 * 18 * 2048
QSCALE = 18 ** -0.5 * math.log2(math.e)

_c0 = 2.0 * math.sqrt(2.0 / math.pi) * math.log2(math.e); _c1 = _c0 * 0.044715
KAPPA = _c1 ** (1.0 / 3.0); GC0 = _c0 / KAPPA
```

```python
import sys, math, struct
sys.path.insert(0, "dev")
from layout import *
NAME = "gated_mix__grouped_kv_mqa__mixer_channel_mlp__prompt"

class Asm:
    def __init__(self): self.l = []
    def __call__(self, s): self.l.append("    " + s)
    def label(self, s): self.l.append(s + ":")
    def raw(self, s): self.l.append(s)
    def text(self): return "\n".join(self.l) + "\n"

def f2u(x): return struct.unpack("<I", struct.pack("<f", x))[0]
def hexf(x): return "0x%08x" % f2u(x)
def vr(a, n): return f"v[{a}:{a+n-1}]" if n > 1 else f"v{a}"
def ar(a, n): return f"a[{a}:{a+n-1}]" if n > 1 else f"a{a}"
def sr(a, n): return f"s[{a}:{a+n-1}]" if n > 1 else f"s{a}"

def srd(e, d, base, nbytes):
    e(f"s_mov_b32 s{d}, s{base}")
    e(f"s_and_b32 s{d+1}, s{base+1}, 0xffff")
    e(f"s_mov_b32 s{d+2}, {nbytes}")
    e(f"s_mov_b32 s{d+3}, 0x20000")

def kernel_head(e, name):
    e.raw(".text"); e.raw(f".globl {name}"); e.raw(".p2align 8"); e.raw(f".type {name},@function"); e.label(name)

def kernel_desc(name, vgpr, sgpr, accum):
    return f""".section .rodata,"a"
.p2align 6
.amdhsa_kernel {name}
  .amdhsa_next_free_vgpr {vgpr}
  .amdhsa_next_free_sgpr {sgpr}
  .amdhsa_accum_offset {accum}
  .amdhsa_group_segment_fixed_size 0
  .amdhsa_kernarg_size 112
  .amdhsa_user_sgpr_count 2
  .amdhsa_user_sgpr_kernarg_segment_ptr 1
  .amdhsa_system_sgpr_workgroup_id_x 1
.end_amdhsa_kernel
"""

import os
PROF = int(os.environ.get("PROF", "0"))
WS_PROF = 0x2000000
def stamp(e, i):
    if not PROF: return
    e(f"s_memtime s[{70+2*i}:{71+2*i}]"); e("s_waitcnt lgkmcnt(0)")
def stamp_rt(e, i):
    if not PROF: return
    e(f"s_memrealtime s[{70+2*i}:{71+2*i}]"); e("s_waitcnt lgkmcnt(0)")
def stamp_flush(e, kidx, wsptr, nst=8):
    if not PROF: return
    e(f"s_mov_b32 s88, s{wsptr}"); e(f"s_and_b32 s89, s{wsptr+1}, 0xffff"); e("s_mov_b32 s90, 0x8000000"); e("s_mov_b32 s91, 0x20000")
    e("s_mov_b32 s92, s5")
    e("s_lshl_b32 s93, s2, 3"); e("s_add_u32 s93, s93, s92"); e("s_lshl_b32 s93, s93, 6"); e(f"s_add_u32 s93, s93, {WS_PROF + kidx*0x40000}")
    e("s_mov_b64 exec, 1"); e("v_mov_b32 v2, 0")
    for i in range(nst):
        e(f"v_mov_b32 v3, s{70+2*i}"); e(f"buffer_store_dword v3, v2, s[88:91], s93 offen offset:{4*i}")
    e("s_mov_b64 exec, -1")

def tr_lane_addr(e, vdst, vlane, vt1, vt2, hmul):
    e(f"v_lshrrev_b32 v{vt1}, 5, v{vlane}")
    e(f"v_mul_u32_u24 v{vdst}, {hmul*64}, v{vt1}")
    e(f"v_bfe_u32 v{vt1}, v{vlane}, 2, 2")
    e(f"v_lshlrev_b32 v{vt1}, 6, v{vt1}")
    e(f"v_add_u32 v{vdst}, v{vdst}, v{vt1}")
    e(f"v_bfe_u32 v{vt1}, v{vlane}, 4, 1")
    e(f"v_lshlrev_b32 v{vt1}, 5, v{vt1}")
    e(f"v_add_u32 v{vdst}, v{vdst}, v{vt1}")
    e(f"v_and_b32 v{vt1}, 3, v{vlane}")
    e(f"v_lshlrev_b32 v{vt1}, 3, v{vt1}")
    e(f"v_add_u32 v{vdst}, v{vdst}, v{vt1}")

def gen_prep(e):
    K = "prep_kernel"
    XL, WL = 0, 73728
    kernel_head(e, K)
    e("s_cmp_ge_u32 s2, 256"); e("s_cbranch_scc1 P_exit")
    stamp_rt(e, 0); stamp(e, 1)
    e("s_load_dwordx4 s[36:39], s[0:1], 0")
    e("s_load_dwordx4 s[40:43], s[0:1], 16")
    e("s_load_dwordx2 s[44:45], s[0:1], 80")
    e("s_load_dwordx2 s[46:47], s[0:1], 104")
    e("s_and_b32 s3, s2, 7"); e("s_lshr_b32 s4, s2, 3")
    e("s_and_b32 s5, s4, 3"); e("s_lshl_b32 s3, s3, 2"); e("s_add_u32 s3, s3, s5")
    e("s_lshr_b32 s4, s4, 2")
    e("v_lshrrev_b32 v2, 6, v0"); e("v_and_b32 v1, 63, v0")
    e("s_nop 0"); e("v_readfirstlane_b32 s5, v2")
    e("v_lshrrev_b32 v2, 2, v1"); e("v_and_b32 v3, 3, v1"); e("v_lshlrev_b32 v3, 4, v3")
    e("v_mul_u32_u24 v4, 1152, v2"); e("v_add_u32 v4, v4, v3")
    e("v_mul_u32_u24 v5, 36, v2"); e("v_add_u32 v5, v5, v3")
    e("v_and_b32 v6, 31, v1"); e("v_lshrrev_b32 v7, 5, v1")
    e("s_and_b32 s8, s5, 1"); e("s_lshr_b32 s9, s5, 1")
    e("s_lshl_b32 s6, s3, 1"); e("s_add_u32 s6, s6, s8")
    e("s_waitcnt lgkmcnt(0)")
    srd(e, 8+4, 38, 576 * 1152); srd(e, 28, 36, 2048 * 1152)
    e(f"s_mul_i32 s50, s3, {64*1152}"); e(f"s_mul_i32 s51, s5, {16*1152}"); e("s_add_u32 s50, s50, s51")
    e(f"s_mul_i32 s51, s5, {16*1152}")
    e("s_mov_b32 s52, 911")
    for ii in range(18):
        e(f"v_add_u32 v8, {64*ii}, v1")
        e("v_mul_lo_u32 v9, v8, s52"); e("v_lshrrev_b32 v9, 16, v9")
        e("v_mul_u32_u24 v10, 72, v9"); e("v_sub_u32 v8, v8, v10")
        e("v_bfe_u32 v10, v9, 1, 3"); e("v_xor_b32 v8, v8, v10"); e("v_lshlrev_b32 v8, 4, v8")
        e("v_mul_u32_u24 v9, 1152, v9"); e(f"v_add_u32 v{208+ii}, v8, v9")
    for ii in range(18):
        e(f"s_add_u32 m0, s51, {XL + ii*1024}")
        e("s_nop 0")
        e(f"buffer_load_dwordx4 v{208+ii}, s[28:31], s50 offen lds")
    PP = int(os.environ.get("PPROF", "0"))
    if PP: stamp(e, 2)
    def wdma(ldsbase, headoff_sreg):
        e("s_mul_i32 s53, s8, 18"); e(f"s_mul_i32 s54, s53, {16*1152}"); e(f"s_add_u32 s54, s54, s{headoff_sreg}")
        e("s_lshl_b32 s53, s53, 10"); e("s_mul_i32 s55, s9, 36864"); e("s_add_u32 s53, s53, s55")
        for ii in range(18):
            e(f"s_add_u32 m0, s53, {ldsbase + ii*1024}"); e(f"s_add_u32 s55, s54, {ii*16*1152}")
            e("buffer_load_dwordx4 v4, s[12:15], s55 offen lds")
    e("s_lshl_b32 s10, s4, 2"); e("s_add_u32 s10, s10, s9")
    e("s_mul_i32 s11, s10, 36")
    wdma(WL, 11)
    if PP:
        stamp(e, 3); e("s_waitcnt vmcnt(18)"); stamp(e, 4); e("s_waitcnt vmcnt(0)"); stamp(e, 5); stamp_rt(e, 7); stamp_flush(e, 0, 46); e("s_endpgm")
    e("s_cmp_eq_u32 s9, 0"); e("s_cselect_b32 s48, s40, s42"); e("s_cselect_b32 s49, s41, s43")
    srd(e, 16, 48, 576 * 36); srd(e, 20, 44, 1152); srd(e, 24, 46, WS_END)
    e("s_and_b32 s56, s4, 3"); e("s_cmp_eq_u32 s56, s5"); e("s_cselect_b32 s57, 1, 0")
    e("v_lshrrev_b32 v13, 3, v1"); e("v_and_b32 v14, 7, v1"); e("v_lshlrev_b32 v16, 4, v14")
    e("s_cbranch_scc0 P_noLN1")
    for i in range(9):
        e(f"buffer_load_dwordx4 {vr(28+4*i,4)}, v16, s[20:23], 0 offen offset:{i*128}")
    e.label("P_noLN1")
    tr_lane_addr(e, 10, 1, 2, 3, 8)
    e("s_mul_i32 s55, s9, 36864"); e("v_add_u32 v10, s55, v10")
    e(f"v_add_u32 v11, {WL}, v10")
    e(f"v_add_u32 v12, {XL}, v10")
    e("v_bfe_u32 v2, v6, 1, 3")
    e("v_mul_u32_u24 v3, 1152, v6"); e("s_mul_i32 s55, s8, 36864"); e("v_add_u32 v3, s55, v3")
    for j in range(4):
        e(f"v_add_u32 v8, {2*j}, v7"); e("v_xor_b32 v8, v8, v2"); e("v_lshlrev_b32 v8, 4, v8"); e(f"v_add_u32 v{20+j}, v3, v8")
    e("s_waitcnt vmcnt(0)"); stamp(e, 2); e("s_barrier"); stamp(e, 3)
    for s in range(36):
        e(f"ds_read_b128 {vr(64+4*s,4)}, v{20+s%4} offset:{(s//4)*128}")
    X, GW = 208, 28
    e("s_cmp_eq_u32 s57, 0"); e("s_cbranch_scc1 P_noLN1b")
    e("s_lshl_b32 s58, s4, 3"); e("v_add_u32 v15, s58, v13")
    e("v_bfe_u32 v2, v15, 1, 3"); e("v_xor_b32 v2, v14, v2"); e("v_lshlrev_b32 v2, 4, v2")
    e("v_mul_u32_u24 v3, 1152, v15"); e("v_add_u32 v3, v3, v2")
    for i in range(9): e(f"ds_read_b128 {vr(X+4*i,4)}, v3 offset:{i*128}")
    e.label("P_noLN1b")
    e("s_waitcnt lgkmcnt(0)"); e("s_barrier")
    e("s_add_u32 s11, s11, 72")
    wdma(XL, 11)
    RS = [208, 212, 216, 220, 224, 228]
    def rd(dst, addr, s):
        e(f"ds_read_b64_tr_b16 {vr(dst,2)}, v{addr} offset:{s*1024}")
        e(f"ds_read_b64_tr_b16 {vr(dst+2,2)}, v{addr} offset:{s*1024+256}")
    def job(addr, D, swap=False):
        sl = lambda s: RS[s % 6]
        for s in range(5): rd(sl(s), addr, s)
        for s in range(36):
            e(f"s_waitcnt lgkmcnt({2*(min(35, s+4)-s)})")
            c0 = "0" if s == 0 else vr(D,16)
            w = vr(sl(s),4); xx = vr(64+4*s,4)
            e(f"v_mfma_f32_32x32x16_bf16 {vr(D,16)}, {xx if swap else w}, {w if swap else xx}, {c0}")
            if s + 5 < 36: rd(sl(s+5), addr, s+5)
        e("s_nop 7"); e("s_nop 3")
    def qstore(D, headreg):
        e(f"s_mov_b32 s61, {hexf(QSCALE)}")
        for r in range(10): e(f"v_mul_f32 v{D+r}, s61, v{D+r}")
        for i in range(5): e(f"v_cvt_pk_bf16_f32 v{232+i}, v{D+2*i}, v{D+2*i+1}")
        e(f"s_lshl_b32 s62, s{headreg}, 6"); e("s_add_u32 s62, s62, s6")
        e("s_lshl_b32 s63, s62, 10"); e(f"s_add_u32 s63, s63, {WS_Q1}")
        e(f"buffer_store_dwordx4 {vr(232,4)}, v17, s[24:27], s63 offen")
        e("s_lshl_b32 s63, s62, 7"); e(f"s_add_u32 s63, s63, {WS_Q2}")
        e("s_mov_b32 exec_hi, 0")
        e(f"buffer_store_dword v236, v18, s[24:27], s63 offen")
        e("s_mov_b32 exec_hi, -1")
    e("v_lshlrev_b32 v17, 4, v1"); e("v_lshlrev_b32 v18, 2, v6")
    e("s_cmp_eq_u32 s57, 0"); e("s_cbranch_scc1 P_noLN2")
    e("s_mov_b32 s61, 0x3f803f80")
    e("v_mov_b32 v226, 0") if False else None
    A0, A1, A2, T0, T1 = 24, 25, 26, 27, 19
    e(f"v_mov_b32 v{A0}, 0"); e(f"v_mov_b32 v{A1}, 0"); e(f"v_mov_b32 v{A2}, 0")
    for i in range(36):
        e(f"v_dot2_f32_bf16 v{A0}, v{X+i}, s61, v{A0}")
        e(f"v_dot2_f32_bf16 v{A1}, v{X+i}, v{X+i}, v{A1}")
        e(f"v_dot2_f32_bf16 v{A2}, v{X+i}, v{GW+i}, v{A2}")
    for dpp in ("quad_perm:[1,0,3,2]", "quad_perm:[2,3,0,1]", "row_half_mirror"):
        e("s_nop 1")
        for r in (A0, A1, A2): e(f"v_add_f32_dpp v{r}, v{r}, v{r} {dpp} row_mask:0xf bank_mask:0xf")
    e("s_nop 1")
    e(f"v_mul_f32 v{A0}, {hexf(1/576)}, v{A0}"); e(f"v_mul_f32 v{A1}, {hexf(1/576)}, v{A1}")
    e(f"v_fma_f32 v{A1}, -v{A0}, v{A0}, v{A1}"); e(f"v_max_f32 v{A1}, 0, v{A1}"); e(f"v_add_f32 v{A1}, {hexf(1e-5)}, v{A1}")
    e(f"v_rsq_f32 v{A1}, v{A1}")
    e(f"v_mul_f32 v{A2}, {hexf(-math.log2(math.e))}, v{A2}")
    e(f"v_mul_f32 v{A1}, {hexf(KAPPA)}, v{A1}")
    e(f"v_exp_f32 v{A2}, v{A2}")
    e(f"v_mul_f32 v{A0}, v{A0}, v{A1}")
    e(f"v_add_f32 v{A2}, 1.0, v{A2}")
    e(f"v_rcp_f32 v{A2}, v{A2}")
    for i in range(36):
        e(f"v_lshlrev_b32 v{T0}, 16, v{X+i}"); e(f"v_and_b32 v{T1}, 0xffff0000, v{X+i}")
        e(f"v_fma_f32 v{T0}, v{T0}, v{A1}, -v{A0}"); e(f"v_fma_f32 v{T1}, v{T1}, v{A1}, -v{A0}")
        e(f"v_cvt_pk_bf16_f32 v{X+i}, v{T0}, v{T1}")
    e("s_lshl_b32 s58, s3, 6"); e("v_add_u32 v15, s58, v15")
    e("v_lshrrev_b32 v2, 5, v15"); e("v_mul_u32_u24 v2, 36864, v2")
    e("v_and_b32 v3, 31, v15"); e("v_lshlrev_b32 v3, 4, v3"); e("v_add_u32 v2, v2, v3")
    e("v_lshrrev_b32 v3, 1, v14"); e("v_lshlrev_b32 v3, 10, v3"); e("v_add_u32 v2, v2, v3")
    e("v_and_b32 v3, 1, v14"); e("v_lshlrev_b32 v3, 9, v3"); e("v_add_u32 v2, v2, v3")
    for i in range(9):
        e(f"s_mov_b32 s62, {WS_Y + i*4096}")
        e(f"buffer_store_dwordx4 {vr(X+4*i,4)}, v2, s[24:27], s62 offen")
    e("v_lshlrev_b32 v15, 2, v15")
    e("v_cmp_eq_u32 vcc, 0, v14"); e("s_and_saveexec_b64 s[64:65], vcc")
    e(f"s_mov_b32 s62, {WS_G}")
    e(f"buffer_store_dword v{A2}, v15, s[24:27], s62 offen")
    e("s_mov_b64 exec, s[64:65]")
    e.label("P_noLN2")
    job(11, 32)
    qstore(32, 10)
    stamp(e, 4)
    e("s_waitcnt vmcnt(0)"); e("s_barrier")
    e("s_cmp_lg_u32 s4, 0"); e("s_cbranch_scc1 P_noC")
    e("s_mul_i32 s53, s8, 18"); e(f"s_mul_i32 s54, s53, {16*36}"); e("s_lshl_b32 s53, s53, 10"); e("s_mul_i32 s55, s9, 36864"); e("s_add_u32 s53, s53, s55")
    for ii in range(18):
        e(f"s_add_u32 m0, s53, {WL + ii*1024}"); e(f"s_add_u32 s55, s54, {ii*16*36}")
        e("buffer_load_dwordx4 v5, s[16:19], s55 offen lds")
    e.label("P_noC")
    job(12, 48)
    e("s_add_u32 s10, s10, 2")
    qstore(48, 10)
    e("s_cmp_lg_u32 s4, 0"); e("s_cbranch_scc1 P_end")
    e("s_waitcnt vmcnt(0)"); e("s_barrier")
    e("s_cmp_eq_u32 s9, 1"); e("s_cbranch_scc1 P_V")
    job(11, 32)
    for i in range(5): e(f"v_cvt_pk_bf16_f32 v{232+i}, v{32+2*i}, v{33+2*i}")
    e("s_lshl_b32 s63, s6, 10"); e(f"s_add_u32 s63, s63, {WS_K1}")
    e(f"buffer_store_dwordx4 {vr(232,4)}, v17, s[24:27], s63 offen")
    e("s_lshl_b32 s63, s6, 7"); e(f"s_add_u32 s63, s63, {WS_K2}")
    e("s_mov_b32 exec_hi, 0")
    e(f"buffer_store_dword v236, v18, s[24:27], s63 offen")
    e("s_mov_b32 exec_hi, -1")
    e("v_cmp_gt_u32 vcc, 32, v1"); e("s_nop 1")
    e("v_cndmask_b32 v237, 0, v236, vcc")
    e("v_mov_b32 v238, 0")
    for i in range(4): e(f"v_dot2_f32_bf16 v238, v{232+i}, v{232+i}, v238")
    e("v_dot2_f32_bf16 v238, v237, v237, v238")
    e("v_mov_b32 v239, v238"); e("s_nop 1")
    e("v_permlane32_swap_b32 v238, v239"); e("s_nop 1")
    e("v_add_f32 v238, v238, v239")
    for dpp in ("quad_perm:[1,0,3,2]", "quad_perm:[2,3,0,1]", "row_half_mirror", "row_mirror"):
        e("s_nop 1"); e(f"v_max_f32_dpp v238, v238, v238 {dpp} row_mask:0xf bank_mask:0xf")
    e("ds_swizzle_b32 v239, v238 offset:0x401F"); e("s_waitcnt lgkmcnt(0)")
    e("v_max_f32 v238, v238, v239")
    e("s_lshl_b32 s63, s6, 2"); e(f"s_add_u32 s63, s63, {WS_KN}")
    e("v_mov_b32 v239, 0")
    e("s_mov_b64 exec, 1")
    e(f"buffer_store_dword v238, v239, s[24:27], s63 offen")
    e("s_mov_b64 exec, -1")
    e("s_branch P_end")
    e.label("P_V")
    job(11, 32, swap=True)
    for i in range(8): e(f"v_cvt_pk_bf16_f32 v{232+i}, v{32+2*i}, v{33+2*i}")
    e("v_cmp_eq_u32 vcc, 18, v6"); e("v_mov_b32 v240, 0x3f803f80"); e("s_nop 0")
    for i in range(8): e(f"v_cndmask_b32 v{232+i}, v{232+i}, v240, vcc")
    e(f"v_mul_u32_u24 v241, {VROW}, v6"); e("v_lshlrev_b32 v242, 4, v7"); e("v_add_u32 v241, v241, v242")
    e("s_lshl_b32 s63, s6, 6"); e(f"s_add_u32 s63, s63, {WS_V}")
    e("v_cmp_gt_u32 vcc, 19, v6"); e("s_and_saveexec_b64 s[64:65], vcc")
    e(f"buffer_store_dwordx4 {vr(232,4)}, v241, s[24:27], s63 offen")
    e(f"buffer_store_dwordx4 {vr(236,4)}, v241, s[24:27], s63 offen offset:32")
    e("s_mov_b64 exec, s[64:65]")
    e.label("P_end")
    if int(os.environ.get("WPF", "1")):
        e("s_load_dwordx2 s[66:67], s[0:1], 48"); e("s_load_dwordx2 s[68:69], s[0:1], 64"); e("s_waitcnt lgkmcnt(0)")
        srd(e, 8, 66, 576 * 9216); srd(e, 12, 68, 4608 * 1152)
        e("s_mul_i32 s62, s2, 20736"); e("s_mul_i32 s63, s5, 5184"); e("s_add_u32 s62, s62, s63")
        for i in range(6):
            off = i * 1024
            if i < 5:
                e(f"buffer_load_dwordx4 {vr(64+8*i,4)}, v17, s[8:11], s62 offen offset:{off}" if off < 4096 else f"s_add_u32 s63, s62, {off}")
                if off >= 4096: e(f"buffer_load_dwordx4 {vr(64+8*i,4)}, v17, s[8:11], s63 offen")
                e(f"buffer_load_dwordx4 {vr(68+8*i,4)}, v17, s[12:15], s62 offen offset:{off}" if off < 4096 else f"buffer_load_dwordx4 {vr(68+8*i,4)}, v17, s[12:15], s63 offen")
        e("s_add_u32 s63, s62, 5120"); e("v_lshlrev_b32 v2, 0, v17")
        e("s_mov_b64 exec, 15")
        e(f"buffer_load_dwordx4 {vr(120,4)}, v17, s[8:11], s63 offen"); e(f"buffer_load_dwordx4 {vr(124,4)}, v17, s[12:15], s63 offen")
        e("s_mov_b64 exec, -1")
    if PROF:
        e("s_waitcnt vmcnt(0)"); stamp(e, 5); stamp_rt(e, 7); stamp_flush(e, 0, 46)
    e.label("P_exit")
    e("s_endpgm")
    return kernel_desc(K, 256, 100, 256)

def main():
    which = sys.argv[1] if len(sys.argv) > 1 else "all"
    e = Asm()
    hdr = open(f"cdna_kernels/{NAME}.s.ref").read().split("; Override launch geometry")[0]
    launches = []
    descs = []
    body = Asm()
    if int(os.environ.get("FUSED", "1")):
        import gen_fused
        gen_fused.add(body, descs, launches, which)
    else:
        descs.append(gen_prep(body)); launches.append("; @launch kernel=prep_kernel grid=(256,1,1) block=(256,1,1) lds=147456")
        import gen_main
        gen_main.add(body, descs, launches, which)
    out = hdr + "\n".join(launches) + "\n" + '.amdgcn_target "amdgcn-amd-amdhsa--gfx950"\n' + body.text() + "".join(descs)
    if len(launches) == 1 and int(os.environ.get("PLAIN", "1")):
        out = out.replace("; @launch kernel=main_kernel grid", "; @launch grid").replace("main_kernel", NAME + "_kernel")
    if int(os.environ.get("ALIGN", "1")):
        import alignfix
        out, nw, nn = alignfix.fix(out)
        print(f"alignfix: widened {nw}, left misaligned {nn}", file=sys.stderr)
    sys.stdout.write(out)
if __name__ == "__main__": main()
```

```python
from gen import *
PRERED = int(os.environ.get('PRERED', '1')) and int(os.environ.get('FUSED', '1'))
NSP = 1 if PRERED else NSPLIT
PBASE = WS_B if PRERED else WS_P
def gen_final(e):
    K = "final_kernel"
    kernel_head(e, K)
    e("s_cmp_ge_u32 s2, 144"); e("s_cbranch_scc1 F_end")
    stamp_rt(e, 0); stamp(e, 1)
    if int(os.environ.get("CODEPF", "1")):
        e("s_getpc_b64 s[68:69]")
        e.label("F_pc")
        e("v_lshlrev_b32 v250, 7, v0"); e("s_mov_b32 s7, F_codeend-F_pc"); e("v_cmp_gt_u32 vcc, s7, v250")
        e("s_and_saveexec_b64 s[8:9], vcc"); e("s_cbranch_execz F_nopf")
        e("global_load_dword v252, v250, s[68:69]")
        e.label("F_nopf")
        e("s_mov_b64 exec, s[8:9]")
    e("s_load_dwordx2 s[36:37], s[0:1], 32")
    e("s_load_dwordx2 s[38:39], s[0:1], 72")
    e("s_load_dwordx2 s[40:41], s[0:1], 88")
    e("s_load_dwordx2 s[42:43], s[0:1], 104")
    e("s_and_b32 s3, s2, 7"); e("s_lshr_b32 s4, s2, 3")
    e("s_cmp_ge_u32 s4, 9"); e("s_cselect_b32 s6, 1, 0"); e("s_cselect_b32 s7, 9, 0"); e("s_sub_u32 s4, s4, s7")
    e("s_lshl_b32 s3, s3, 1"); e("s_add_u32 s3, s3, s6")
    e("v_lshrrev_b32 v2, 6, v0"); e("v_and_b32 v1, 63, v0"); e("s_nop 0"); e("v_readfirstlane_b32 s5, v2")
    e("v_lshrrev_b32 v2, 2, v1"); e("v_and_b32 v3, 3, v1"); e("v_lshlrev_b32 v3, 4, v3")
    e("v_mul_u32_u24 v4, 1152, v2"); e("v_add_u32 v4, v4, v3")
    e("v_lshlrev_b32 v5, 4, v1")
    e("v_and_b32 v6, 31, v1"); e("v_lshrrev_b32 v7, 5, v1")
    tr_lane_addr(e, 8, 1, 2, 3, 4)
    e("v_bfe_u32 v2, v1, 3, 1"); e("v_lshlrev_b32 v3, 2, v7"); e("v_add_u32 v2, v2, v3"); e("v_mul_u32_u24 v2, 18, v2")
    e("v_bfe_u32 v3, v1, 2, 1"); e("v_add_u32 v2, v2, v3"); e("v_add_u32 v2, 16, v2"); e("v_lshlrev_b32 v9, 6, v2")
    e("v_bfe_u32 v2, v1, 4, 1"); e("v_lshlrev_b32 v2, 5, v2"); e("v_add_u32 v9, v9, v2")
    e("v_and_b32 v2, 3, v1"); e("v_lshlrev_b32 v2, 3, v2"); e("v_add_u32 v9, v9, v2")
    e("v_add_u32 v10, 36864, v8"); e("v_add_u32 v11, 36864, v9")
    e("s_lshl_b32 s6, s3, 2"); e("s_add_u32 s6, s6, s5")
    e("s_lshl_b32 s7, s4, 1")
    e("s_lshl_b32 s52, s7, 6")
    e("s_waitcnt lgkmcnt(0)")
    srd(e, 12, 38, 1152); srd(e, 16, 40, 2048 * 1152); srd(e, 24, 42, WS_END); srd(e, 8, 36, 576 * 1152)
    e(f"s_mul_i32 s51, s5, {144*1152}"); e("s_add_u32 s51, s51, s52")
    e("s_mul_i32 s53, s5, 9216")
    e("s_lshl_b32 s55, s6, 15"); e(f"s_add_u32 s55, s55, {WS_O1}")
    BF = 64
    def bload(k):
        if k < 32:
            return ([f"s_add_u32 s56, s55, {k*1024}"] if k % 4 == 0 else []) + [f"buffer_load_dwordx4 {vr(BF+4*k,4)}, v5, s[24:27], s56 offen offset:{(k%4)*1024}"]
        return [f"buffer_load_dwordx4 {vr(BF+4*k,4)}, v5, s[24:27], s57 offen offset:{(k-32)*1024}"]
    e("s_lshl_b32 s57, s6, 12"); e(f"s_add_u32 s57, s57, {WS_O2}")
    for ii in range(9):
        for img in range(2):
            e(f"s_add_u32 m0, s53, {img*36864 + ii*1024}"); e(f"s_add_u32 s54, s51, {ii*16*1152 + img*64}")
            e("buffer_load_dwordx4 v4, s[8:11], s54 offen lds")
    NB0 = 10
    for k in range(NB0):
        for x in bload(k): e(x)
    e(f"s_waitcnt vmcnt({NB0})"); stamp(e, 2); e("s_barrier"); stamp(e, 3)
    ACC = [24, 40]
    RS = [208, 212, 216, 220, 224, 228, 232, 236]
    def rd(k, img):
        d = RS[(2 * k + img) % 8]
        am, ae = (8, 9) if img == 0 else (10, 11)
        if k < 32: a, o1, o2 = am, k * 1152, k * 1152 + 512
        else: a, o1, o2 = ae, (k - 32) * 8 * 1152, (k - 32) * 8 * 1152 + 2 * 1152
        e(f"ds_read_b64_tr_b16 {vr(d,2)}, v{a} offset:{o1}"); e(f"ds_read_b64_tr_b16 {vr(d+2,2)}, v{a} offset:{o2}")
    for k in range(3):
        rd(k, 0); rd(k, 1)
    vq = [("b", k) for k in range(NB0)]
    s_g = "s58";
    pend = [("b", k, bload(k)) for k in range(NB0, 36)]
    e("s_lshl_b32 s58, s6, 7"); e(f"s_add_u32 s58, s58, {WS_G}"); e("v_lshlrev_b32 v2, 2, v6"); e("v_lshlrev_b32 v3, 3, v7")
    pend.append(("g", 0, ["buffer_load_dword v12, v2, s[24:27], s58 offen"]))
    for j in range(2):
        for q in range(4): pend.append(("b2", 4*j+q, [f"buffer_load_dwordx2 {vr(240+8*j+2*q,2)}, v3, s[12:15], s52 offen offset:{j*64+q*16}"]))
    e("s_mul_i32 s59, s6, 18"); e("s_add_u32 s59, s59, s7"); e("s_lshl_b32 s59, s59, 11"); e(f"s_add_u32 s59, s59, {PBASE}")
    plist = []
    for sp in range(NSP):
        g = [f"s_add_u32 s60, s59, {sp*64*18*2048}"]
        for j in range(2):
            for hf in range(2):
                g.append(f"buffer_load_dwordx4 {vr(BF+16*sp+8*j+4*hf,4)}, v5, s[24:27], s60 offen offset:{j*2048+hf*1024}")
        plist.append((4 * sp + 4, ("p", sp), g))
    def vwait(tag):
        idx = max((i for i, t in enumerate(vq) if t == tag), default=None)
        if idx is None: return None
        n = len(vq) - 1 - idx
        del vq[:idx + 1]
        return n
    for k in range(36):
        n = vwait(("b", k))
        nout = 4 * (min(35, k + 2) - k)
        e(f"s_waitcnt " + (f"vmcnt({min(n,63)}) " if n is not None else "") + f"lgkmcnt({nout})")
        for img in range(2):
            c = "0" if k == 0 else vr(ACC[img], 16)
            e(f"v_mfma_f32_32x32x16_bf16 {vr(ACC[img],16)}, {vr(RS[(2*k+img)%8],4)}, {vr(BF+4*k,4)}, {c}")
            if k + 3 < 36: rd(k + 3, img)
        for _ in range(2):
            if pend:
                t, i, g = pend.pop(0)
                for x in g: e(x)
                vq.append((t, i))
        while plist and plist[0][0] <= k + 1 - 0 and not any(p[0] == "b" for p in pend) and plist[0][0] <= k:
            _, tag, g = plist.pop(0)
            for x in g: e(x)
            vq += [tag] * 4
    for _, tag, g in plist:
        for x in g: e(x)
    e("s_mov_b32 s60, 0x3f80"); e("s_mov_b32 s61, 0x3f800000")
    e("s_waitcnt vmcnt(0)")
    e("v_mul_u32_u24 v2, 1152, v6"); e("v_lshlrev_b32 v3, 4, v7"); e("v_add_u32 v2, v2, v3")
    e(f"s_mul_i32 s55, s6, {32*1152}"); e("s_add_u32 s55, s55, s52")
    for j in range(2):
        PS = 192 + 16 * j if False else (208 + 16 * j)
        for sp in range(NSP):
            for k in range(8):
                src = BF + 16 * sp + 8 * j + k
                c0 = "0" if sp == 0 else f"v{PS+2*k}"; c1 = "0" if sp == 0 else f"v{PS+2*k+1}"
                e(f"v_dot2_f32_bf16 v{PS+2*k}, v{src}, s60, {c0}"); e(f"v_dot2_f32_bf16 v{PS+2*k+1}, v{src}, s61, {c1}")
        for r in range(16): e(f"v_mul_f32 v{PS+r}, {hexf(1/KAPPA)}, v{PS+r}")
        for k in range(8):
            e(f"v_dot2_f32_bf16 v{PS+2*k}, v{240+8*j+k}, s60, v{PS+2*k}"); e(f"v_dot2_f32_bf16 v{PS+2*k+1}, v{240+8*j+k}, s61, v{PS+2*k+1}")
        A = ACC[j]
        for r in range(16):
            e(f"v_sub_f32 v{A+r}, v{A+r}, v{PS+r}"); e(f"v_fma_f32 v{A+r}, v12, v{A+r}, v{PS+r}")
        pk = 56 if j == 0 else 14
        pk = 56 if j == 0 else 196
        for k in range(8): e(f"v_cvt_pk_bf16_f32 v{pk+k}, v{A+2*k}, v{A+2*k+1}")
        e("s_nop 1")
        for base in (pk, pk + 4):
            e(f"v_permlane32_swap_b32 v{base}, v{base+2}"); e(f"v_permlane32_swap_b32 v{base+1}, v{base+3}")
        e("s_nop 1")
        e(f"buffer_store_dwordx4 {vr(pk,4)}, v2, s[16:19], s55 offen offset:{j*64}")
        e(f"buffer_store_dwordx4 {vr(pk+4,4)}, v2, s[16:19], s55 offen offset:{j*64+32}")
    if PROF:
        e("s_waitcnt vmcnt(0)"); stamp(e, 5); stamp_rt(e, 7); stamp_flush(e, 1 if int(os.environ.get('FUSED','1')) else 2, 42)
    e.label("F_end"); e("s_endpgm")
    e.label("F_codeend")
    return kernel_desc(K, 256, 100, 256)
def add(body, descs, launches):
    descs.append(gen_final(body)); launches.append("; @launch kernel=final_kernel grid=(144,1,1) block=(256,1,1) lds=73728")
```

```python
import math, sys, os
from gen import *
import gen_mlp4
LDS_MAIN = 4 * QB + 1024

def xdma(e, base):
    e("s_mov_b32 s42, 911"); e("s_mul_i32 s44, s6, 36864"); e(f"s_add_u32 s49, s44, {16*1152}"); e("s_mul_i32 s45, s5, 36864")
    t0, t1, t2 = base, base + 1, base + 2
    for ii in range(18):
        d = base + 3 + ii % 2
        e(f"v_add_u32 v{t0}, {64*ii}, v1")
        e(f"v_mul_lo_u32 v{t1}, v{t0}, s42"); e(f"v_lshrrev_b32 v{t1}, 16, v{t1}")
        e(f"v_mul_u32_u24 v{t2}, 72, v{t1}"); e(f"v_sub_u32 v{t0}, v{t0}, v{t2}")
        e(f"v_bfe_u32 v{t2}, v{t1}, 1, 3"); e(f"v_xor_b32 v{t0}, v{t0}, v{t2}"); e(f"v_lshlrev_b32 v{t0}, 4, v{t0}")
        e(f"v_mul_u32_u24 v{t1}, 1152, v{t1}"); e(f"s_add_u32 m0, s45, {ii*1024}"); e(f"v_add_u32 v{d}, v{t0}, v{t1}")
        e(f"buffer_load_dwordx4 v{d}, s[64:67], s44 offen lds")
        e(f"s_add_u32 m0, s45, {18432 + ii*1024}"); e("s_nop 0")
        e(f"buffer_load_dwordx4 v{d}, s[64:67], s49 offen lds")
def coop(e, base):
    e("s_lshr_b32 s44, s2, 3"); e("s_lshl_b32 s44, s44, 2"); e("s_add_u32 s44, s44, s5")
    e("s_and_b32 s45, s2, 1")
    e(f"v_lshlrev_b32 v{base}, 7, v1")
    e("s_mul_i32 s49, s44, 5248")
    e(f"buffer_load_dword v{base+1}, v{base}, s[12:15], s49 offen")
    e("s_mul_i32 s49, s44, 36"); e(f"v_add_u32 v{base+2}, s49, v1")
    e(f"v_lshrrev_b32 v{base+3}, 3, v{base+2}"); e(f"v_mul_u32_u24 v{base+3}, 9216, v{base+3}")
    e(f"v_bfe_u32 v{base}, v{base+2}, 1, 2"); e(f"v_mul_u32_u24 v{base}, 1152, v{base}"); e(f"v_add_u32 v{base+3}, v{base+3}, v{base}")
    e(f"v_and_b32 v{base}, 1, v{base+2}"); e(f"v_lshlrev_b32 v{base}, 7, v{base}"); e(f"v_add_u32 v{base+3}, v{base+3}, v{base}")
    e("s_mul_i32 s49, s45, 4608")
    e(f"buffer_load_dword v{base+4}, v{base+3}, s[28:31], s49 offen")

def xfrag_addr(e, dst, tmp):
    e(f"v_and_b32 v{tmp}, 31, v1"); e(f"v_bfe_u32 v{tmp+1}, v{tmp}, 1, 3"); e(f"v_mul_u32_u24 v{tmp}, 1152, v{tmp}")
    e("s_mul_i32 s45, s5, 36864"); e(f"v_add_u32 v{tmp}, s45, v{tmp}")
    for j in range(4):
        e(f"v_lshrrev_b32 v{dst+j}, 5, v1"); e(f"v_add_u32 v{dst+j}, {2*j}, v{dst+j}"); e(f"v_xor_b32 v{dst+j}, v{dst+j}, v{tmp+1}")
        e(f"v_lshlrev_b32 v{dst+j}, 4, v{dst+j}"); e(f"v_add_u32 v{dst+j}, v{tmp}, v{dst+j}")

def gen_attn_f(e):
    Q1 = lambda i: 16 + 8 * i
    Q2 = lambda i: 20 + 8 * i
    O = lambda i: 48 + 16 * i
    S = lambda b: 112 + 16 * b
    P = 144
    KV = lambda b: 152 + 16 * b
    aK1, aK2, aV = 184, 185, 186
    e.label("A_start")
    e("s_sub_u32 s4, s4, 16")
    e("s_lshl_b32 s6, s3, 1"); e("s_and_b32 s7, s4, 1"); e("s_lshr_b32 s3, s4, 1"); e("s_add_u32 s4, s6, s7")
    e("s_lshl_b32 s6, s4, 2"); e("s_add_u32 s6, s6, s5")
    e("v_lshlrev_b32 v2, 4, v1")
    e("v_and_b32 v3, 31, v1"); e("v_lshlrev_b32 v4, 2, v3")
    e("v_lshrrev_b32 v5, 5, v1")
    xdma(e, 112)
    coop(e, 120)
    e("s_mul_i32 s7, s3, 144")
    e(f"s_mul_i32 s8, s5, {144*1152}"); e("s_add_u32 s8, s8, s7")
    e("s_mov_b32 s9, 5462")
    for j in range(3):
        e(f"v_add_u32 v131, {64*j}, v1"); e("v_mul_lo_u32 v132, v131, s9"); e("v_lshrrev_b32 v132, 16, v132")
        e("v_mul_u32_u24 v133, 12, v132"); e("v_sub_u32 v131, v131, v133"); e("v_lshlrev_b32 v131, 4, v131")
        e("v_mul_u32_u24 v132, 1152, v132"); e(f"v_add_u32 v{134+j}, v131, v132")
    xfrag_addr(e, 146, 131)
    e("v_lshlrev_b32 v131, 3, v5"); e("v_bfe_u32 v132, v1, 2, 2"); e("v_add_u32 v131, v131, v132"); e("v_mul_u32_u24 v137, 192, v131")
    e("v_bfe_u32 v131, v1, 4, 1"); e("v_lshlrev_b32 v131, 5, v131"); e("v_add_u32 v137, v137, v131")
    e("v_and_b32 v131, 3, v1"); e("v_lshlrev_b32 v131, 3, v131"); e("v_add_u32 v137, v137, v131")
    e(f"v_add_u32 v138, {288*192}, v137")
    KVL = 110592
    e("s_cmp_ge_u32 s3, 2"); e("s_cbranch_scc1 A_nokv0")
    e("v_lshlrev_b32 v150, 4, v0")
    for k in range(6):
        e(f"s_mov_b32 s9, {k*4096}"); e(f"buffer_load_dwordx4 {vr(208+4*k,4)}, v150, s[16:19], s9 offen")
    e("s_mov_b32 s9, 58255")
    for k in range(6):
        e(f"v_lshlrev_b32 v151, 2, v0"); e(f"v_add_u32 v151, {k*1024}, v151")
        e("v_mul_lo_u32 v152, v151, s9"); e("v_lshrrev_b32 v152, 19, v152")
        e("v_mul_u32_u24 v153, 9, v152"); e("v_sub_u32 v151, v151, v153")
        e("v_lshlrev_b32 v152, 6, v152"); e(f"v_add_u32 v152, {KVL}, v152")
        for j in range(4):
            e(f"v_add_u32 v153, {j}, v151"); e("v_cmp_lt_u32 vcc, 8, v153"); e("v_lshlrev_b32 v153, 2, v153")
            e(f"v_add_u32 v{232+4*k+j}, v152, v153"); e(f"v_add_u32 v153, 28, v{232+4*k+j}")
            e(f"v_cndmask_b32 v{232+4*k+j}, v{232+4*k+j}, v153, vcc")
    tr_lane_addr(e, 154, 1, 152, 153, 8); e(f"v_add_u32 v154, {KVL}, v154")
    e.label("A_nokv0")
    for c in range(3):
        e(f"s_add_u32 s9, s5, {4*c}"); e("s_mul_i32 s10, s9, 43691"); e("s_lshr_b32 s10, s10, 17")
        e("s_mul_i32 s11, s10, 3"); e("s_sub_u32 s11, s9, s11")
        e(f"s_mul_i32 s10, s10, {16*1152}"); e(f"s_add_u32 s{50+c}, s10, s7")
        e("s_cmp_eq_u32 s11, 1"); e("s_cselect_b64 s[54:55], -1, 0"); e(f"v_cndmask_b32 v{140+c}, v134, v135, s[54:55]")
        e("s_cmp_eq_u32 s11, 2"); e("s_cselect_b64 s[54:55], -1, 0"); e(f"v_cndmask_b32 v{140+c}, v{140+c}, v136, s[54:55]")
    e("s_lshl_b32 s53, s5, 10")
    def wdma_unit(k):
        return [f"s_add_u32 m0, s53, {k*4096}", f"s_add_u32 s10, s{50+k%3}, {(k//3)*4*16*1152}", f"buffer_load_dwordx4 v{140+k%3}, s[12:15], s10 offen lds"]
    e("s_cmp_lt_u32 s3, 2"); e("s_cbranch_scc1 A_xw8"); e("s_waitcnt vmcnt(2)"); e("s_branch A_xwd"); e.label("A_xw8"); e("s_waitcnt vmcnt(8)"); e.label("A_xwd")
    for s_ in range(36): e(f"ds_read_b128 {ar(4*s_,4)}, v{146+s_%4} offset:{(s_//4)*128}")
    e("s_waitcnt vmcnt(0) lgkmcnt(0)"); stamp(e, 2); e("s_barrier")
    e("s_cmp_lt_u32 s3, 2"); e("s_cbranch_scc1 A_kvjob")
    for k in range(27):
        for x in wdma_unit(k): e(x)
    e("s_branch A_nokv2")
    e.label("A_kvjob")
    for k in range(6):
        if k == 5:
            e("s_cmp_lg_u32 s5, 0"); e("s_cbranch_scc1 A_kvw5"); e("s_mov_b64 exec, 0xffff")
        for j in range(4): e(f"ds_write_b32 v{232+4*k+j}, v{208+4*k+j}")
        if k == 5:
            e("s_mov_b64 exec, -1"); e.label("A_kvw5")
    e("s_waitcnt lgkmcnt(0)"); e("s_barrier")
    AP = int(os.environ.get("APROF", "0"))
    if AP == 2: stamp(e, 3)
    RSK = [156, 160, 164, 168, 172, 176]
    def rdk(s_):
        d = RSK[s_ % 6]
        e(f"ds_read_b64_tr_b16 {vr(d,2)}, v154 offset:{s_*1024}"); e(f"ds_read_b64_tr_b16 {vr(d+2,2)}, v154 offset:{s_*1024+256}")
    DK = 180; PKK = 196
    e("v_mov_b32 v207, 0")
    e("s_lshr_b32 s49, s6, 4"); e(f"s_mul_i32 s49, s49, {QB}"); e(f"s_add_u32 s49, s49, {WS_K1}"); e("s_and_b32 s45, s6, 15")
    e("s_cmp_eq_u32 s3, 1"); e("s_cbranch_scc1 A_V")
    for variant in ("K", "V"):
        if variant == "V": e.label("A_V")
        for s_ in range(5): rdk(s_)
        for s_ in range(36):
            e(f"s_waitcnt lgkmcnt({2*(min(35, s_+4)-s_)})")
            c0 = "0" if s_ == 0 else vr(DK,16)
            w_ = vr(RSK[s_%6],4); xx = ar(4*s_,4)
            e(f"v_mfma_f32_32x32x16_bf16 {vr(DK,16)}, {w_ if variant=='K' else xx}, {xx if variant=='K' else w_}, {c0}")
            if s_ + 5 < 36: rdk(s_ + 5)
            if s_ < 27:
                for x in wdma_unit(s_): e(x)
        e("s_nop 7"); e("s_nop 3")
        if AP == 2: stamp(e, 4)
        if variant == "K":
            for i in range(5): e(f"v_cvt_pk_bf16_f32 v{PKK+i}, v{DK+2*i}, v{DK+2*i+1}")
            e("s_lshl_b32 s53, s45, 10"); e("s_add_u32 s53, s53, s49")
            e(f"buffer_store_dwordx4 {vr(PKK,4)}, v2, s[24:27], s53 offen sc1")
            e("s_lshl_b32 s53, s45, 7"); e("s_add_u32 s53, s53, s49"); e(f"s_add_u32 s53, s53, {KV_K2}")
            e("s_mov_b32 exec_hi, 0"); e(f"buffer_store_dword v{PKK+4}, v4, s[24:27], s53 offen sc1"); e("s_mov_b32 exec_hi, -1")
            e("v_cmp_gt_u32 vcc, 32, v1"); e("s_nop 1")
            e(f"v_cndmask_b32 v204, 0, v{PKK+4}, vcc"); e("v_mov_b32 v205, 0")
            for i in range(4): e(f"v_dot2_f32_bf16 v205, v{PKK+i}, v{PKK+i}, v205")
            e("v_dot2_f32_bf16 v205, v204, v204, v205")
            e("s_nop 3"); e("v_mov_b32 v206, v205"); e("s_nop 1"); e("v_permlane32_swap_b32 v205, v206"); e("s_nop 1"); e("v_add_f32 v205, v205, v206")
            for dpp in ("quad_perm:[1,0,3,2]", "quad_perm:[2,3,0,1]", "row_half_mirror", "row_mirror"):
                e("s_nop 1"); e(f"v_max_f32_dpp v205, v205, v205 {dpp} row_mask:0xf bank_mask:0xf")
            e("ds_swizzle_b32 v206, v205 offset:0x401F"); e("s_waitcnt lgkmcnt(0)"); e("v_max_f32 v205, v205, v206")
            e("s_lshl_b32 s53, s6, 2"); e(f"s_add_u32 s53, s53, {WS_KN}"); e("v_mov_b32 v206, 0")
            e("s_mov_b64 exec, 1"); e(f"buffer_store_dword v205, v206, s[24:27], s53 offen sc1"); e("s_mov_b64 exec, -1")
            e("s_branch A_kvpub")
        else:
            for i in range(8): e(f"v_cvt_pk_bf16_f32 v{PKK+i}, v{DK+2*i}, v{DK+2*i+1}")
            e("v_cmp_eq_u32 vcc, 18, v3"); e("v_mov_b32 v204, 0x3f803f80"); e("s_nop 0")
            for i in range(8): e(f"v_cndmask_b32 v{PKK+i}, v{PKK+i}, v204, vcc")
            e("v_cmp_eq_u32 vcc, 19, v3"); e("s_nop 1")
            for i in range(8): e(f"v_cndmask_b32 v{PKK+i}, v{PKK+i}, v207, vcc")
            e(f"v_mul_u32_u24 v205, {VP}, v3"); e("v_lshlrev_b32 v206, 4, v5"); e("v_add_u32 v205, v205, v206")
            e("s_lshl_b32 s53, s45, 6"); e("s_add_u32 s53, s53, s49"); e(f"s_add_u32 s53, s53, {KV_V}")
            e("v_cmp_gt_u32 vcc, 20, v3"); e("s_and_saveexec_b64 s[54:55], vcc")
            e(f"buffer_store_dwordx4 {vr(PKK,4)}, v205, s[24:27], s53 offen sc1")
            e(f"buffer_store_dwordx4 {vr(PKK+4,4)}, v205, s[24:27], s53 offen offset:32 sc1")
            e("s_mov_b64 exec, s[54:55]")
    e.label("A_kvpub")
    e("s_waitcnt vmcnt(0)")
    if AP == 2: stamp(e, 5)
    e("v_mov_b32 v204, 0"); e("v_mov_b32 v205, 1"); e("s_mov_b64 exec, 1")
    e("buffer_atomic_add v205, v204, s[60:63], 0 offen sc0")
    e("s_waitcnt vmcnt(0)")
    e("v_readfirstlane_b32 s9, v205"); e("s_nop 3")
    e("s_cmp_lg_u32 s9, 127"); e("s_cbranch_scc1 A_notlast")
    e("v_mov_b32 v205, 1")
    e("buffer_store_dword v205, v204, s[60:63], 0 offen offset:128 sc1")
    e.label("A_notlast")
    e("s_mov_b64 exec, -1")
    if AP == 2:
        e("s_waitcnt vmcnt(0)"); stamp(e, 6); stamp_rt(e, 7); stamp_flush(e, 0, 58)
    e.label("A_nokv2")
    AP = int(os.environ.get("APROF", "0"))
    e("s_waitcnt vmcnt(18)")
    if AP == 1: stamp(e, 3)
    if AP == 2: e("s_endpgm")
    e("s_barrier")
    OFS = [0, 32, 72, 104]
    def wrd(gk):
        s_, hh = gk // 4, gk % 4
        d = 144 + 4 * (gk % 8)
        a_ = 137 if s_ < 18 else 138
        o = (s_ % 18) * 3072 + OFS[hh]
        e(f"ds_read_b64_tr_b16 {ar(d,2)}, v{a_} offset:{o}"); e(f"ds_read_b64_tr_b16 {ar(d+2,2)}, v{a_} offset:{o+768}")
    for gk in range(6): wrd(gk)
    for gk in range(144):
        s_, hh = gk // 4, gk % 4
        if gk % 2 == 0: e(f"s_waitcnt lgkmcnt({2*max(0, min(143, gk+5) - (gk+1))})")
        c0 = "0" if s_ == 0 else vr(O(hh),16)
        e(f"v_mfma_f32_32x32x16_bf16 {vr(O(hh),16)}, {ar(144+4*(gk%8),4)}, {ar(4*s_,4)}, {c0}")
        if gk + 6 == 48: e("s_waitcnt vmcnt(9)"); e("s_barrier")
        if gk + 6 == 96: e("s_waitcnt vmcnt(0)"); e("s_barrier")
        if gk + 6 < 144: wrd(gk + 6)
        if gk == int(os.environ.get('A_POLL', '100')):
            if AP == 1: e("s_waitcnt lgkmcnt(0)"); stamp(e, 4)
            e("s_cmp_lg_u32 s5, 0"); e("s_cbranch_scc1 A_polled")
            e("v_mov_b32 v120, 0")
            e.label("A_poll")
            e("buffer_load_dword v121, v120, s[60:63], 0 offen offset:128 sc1")
            e("s_waitcnt vmcnt(0)")
            e("v_readfirstlane_b32 s9, v121"); e("s_nop 3")
            e("s_cmp_ge_u32 s9, 1"); e("s_cbranch_scc1 A_pdone")
            e("s_sleep 4"); e("s_branch A_poll")
            e.label("A_pdone")
            e("buffer_inv sc1"); e("s_waitcnt vmcnt(0)")
            e.label("A_polled")
            e("s_barrier")
            if AP == 1: stamp(e, 5)
            e("v_lshlrev_b32 v6, 2, v1"); e(f"s_mov_b32 s11, {WS_KN}")
            e("buffer_load_dword v7, v6, s[24:27], s11 offen")
            e("s_lshl_b32 s18, s5, 10")
            for k in range(10):
                e(f"s_add_u32 m0, s18, {3*QB + k*4096}"); e(f"s_add_u32 s7, s18, {WS_K1 + k*4096}")
                e("buffer_load_dwordx4 v2, s[24:27], s7 offen lds")
    e("s_nop 7"); e("s_nop 3")
    e("v_cmp_gt_u32 vcc, 32, v1"); e("s_nop 1"); e("s_mov_b64 s[12:13], vcc")
    e(f"s_mov_b32 s9, {hexf(QSCALE)}")
    for i in range(4):
        Dq = O(i); odd = i % 2
        nr = 12 if odd else 10
        for r in range(nr): e(f"v_mul_f32 v{Dq+r}, s9, v{Dq+r}")
        PKq = 112
        for k in range(nr // 2): e(f"v_cvt_pk_bf16_f32 v{PKq+k}, v{Dq+2*k}, v{Dq+2*k+1}")
        if not odd:
            for k in range(4): e(f"v_mov_b32 v{Q1(i)+k}, v{PKq+k}")
            e(f"v_mov_b32 v{Q2(i)}, v{PKq+4}")
        else:
            e(f"v_mov_b32 v{Q1(i)}, v{PKq+1}"); e(f"v_mov_b32 v{Q1(i)+2}, v{PKq+3}"); e(f"v_mov_b32 v{Q2(i)}, v{PKq+5}")
            for (src_a, src_b, dst) in ((0, 2, 1), (2, 4, 3)):
                e(f"v_mov_b32 v120, v{PKq+src_a}"); e(f"v_mov_b32 v121, v{PKq+src_b}"); e("s_nop 1")
                e("v_permlane32_swap_b32 v120, v121"); e("s_nop 1")
                e(f"v_cndmask_b32 v{Q1(i)+dst}, v120, v121, s[12:13]")
    if not AP: stamp(e, 3)
    e("s_barrier")
    n0 = 10
    def emit_stage(lst, name):
        e("s_lshl_b32 s18, s5, 10")
        for k in range(30):
            if k == 29: e("s_cmp_lg_u32 s5, 0"); e(f"s_cbranch_scc1 {name}_x")
            e(f"s_add_u32 m0, s18, {k*4096}"); e(f"s_add_u32 s7, s18, {WS_K1 + QB + k*4096}")
            e("buffer_load_dwordx4 v2, s[24:27], s7 offen lds")
        e.label(f"{name}_x")
    st1 = None
    DEFER = int(os.environ.get("A_DEFER", "1"))
    def wpf():
        e("s_lshl_b32 s16, s4, 3"); e("s_add_u32 s16, s16, s3"); e("s_lshl_b32 s16, s16, 2"); e("s_add_u32 s16, s16, s5")
        e("v_lshlrev_b32 v201, 7, v1")
        e("s_lshl_b32 s17, s16, 13")
        e(f"s_add_u32 s18, s17, {512*8192}")
        e("buffer_load_dword v204, v201, s[28:31], s17 offen")
        e("buffer_load_dword v205, v201, s[28:31], s18 offen")
        e("buffer_load_dword v206, v201, s[32:35], s17 offen")
        e("buffer_load_dword v207, v201, s[32:35], s18 offen")
    if DEFER: n1 = 0; NPF = 0
    else:
        n1 = emit_stage(st1, "A_s1"); wpf(); NPF = 4
    for b in range(2):
        e(f"v_mov_b32 v{KV(b)+5}, 0x3f803f80"); e(f"v_mov_b32 v{KV(b)+6}, 0"); e(f"v_mov_b32 v{KV(b)+7}, 0")
    e(f"s_waitcnt vmcnt({n0 + n1 + NPF})")
    for dpp in ("quad_perm:[1,0,3,2]", "quad_perm:[2,3,0,1]", "row_half_mirror", "row_mirror"):
        e("s_nop 1"); e(f"v_max_f32_dpp v7, v7, v7 {dpp} row_mask:0xf bank_mask:0xf")
    e("ds_swizzle_b32 v8, v7 offset:0x401F"); e("s_waitcnt lgkmcnt(0)"); e("v_max_f32 v7, v7, v8")
    e("v_mov_b32 v8, v7"); e("s_nop 1"); e("v_permlane32_swap_b32 v7, v8"); e("s_nop 1"); e("v_max_f32 v7, v7, v8")
    e("v_cmp_gt_u32 vcc, 32, v1")
    e("s_mov_b64 s[12:13], vcc")
    for i in range(4):
        e(f"v_cndmask_b32 v{Q2(i)}, 0, v{Q2(i)}, s[12:13]")
        e("v_mov_b32 v8, 0")
        for k in range(4): e(f"v_dot2_f32_bf16 v8, v{Q1(i)+k}, v{Q1(i)+k}, v8")
        e(f"v_dot2_f32_bf16 v8, v{Q2(i)}, v{Q2(i)}, v8")
        e("s_nop 3"); e("v_mov_b32 v9, v8"); e("s_nop 1"); e("v_permlane32_swap_b32 v8, v9"); e("s_nop 1"); e("v_add_f32 v8, v8, v9")
        e("v_mul_f32 v8, v8, v7"); e("v_sqrt_f32 v8, v8"); e("s_nop 0")
        e(f"v_mul_f32 v8, {hexf(-1.001)}, v8")
        e(f"v_cvt_pk_bf16_f32 v9, v8, v8"); e("v_lshlrev_b32 v9, 16, v9"); e("v_sub_f32 v9, v8, v9")
        e(f"v_cvt_pk_bf16_f32 v9, v8, v9")
        e(f"v_cndmask_b32 v{Q2(i)+1}, 0, v9, s[12:13]")
        e(f"v_mov_b32 v{Q2(i)+2}, 0"); e(f"v_mov_b32 v{Q2(i)+3}, 0")
    e("s_mov_b32 s14, 0")
    e(f"s_waitcnt vmcnt({n1 + NPF}) lgkmcnt(0)")
    e("s_barrier")
    if AP == 1:
        stamp(e, 6); stamp_rt(e, 7); stamp_flush(e, 0, 58); e("s_endpgm")
    stamp(e, 4)
    inloop = [False]
    e.label("A_run")
    for i in range(4):
        for r in range(16): e(f"v_mov_b32 v{O(i)+r}, 0")
    for r in range(8): e(f"v_mov_b32 v{P+r}, 0")
    for r in range(4): e(f"v_mov_b32 v{KV(1)+12+r}, 0")
    e(f"v_add_u32 v{aK1}, {3*QB}, v2"); e(f"v_add_u32 v{aK2}, {3*QB + KV_K2}, v4")
    e(f"v_min_u32 v8, 19, v3"); e(f"v_mul_u32_u24 v8, {VP}, v8"); e("v_lshlrev_b32 v9, 4, v5"); e("v_add_u32 v8, v8, v9")
    e(f"v_add_u32 v{aV}, {3*QB + KV_V}, v8")
    A_NOLDS = int(os.environ.get("A_NOLDS", "0"))
    def ldK(b, joff):
        if A_NOLDS and inloop[0]: return
        e(f"ds_read_b128 {vr(KV(b),4)}, v{aK1} offset:{joff*1024}")
        e(f"ds_read_b32 v{KV(b)+4}, v{aK2} offset:{joff*128}")
    def ldV(b, joff):
        if A_NOLDS and inloop[0]: return
        e(f"ds_read_b128 {vr(KV(b)+8,4)}, v{aV} offset:{joff*64}")
        e(f"ds_read_b128 {vr(KV(b)+12,4)}, v{aV} offset:{joff*64+32}")
    def qk1(sb, b, i): return f"v_mfma_f32_32x32x16_bf16 {vr(S(sb),16)}, {vr(KV(b),4)}, {vr(Q1(i),4)}, 0"
    def qk2(sb, b, i): return f"v_mfma_f32_32x32x16_bf16 {vr(S(sb),16)}, {vr(KV(b)+4,4)}, {vr(Q2(i),4)}, {vr(S(sb),16)}"
    def pv(i, b, m): return f"v_mfma_f32_32x32x16_bf16 {vr(O(i),16)}, {vr(KV(b)+8+4*m,4)}, {vr(P+4*m,4)}, {vr(O(i),16)}"
    ldK(0, 0); ldV(0, 0)
    e("s_waitcnt lgkmcnt(0)")
    e(qk1(0, 0, 0)); e(qk2(0, 0, 0))
    e("s_nop 7"); e("s_nop 3")
    UN = int(os.environ.get("A_UN", "4"))
    NIT = 64 // UN
    e(f"s_mov_b32 s15, {NIT}")
    e("s_cmp_eq_u32 s14, 0"); e("s_cselect_b32 s20, -1, 0")
    e.label("A_loop")
    inloop[0] = True
    e("s_and_b32 s19, s15, s20")
    assert UN == 4
    e(f"s_mov_b32 s9, {QB}"); e("s_cmp_eq_u32 s15, 13"); e(f"s_cselect_b32 s9, {(-3*QB) & 0xffffffff}, s9")
    e(f"s_sub_u32 s21, s9, {12*1024}"); e(f"s_sub_u32 s22, s9, {12*128}"); e(f"s_sub_u32 s23, s9, {12*64}")
    e("s_and_b32 s9, s15, 3"); e("s_cmp_eq_u32 s9, 1")
    e("s_cselect_b32 s21, s21, 4096"); e("s_cselect_b32 s22, s22, 512"); e("s_cselect_b32 s23, s23, 256")
    for jj in range(UN):
        b = jj % 2
        for i in range(4):
            n = jj * 4 + i
            sb = n % 2
            i2 = (i + 1) % 4; b2 = b if i < 3 else 1 - b
            ip = (i - 1) % 4; bp = b if i > 0 else 1 - b
            def E(r): e(f"v_exp_f32 v{S(sb)+r}, v{S(sb)+r}")
            def C(k): e(f"v_cvt_pk_bf16_f32 v{P+k}, v{S(sb)+2*k}, v{S(sb)+2*k+1}")
            e(qk1(1 - sb, b2, i2))
            if i == 2:
                if jj == UN - 1: e(f"v_add_u32 v{aV}, s23, v{aV}"); ldV(1 - b, 0)
                else: ldV(1 - b, jj + 1)
            E(0); E(1); E(2); E(3)
            e(qk2(1 - sb, b2, i2))
            E(4); E(5); E(6); E(7); C(0); C(1)
            e(pv(ip, bp, 1))
            if i == 1 and jj == UN - 1:
                e(f"s_cmp_lg_u32 s19, {NIT - (16 // UN) + 1}"); e("s_cbranch_scc1 A_nost"); e("s_waitcnt vmcnt(0)"); e("s_barrier"); e.label("A_nost")
            if i == 1:
                if jj == UN - 1:
                    e(f"v_add_u32 v{aK1}, s21, v{aK1}"); e(f"v_add_u32 v{aK2}, s22, v{aK2}"); ldK(1 - b, 0)
                else: ldK(1 - b, jj + 1)
            if i == 0 and jj == 0 and DEFER:
                e(f"s_cmp_lg_u32 s19, {NIT}"); e("s_cbranch_scc1 A_nodef")
                emit_stage(st1, "A_s1"); wpf()
                e.label("A_nodef")
            E(8); E(9); E(10); E(11); C(2); C(3); E(12); E(13)
            e(pv(i, b, 0))
            E(14); E(15); C(4); C(5); C(6); C(7)
            if i == 2: e("s_waitcnt lgkmcnt(0)")
    e("s_sub_u32 s15, s15, 1"); e("s_cmp_lg_u32 s15, 0"); e("s_cbranch_scc1 A_loop")
    inloop[0] = False
    e("s_nop 1")
    e(pv(3, 1, 1))
    e("s_nop 7"); e("s_nop 3")
    e("s_cmp_lg_u32 s14, 0"); e("s_cbranch_scc1 A_fin")
    e(f"v_mov_b32 v10, {hexf(2.0**-40)}")
    e("s_mov_b64 s[16:17], 0")
    for i in range(4):
        e(f"v_cmp_nge_f32 vcc, v{O(i)+10}, v10"); e("s_nop 1"); e("s_or_b64 s[16:17], s[16:17], vcc")
    e("s_and_b32 s16, s16, -1")
    e("s_cbranch_scc0 A_fin")
    e("s_mov_b32 s14, 1")
    for i in range(4):
        e(f"v_mov_b32 v{Q2(i)+1}, 0"); e(f"v_mov_b32 v{O(i)}, 0xff800000")
    e("s_mov_b32 s15, 0")
    e.label("A_max")
    e("s_lshr_b32 s9, s15, 4"); e(f"s_mul_i32 s9, s9, {QB}"); e("s_and_b32 s10, s15, 15")
    e("s_lshl_b32 s11, s10, 10"); e("s_add_u32 s11, s11, s9"); e(f"v_add_u32 v{aK1}, s11, v2")
    e("s_lshl_b32 s11, s10, 7"); e("s_add_u32 s11, s11, s9"); e(f"s_add_u32 s11, s11, {KV_K2}"); e(f"v_add_u32 v{aK2}, s11, v4")
    ldK(0, 0); e("s_waitcnt lgkmcnt(0)")
    for i in range(4):
        e(qk1(0, 0, i)); e(qk2(0, 0, i)); e("s_nop 7"); e("s_nop 3")
        for r in range(0, 16, 2): e(f"v_max3_f32 v{O(i)}, v{S(0)+r}, v{S(0)+r+1}, v{O(i)}")
    e("s_add_u32 s15, s15, 1"); e("s_cmp_lg_u32 s15, 64"); e("s_cbranch_scc1 A_max")
    for i in range(4):
        e(f"v_mov_b32 v8, v{O(i)}"); e(f"v_mov_b32 v9, v{O(i)}"); e("s_nop 1"); e("v_permlane32_swap_b32 v8, v9"); e("s_nop 1")
        e("v_max_f32 v8, v8, v9"); e("v_sub_f32 v8, 0, v8")
        e(f"v_cvt_pk_bf16_f32 v9, v8, v8"); e("v_lshlrev_b32 v9, 16, v9"); e("v_sub_f32 v9, v8, v9")
        e(f"v_cvt_pk_bf16_f32 v9, v8, v9")
        e(f"v_cndmask_b32 v{Q2(i)+1}, 0, v9, s[12:13]")
    e("s_branch A_run")
    e.label("A_fin")
    stamp(e, 5)
    e("s_lshl_b32 s8, s6, 5"); e("s_lshl_b32 s9, s3, 2"); e("s_add_u32 s8, s8, s9"); e("s_lshl_b32 s8, s8, 10"); e(f"s_add_u32 s8, s8, {WS_O1}")
    e("s_lshl_b32 s9, s6, 12"); e("s_lshr_b32 s10, s3, 1"); e("s_lshl_b32 s10, s10, 10"); e("s_add_u32 s9, s9, s10")
    e("s_and_b32 s10, s3, 1"); e("s_lshl_b32 s10, s10, 9"); e("s_add_u32 s9, s9, s10"); e(f"s_add_u32 s9, s9, {WS_O2}")
    e("v_lshlrev_b32 v10, 4, v3")
    for i in range(4):
        e(f"v_mov_b32 v8, v{O(i)+10}"); e(f"v_mov_b32 v9, v{O(i)+10}"); e("s_nop 1"); e("v_permlane32_swap_b32 v8, v9"); e("s_nop 1")
        e("v_rcp_f32 v8, v8"); e("s_nop 0")
        for r in range(10): e(f"v_mul_f32 v{O(i)+r}, v8, v{O(i)+r}")
        for k in range(5): e(f"v_cvt_pk_bf16_f32 v{188+k}, v{O(i)+2*k}, v{O(i)+2*k+1}")
        e(f"buffer_store_dwordx4 {vr(188,4)}, v2, s[24:27], s8 offen offset:{i*1024}")
        e("s_mov_b32 exec_hi, 0")
        e(f"buffer_store_dword v192, v10, s[24:27], s9 offen offset:{i*4}")
        e("s_mov_b32 exec_hi, -1")
        e("s_nop 1")
    if PROF:
        e("s_waitcnt vmcnt(0)"); stamp(e, 6); stamp_rt(e, 7); stamp_flush(e, 0, 58)
    e("s_endpgm")


def gen_fusedK(e, roles):
    K = "main_kernel"
    kernel_head(e, K)
    e("s_cmp_ge_u32 s2, 256"); e("s_cbranch_scc1 MK_end")
    stamp_rt(e, 0); stamp(e, 1)
    if int(os.environ.get("CODEPF", "1")):
        e("s_getpc_b64 s[68:69]")
        e.label("MK_pc")
        e("v_lshrrev_b32 v250, 6, v0"); e("s_lshr_b32 s7, s2, 3"); e("s_lshl_b32 s7, s7, 2"); e("v_add_u32 v250, s7, v250")
        e("v_lshlrev_b32 v250, 3, v250"); e("v_and_b32 v251, 7, v0"); e("v_add_u32 v250, v250, v251"); e("v_lshlrev_b32 v250, 7, v250")
        e("v_and_b32 v251, 63, v0"); e("v_cmp_gt_u32 vcc, 8, v251"); e("s_nop 3"); e("s_mov_b64 s[8:9], vcc")
        e("s_mov_b32 s7, MK_codeend-MK_pc"); e("v_cmp_gt_u32 vcc, s7, v250"); e("s_nop 3"); e("s_and_b64 vcc, vcc, s[8:9]")
        e("s_and_saveexec_b64 s[8:9], vcc"); e("s_cbranch_execz MK_nopf")
        e("global_load_dword v252, v250, s[68:69]")
        e.label("MK_nopf")
        e("s_mov_b64 exec, s[8:9]")
    e("s_load_dwordx4 s[40:43], s[0:1], 0")
    e("s_load_dwordx4 s[44:47], s[0:1], 16")
    e("s_load_dwordx4 s[52:55], s[0:1], 48")
    e("s_load_dwordx2 s[56:57], s[0:1], 64")
    e("s_load_dwordx2 s[48:49], s[0:1], 80")
    e("s_load_dwordx4 s[64:67], s[0:1], 96")
    e("s_and_b32 s3, s2, 7"); e("s_lshr_b32 s4, s2, 3")
    e("v_lshrrev_b32 v2, 6, v0"); e("v_and_b32 v1, 63, v0"); e("s_nop 0"); e("v_readfirstlane_b32 s5, v2")
    e("s_cmp_ge_u32 s4, 16")
    e("s_cbranch_scc1 MK_role")
    e("s_lshr_b32 s6, s3, 1"); e("s_and_b32 s7, s3, 1"); e("s_and_b32 s8, s4, 3"); e("s_lshr_b32 s9, s4, 2")
    e("s_lshl_b32 s6, s6, 2"); e("s_add_u32 s4, s6, s8"); e("s_lshl_b32 s7, s7, 2"); e("s_add_u32 s3, s7, s9")
    e.label("MK_role")
    e("s_waitcnt lgkmcnt(0)")
    e("s_mov_b64 s[58:59], s[66:67]")
    srd(e, 24, 58, WS_END); srd(e, 28, 52, 576 * 9216); srd(e, 32, 56, 4608 * 1152); srd(e, 36, 54, 9216); srd(e, 60, 64, 256)
    srd(e, 12, 42, 576 * 1152); srd(e, 20, 48, 1152)
    e("s_lshr_b32 s50, s2, 3"); e("s_sub_u32 s50, s50, 16"); e("s_lshr_b32 s50, s50, 1")
    e("s_cmp_eq_u32 s50, 0"); e("s_cselect_b32 s50, s44, s46"); e("s_cselect_b32 s51, s45, s47")
    srd(e, 16, 50, 576 * 36)
    srd(e, 64, 40, 2048 * 1152)
    if int(os.environ.get("COOPX", "1")):
        e("s_lshr_b32 s7, s2, 3"); e("s_lshl_b32 s7, s7, 2"); e("s_add_u32 s7, s7, s5")
        e("s_and_b32 s8, s2, 7"); e("s_lshr_b32 s9, s8, 1")
        e("v_lshlrev_b32 v250, 7, v1")
        e("s_mul_i32 s10, s7, 4608"); e("s_mul_i32 s11, s9, 589824"); e("s_add_u32 s10, s10, s11")
        e("s_mov_b32 exec_hi, 15")
        e("buffer_load_dword v251, v250, s[64:67], s10 offen")
        e("s_mov_b64 exec, -1")
    e("s_lshr_b32 s7, s2, 3"); e("s_cmp_ge_u32 s7, 16")
    if roles == "attn": e("s_cbranch_scc0 MK_end"); e("s_branch A_start")
    elif roles == "mlp": e("s_cbranch_scc1 MK_end")
    else: e("s_cbranch_scc1 A_start")
    gen_mlp4.gen_mlp4(e, xdma, xfrag_addr, coop)
    gen_attn_f(e)
    e.label("MK_end"); e("s_endpgm")
    e.label("MK_codeend")
    return kernel_desc(K, 512, 100, 256)
def add(body, descs, launches, which):
    roles = "both"
    if which in ("attn", "mlp"): roles = which
    descs.append(gen_fusedK(body, roles)); launches.append(f"; @launch kernel=main_kernel grid=(256,1,1) block=(256,1,1) lds={LDS_MAIN}")
    import gen_final
    gen_final.add(body, descs, launches)
```

```python
import os, math
from gen import *
X_NODMA = int(os.environ.get("X_NODMA", "0")); X_NOGELU = int(os.environ.get("X_NOGELU", "0"))
ST_SC1 = " sc1" if int(os.environ.get("ST_SC1", "1")) else ""
PRERED = int(os.environ.get('PRERED', '1'))
SLOT = [0, 36864, 73728, 110592]; BIAS = 147456

GWL = BIAS + 2304
def gen_mlp4(e, xdma, xfrag_addr, coop):
    YF = lambda s: ar(4 * s, 4)
    NR = 8
    RING = lambda k: 144 + 4 * (k % NR)
    SB = lambda b, u: 16 + 32 * b + 16 * u
    PR = lambda c: 112 + 8 * c
    PK = 80
    T = [96, 97, 98, 99, 100, 101]
    aX = [104, 105, 106, 107]; aY = [108, 109, 110, 111]
    dW1 = [2, 3, 4, 5]; dW2 = [6, 7, 8, 9]; aB, cC0, vL16 = 10, 11, 12
    D = 6
    e.label("M_start")
    e("s_lshl_b32 s6, s4, 2"); e("s_add_u32 s6, s6, s5")
    e(f"v_lshlrev_b32 v{vL16}, 4, v1")
    e("v_lshlrev_b32 v13, 3, v0"); e("v_lshlrev_b32 v14, 4, v0")
    e("v_cmp_gt_u32 vcc, 144, v0"); e("s_nop 1"); e("s_mov_b64 s[46:47], vcc")
    e("v_and_b32 v74, 31, v1"); e("v_lshrrev_b32 v75, 5, v1")
    xdma(e, 40)
    e("v_and_b32 v15, 3, v1"); e("v_lshlrev_b32 v15, 4, v15")
    e("v_lshrrev_b32 v16, 5, v1"); e("v_lshlrev_b32 v16, 6, v16"); e("v_add_u32 v15, v15, v16")
    e("v_bfe_u32 v16, v1, 2, 3")
    e(f"v_mul_u32_u24 v{dW1[0]}, 9216, v16"); e(f"v_add_u32 v{dW1[0]}, v{dW1[0]}, v15")
    e(f"v_mul_u32_u24 v{dW2[0]}, 1152, v16"); e(f"v_add_u32 v{dW2[0]}, v{dW2[0]}, v15")
    S1, S2 = 8 * 9216, 8 * 1152
    for q in range(1, 4):
        e(f"v_add_u32 v{dW1[q]}, {q*(S1-1024)}, v{dW1[0]}"); e(f"v_add_u32 v{dW2[q]}, {q*(S2-1024)}, v{dW2[0]}")
    e("v_lshrrev_b32 v15, 5, v1")
    e("v_bfe_u32 v16, v1, 2, 2"); e("v_lshlrev_b32 v16, 6, v16")
    e("v_bfe_u32 v17, v1, 4, 1"); e("v_lshlrev_b32 v17, 5, v17"); e("v_add_u32 v16, v16, v17")
    e("v_and_b32 v17, 3, v1"); e("v_lshlrev_b32 v17, 3, v17"); e("v_add_u32 v16, v16, v17")
    e("v_lshlrev_b32 v17, 10, v15"); e("v_add_u32 v17, v17, v16")
    e("v_lshlrev_b32 v18, 8, v15"); e("v_add_u32 v18, v18, v16")
    for k in range(4):
        e(f"v_add_u32 v{aX[k]}, {SLOT[k]}, v17"); e(f"v_add_u32 v{aY[k]}, {SLOT[k]}, v18")
    e("v_lshlrev_b32 v15, 4, v15"); e(f"v_add_u32 v{aB}, {BIAS}, v15")
    e(f"v_mov_b32 v{cC0}, {hexf(GC0)}")
    e(f"s_mul_i32 s40, s5, {72*9216}"); e("s_mul_i32 s42, s3, 1152"); e("s_add_u32 s40, s40, s42")
    e(f"s_mul_i32 s41, s3, {576*1152}"); e(f"s_mul_i32 s42, s5, {72*1152}"); e("s_add_u32 s41, s41, s42")
    e("s_mul_i32 s43, s5, 9216")
    vq = []
    def vm_issue(tag, ins):
        for x in ins: e(x)
        vq.append(tag)
    def vm_need(tag):
        idx = max((i for i, t in enumerate(vq) if t == tag), default=None)
        if idx is None: return None
        n = len(vq) - 1 - idx
        del vq[:idx + 1]
        return n
    def dma_groups(phi, ybase=None, solo=False):
        slot = SLOT[phi % 4]; out = []
        t, hh = phi // 2, phi % 2
        for ii in range(9):
            q = 0 if solo else ii % 4; g = []
            if phi < 18:
                if q == 0: g += [f"s_add_u32 m0, s43, {slot + ii*1024}", f"s_add_u32 s44, s40, {hh*288*9216 + ii*S1 + t*128}"]
                g.append(f"buffer_load_dwordx4 v{dW1[q]}, s[28:31], s44 offen offset:{q*1024} lds")
            else:
                np_ = (t - 9) if ybase is None else (t - ybase)
                if q == 0: g += [f"s_add_u32 m0, s43, {slot + ii*1024}", f"s_add_u32 s44, s41, {hh*288*1152 + ii*S2 + np_*128}"]
                g.append(f"buffer_load_dwordx4 v{dW2[q]}, s[32:35], s44 offen offset:{q*1024} lds")
            out.append(g)
        return out
    class LT:
        def __init__(self): self.q = []
        def issue(self, tag, ins):
            for x in ins: e(x); self.q.append(tag)
        def wait(self, tag):
            idx = max((i for i, t in enumerate(self.q) if t == tag), default=None)
            if idx is None: return
            n = len(self.q) - 1 - idx
            e(f"s_waitcnt lgkmcnt({min(n, 15)})")
            self.q = self.q[idx + 1:] if n <= 15 else self.q[len(self.q) - 15:]
    lt = LT()
    def frag_rd(phi, i):
        s, u = i // 2, i % 2
        d = RING(phi * 36 + i)
        if phi < 18:
            a = aX[phi % 4]; o1 = s * 2048 + u * 512; o2 = o1 + 256
        else:
            a = aY[phi % 4]; o1 = s * 2048 + u * 512; o2 = o1 + 1024
        return [f"ds_read_b64_tr_b16 {ar(d,2)}, v{a} offset:{o1}", f"ds_read_b64_tr_b16 {ar(d+2,2)}, v{a} offset:{o2}"]
    def mfma(phi, i):
        t, hh = phi // 2, phi % 2
        s, u = i // 2, i % 2
        ks = 18 * hh + s
        A = ar(RING(phi * 36 + i), 4); Dst = vr(SB(t % 2, u), 16)
        if phi < 18: return f"v_mfma_f32_32x32x16_bf16 {Dst}, {A}, {YF(ks)}, {Dst}"
        B = vr(PR(ks // 2) + 4 * (ks % 2), 4)
        C = "0" if ks == 0 else Dst
        return f"v_mfma_f32_32x32x16_bf16 {Dst}, {A}, {B}, {C}"
    def gelu(x, t):
        return [f"v_fma_f32 v{t}, v{x}, v{x}, v{cC0}", f"v_mul_f32 v{t}, v{x}, v{t}", f"v_exp_f32 v{t}, -v{t}",
                f"v_add_f32 v{t}, 1.0, v{t}", f"v_rcp_f32 v{t}, v{t}", f"v_mul_f32 v{x}, v{x}, v{t}"]
    def gelu_tile(b, u, c):
        out = []
        base = SB(b, u)
        for g0 in (0, 3, 6, 9, 12, 14):
            grp = list(range(g0, g0 + 3)) if g0 < 12 else [g0, g0 + 1]
            seqs = [gelu(base + r, T[(i + (3 if (g0 // 3) % 2 else 0)) % 6]) for i, r in enumerate(grp)]
            for op in range(6):
                for sq in seqs: out.append(sq[op])
        for k in range(8): out.append(f"v_cvt_pk_bf16_f32 v{PR(c)+k}, v{base+2*k}, v{base+2*k+1}")
        return out
    def bias_rd(b, u, c): return [f"ds_read_b128 {vr(SB(b,u)+4*q,4)}, v{aB} offset:{c*128+q*32}" for q in range(4)]
    def cost(x): return 8 if x.startswith(("v_exp", "v_rcp")) else 4
    WP = 2
    def need(gk):
        if gk % WP == 0:
            for kk in range(gk + WP - 1, gk - 1, -1):
                if ("f", kk) in lt.q:
                    lt.wait(("f", kk)); return
    def spread(items, n):
        tot = sum(cost(x) for x in items if isinstance(x, str)) or 1
        out = [[] for _ in range(n)]; acc = 0; g = 0
        for x in items:
            while g < n - 1 and acc >= tot * (g + 1) / n: g += 1
            out[g].append(x); acc += cost(x) if isinstance(x, str) else 4
        return out
    def phase(phi, fills, dma, next_phi, extra=None, ybase=None, pend=None):
        dma = list(dma)
        for i in range(36):
            gk = phi * 36 + i
            e(mfma(phi, i))
            nxt = i + D
            if nxt == 36 and next_phi is not None:
                n = vm_need(("d", next_phi))
                if n is not None: e(f"s_waitcnt vmcnt({n})")
                e("s_barrier")
            if nxt < 36: lt.issue(("f", gk + D), frag_rd(phi, nxt))
            elif next_phi is not None: lt.issue(("f", gk + D), frag_rd(next_phi, nxt - 36))
            if extra and i in extra: extra[i]()
            if dma and i % 4 == 1:
                g = dma.pop(0)
                if not X_NODMA: vm_issue(("d", phi + 3), g)
            if pend:
                pend(i)
            if not X_NOGELU:
                for x in fills[i]:
                    if isinstance(x, tuple): vm_issue(x[0], [x[1]])
                    else: e(x)
            need(gk + 1)
        assert not dma
    XR = 112
    vq.extend([("x", 0)] * 36)
    e("s_mul_i32 s42, s3, 1152")
    e("s_mov_b64 s[50:51], exec"); e("s_mov_b64 exec, s[46:47]")
    vm_issue("bias", ["buffer_load_dwordx2 v[60:61], v13, s[36:39], s42 offen"])
    e("s_mov_b64 exec, s[50:51]")
    e("v_cmp_gt_u32 vcc, 72, v0"); e("s_nop 1"); e("s_mov_b64 s[54:55], vcc"); e("s_mov_b64 exec, s[54:55]")
    vm_issue("gw", ["buffer_load_dwordx4 v[64:67], v14, s[20:23], 0 offen"])
    e("s_mov_b64 exec, s[50:51]")
    coop(e, 48); vq.extend(["pf", "pf"])
    xfrag_addr(e, 68, 72)
    n = vm_need(("x", 0)); e(f"s_waitcnt vmcnt({n})")
    for s_ in range(36): e(f"ds_read_b128 {vr(XR+4*s_,4)}, v{68+s_%4} offset:{(s_//4)*128}")
    n = vm_need("gw"); e(f"s_waitcnt vmcnt({n}) lgkmcnt(0)"); stamp(e, 2); e("s_barrier")
    pend = [(("d", ph), g) for ph in range(3) for g in dma_groups(ph, solo=True)]
    e("s_mov_b64 exec, s[46:47]")
    e("v_and_b32 v63, 0xffff0000, v61"); e("v_lshlrev_b32 v62, 16, v61"); e("v_and_b32 v61, 0xffff0000, v60"); e("v_lshlrev_b32 v60, 16, v60")
    for r in range(60, 64): e(f"v_mul_f32 v{r}, {hexf(KAPPA)}, v{r}")
    e(f"v_add_u32 v76, {BIAS}, v14"); e("ds_write_b128 v76, v[60:63]")
    e("s_mov_b64 exec, s[54:55]"); e(f"v_add_u32 v76, {GWL}, v14"); e("ds_write_b128 v76, v[64:67]")
    e("s_mov_b64 exec, s[50:51]")
    A0, A1, A2 = 78, 79, 80
    e("s_mov_b32 s56, 0x3f803f80")
    e(f"v_mov_b32 v{A0}, 0"); e(f"v_mov_b32 v{A1}, 0"); e(f"v_mov_b32 v81, 0"); e(f"v_mov_b32 v82, 0")
    for i in range(144):
        e(f"v_dot2_f32_bf16 v{A0 if i%2==0 else 81}, v{XR+i}, s56, v{A0 if i%2==0 else 81}")
        e(f"v_dot2_f32_bf16 v{A1 if i%2==0 else 82}, v{XR+i}, v{XR+i}, v{A1 if i%2==0 else 82}")
        if i % 5 == 0 and pend:
            tag, g = pend.pop(0); vm_issue(tag, g)
    assert not pend
    e("s_nop 3")
    e(f"v_add_f32 v{A0}, v{A0}, v81"); e(f"v_add_f32 v{A1}, v{A1}, v82")
    for r in (A0, A1):
        e(f"v_mov_b32 v83, v{r}"); e("s_nop 1"); e(f"v_permlane32_swap_b32 v{r}, v83"); e("s_nop 1"); e(f"v_add_f32 v{r}, v{r}, v83")
    e(f"v_mul_f32 v{A0}, {hexf(1/576)}, v{A0}"); e(f"v_mul_f32 v{A1}, {hexf(1/576)}, v{A1}")
    e(f"v_fma_f32 v{A1}, -v{A0}, v{A0}, v{A1}"); e(f"v_max_f32 v{A1}, 0, v{A1}"); e(f"v_add_f32 v{A1}, {hexf(1e-5)}, v{A1}")
    e(f"v_rsq_f32 v{A1}, v{A1}"); e("s_nop 0"); e(f"v_mul_f32 v{A1}, {hexf(KAPPA)}, v{A1}")
    e(f"v_mul_f32 v{A0}, v{A0}, v{A1}")
    e("s_waitcnt lgkmcnt(0)"); e("s_barrier")
    e("s_cmp_lg_u32 s3, 2"); e("s_cbranch_scc1 M_nogate")
    e("v_lshlrev_b32 v83, 4, v75"); e(f"v_add_u32 v83, {GWL}, v83"); e(f"v_mov_b32 v{A2}, 0")
    for g0 in range(0, 36, 4):
        for k in range(4): e(f"ds_read_b128 {vr(84+4*k,4)}, v83 offset:{(g0+k)*32}")
        e("s_waitcnt lgkmcnt(0)")
        for k in range(4):
            for j in range(4): e(f"v_dot2_f32_bf16 v{A2}, v{XR+4*(g0+k)+j}, v{84+4*k+j}, v{A2}")
    e("s_nop 3"); e(f"v_mov_b32 v83, v{A2}"); e("s_nop 1"); e(f"v_permlane32_swap_b32 v{A2}, v83"); e("s_nop 1"); e(f"v_add_f32 v{A2}, v{A2}, v83")
    e(f"v_mul_f32 v{A2}, {hexf(-math.log2(math.e))}, v{A2}"); e(f"v_exp_f32 v{A2}, v{A2}"); e("s_nop 0")
    e(f"v_add_f32 v{A2}, 1.0, v{A2}"); e(f"v_rcp_f32 v{A2}, v{A2}")
    e("s_lshl_b32 s53, s6, 7"); e(f"s_add_u32 s53, s53, {WS_G}"); e("v_lshlrev_b32 v83, 2, v74")
    e("s_mov_b32 exec_hi, 0"); e(f"buffer_store_dword v{A2}, v83, s[24:27], s53 offen"); e("s_mov_b32 exec_hi, -1")
    e("s_waitcnt vmcnt(0)")
    e.label("M_nogate")
    e(f"v_mov_b32 v84, v{A1}"); e(f"v_mov_b32 v85, v{A1}"); e(f"v_sub_f32 v86, 0, v{A0}"); e(f"v_sub_f32 v87, 0, v{A0}")
    for i in range(144):
        t0 = 16 + 2 * (i % 4)
        e(f"v_lshlrev_b32 v{t0}, 16, v{XR+i}"); e(f"v_and_b32 v{t0+1}, 0xffff0000, v{XR+i}")
        e(f"v_pk_fma_f32 v[{t0}:{t0+1}], v[{t0}:{t0+1}], v[84:85], v[86:87]")
        if i > 0:
            p0 = 16 + 2 * ((i - 1) % 4)
            e(f"v_cvt_pk_bf16_f32 v{p0}, v{p0}, v{p0+1}"); e(f"v_accvgpr_write_b32 a{i-1}, v{p0}")
    p0 = 16 + 2 * (143 % 4)
    e(f"v_cvt_pk_bf16_f32 v{p0}, v{p0}, v{p0+1}"); e(f"v_accvgpr_write_b32 a143, v{p0}")
    if int(os.environ.get("DBG_Y", "0")):
        e("s_mul_i32 s53, s6, 36864")
        for s_ in range(36):
            e(f"s_add_u32 s44, s53, {s_*1024}"); e("s_nop 4")
            e(f"buffer_store_dwordx4 {ar(4*s_,4)}, v{vL16}, s[24:27], s44 offen")
        e("s_waitcnt vmcnt(0)")
    n = vm_need(("d", 0)); e(f"s_waitcnt vmcnt({n})")
    stamp(e, 3)
    e("s_barrier")
    lt.issue("b", bias_rd(0, 0, 0) + bias_rd(0, 1, 1))
    for k in range(D): lt.issue(("f", k), frag_rd(0, k))
    lt.wait("b")
    need(0)
    def pend_fn(phi): return None
    for t in range(9):
        fl = []
        if t > 0:
            fl = gelu_tile(1 - t % 2, 0, 2 * (t - 1)) + gelu_tile(1 - t % 2, 1, 2 * (t - 1) + 1)
        buckets = [[] for _ in range(72)]
        if fl:
            sp = spread(fl, 62)
            for i in range(62): buckets[3 + i] = sp[i]
        for hh in range(2):
            phi = 2 * t + hh
            extra = {}
            if hh == 1 and t < 8:
                extra[30] = (lambda tt=t: lt.issue("b", bias_rd((tt + 1) % 2, 0, 2 * (tt + 1)) + bias_rd((tt + 1) % 2, 1, 2 * (tt + 1) + 1)))
            dm = dma_groups(phi + 3)
            phase(phi, buckets[36 * hh: 36 * hh + 36], dm, phi + 1, extra)
        if t == 0:
            stamp(e, 4)
    def epi(b, np_imm):
        out = []
        for u in range(2):
            base = SB(b, u)
            for k in range(8): out.append(f"v_cvt_pk_bf16_f32 v{PK+8*u+k}, v{base+2*k}, v{base+2*k+1}")
            out.append((("s", 0), f"buffer_store_dwordx4 {vr(PK+8*u,4)}, v{vL16}, s[24:27], s52 offen offset:{u*2048}{ST_SC1}"))
            out.append((("s", 0), f"buffer_store_dwordx4 {vr(PK+8*u+4,4)}, v{vL16}, s[24:27], s52 offen offset:{u*2048+1024}{ST_SC1}"))
        return out
    e("s_lshl_b32 s52, s3, 6"); e("s_add_u32 s52, s52, s6"); e(f"s_mul_i32 s52, s52, {18*2048}"); e(f"s_add_u32 s52, s52, {WS_P}")
    def ystep(t, first=False, ybase=9, last=False):
        if first:
            fl = gelu_tile(1 - t % 2, 0, 16) + gelu_tile(1 - t % 2, 1, 17)
            sp = spread(fl, 56); buckets = [[] for _ in range(72)]
            for i in range(56): buckets[3 + i] = sp[i]
        else:
            fl = epi(1 - t % 2, 0)
            buckets = [[] for _ in range(72)]
            pos = 3
            for x in fl:
                while pos % 4 == 1: pos += 1
                buckets[pos].append(x)
                if len(buckets[pos]) >= 2 or isinstance(x, tuple): pos += 1
            buckets[pos + 1].append("s_add_u32 s52, s52, 4096")
        for hh in range(2):
            phi = 2 * t + hh
            nphi = phi + 1
            phase(phi, buckets[36 * hh: 36 * hh + 36], [] if (last and phi + 3 >= 36) else dma_groups(phi + 3, ybase), None if phi == 35 else nphi)
    ystep(9, first=True)
    e("s_mov_b32 s15, 3")
    vq_save = list(vq); lq_save = [(t[0], t[1] - 20 * 36) if isinstance(t, tuple) else t for t in lt.q]
    e.label("M_loop")
    ystep(10); ystep(11)
    vq_n = [(t[0], t[1] - 4) if t[0] == "d" else t for t in vq]
    lq_n = [(t[0], t[1] - 24 * 36) if isinstance(t, tuple) else t for t in lt.q]
    assert lq_n == lq_save, (lq_n, lq_save)
    e("s_add_u32 s41, s41, 256")
    e("s_sub_u32 s15, s15, 1"); e("s_cmp_lg_u32 s15, 0"); e("s_cbranch_scc1 M_loop")
    LOOPCHK.append((vq_save, vq_n))
    for i, tg in enumerate(vq):
        if tg[0] == "d": vq[i] = ("d", tg[1] + 8)
    lt.q[:] = [(tg[0], tg[1] + 8 * 36) if isinstance(tg, tuple) else tg for tg in lt.q]
    ystep(16, ybase=15, last=True); ystep(17, ybase=15, last=True)
    e("s_nop 7"); e("s_nop 3")
    stamp(e, 5)
    for x in epi(1, 0):
        if isinstance(x, tuple): e("s_nop 0"); e(x[1])
        else: e(x)
    if PRERED:
        e("s_waitcnt vmcnt(0)"); e("s_barrier")
        e("s_lshl_b32 s9, s4, 3"); e("s_add_u32 s9, s9, 64")
        e("v_mov_b32 v13, 0"); e("v_mov_b32 v14, 1")
        e("s_cmp_lg_u32 s5, 0"); e("s_cbranch_scc1 M_nosig")
        e("s_mov_b64 exec, 1")
        e("buffer_atomic_add v14, v13, s[60:63], s9 offen")
        e.label("M_poll")
        e("buffer_load_dword v15, v13, s[60:63], s9 offen sc1")
        e("s_waitcnt vmcnt(0)")
        e("v_readfirstlane_b32 s10, v15"); e("s_nop 3")
        e("s_cmp_ge_u32 s10, 8"); e("s_cbranch_scc1 M_polled")
        e("s_sleep 1"); e("s_branch M_poll")
        e.label("M_polled")
        e("s_mov_b64 exec, -1")
        e.label("M_nosig")
        e("s_barrier")
        e("s_mul_i32 s11, s3, 18"); e("s_add_u32 s11, s11, s5")
        e(f"s_mul_i32 s12, s4, {4*18*2048}")
        e("s_lshl_b32 s13, s11, 10"); e("s_add_u32 s12, s12, s13")
        e(f"s_add_u32 s13, s12, {WS_P}"); e(f"s_add_u32 s14, s12, {WS_B}")
        e("s_mov_b32 s16, 0x3f80"); e("s_mov_b32 s17, 0x3f800000")
        for k in range(5):
            if k == 4: e("s_cmp_ge_u32 s5, 2"); e("s_cbranch_scc1 M_skip5a")
            for sp in range(NSPLIT):
                e(f"s_add_u32 s18, s13, {sp*64*18*2048 + k*4096}")
                e(f"buffer_load_dwordx4 {vr(96+32*k+4*sp,4)}, v{vL16}, s[24:27], s18 offen sc1")
            if k == 4: e.label("M_skip5a")
        for k in range(5):
            if k == 4: e("s_cmp_ge_u32 s5, 2"); e("s_cbranch_scc1 M_skip5b")
            if k == 0: e("s_waitcnt vmcnt(0)")
            for sp in range(NSPLIT):
                for j in range(4):
                    src = 96 + 32 * k + 4 * sp + j
                    c0 = "0" if sp == 0 else f"v{16+2*j}"; c1 = "0" if sp == 0 else f"v{17+2*j}"
                    e(f"v_dot2_f32_bf16 v{16+2*j}, v{src}, s16, {c0}"); e(f"v_dot2_f32_bf16 v{17+2*j}, v{src}, s17, {c1}")
            e("s_nop 3")
            for j in range(4): e(f"v_cvt_pk_bf16_f32 v{24+j+4*(k%2)}, v{16+2*j}, v{17+2*j}")
            e(f"s_add_u32 s18, s14, {k*4096}")
            e(f"buffer_store_dwordx4 {vr(24+4*(k%2),4)}, v{vL16}, s[24:27], s18 offen")
            if k == 4: e.label("M_skip5b")
    if PROF:
        e("s_waitcnt vmcnt(0)"); stamp(e, 6); stamp_rt(e, 7); stamp_flush(e, 0, 58)
    e("s_endpgm")
LOOPCHK = []
```

```python
import math, sys, os
from gen import *
import gen_mlp4
LDS_MAIN = 4 * QB + 1024

def xdma(e, base):
    e("s_mov_b32 s42, 911"); e("s_mul_i32 s44, s6, 36864"); e(f"s_add_u32 s49, s44, {16*1152}"); e("s_mul_i32 s45, s5, 36864")
    t0, t1, t2 = base, base + 1, base + 2
    for ii in range(18):
        d = base + 3 + ii % 2
        e(f"v_add_u32 v{t0}, {64*ii}, v1")
        e(f"v_mul_lo_u32 v{t1}, v{t0}, s42"); e(f"v_lshrrev_b32 v{t1}, 16, v{t1}")
        e(f"v_mul_u32_u24 v{t2}, 72, v{t1}"); e(f"v_sub_u32 v{t0}, v{t0}, v{t2}")
        e(f"v_bfe_u32 v{t2}, v{t1}, 1, 3"); e(f"v_xor_b32 v{t0}, v{t0}, v{t2}"); e(f"v_lshlrev_b32 v{t0}, 4, v{t0}")
        e(f"v_mul_u32_u24 v{t1}, 1152, v{t1}"); e(f"s_add_u32 m0, s45, {ii*1024}"); e(f"v_add_u32 v{d}, v{t0}, v{t1}")
        e(f"buffer_load_dwordx4 v{d}, s[64:67], s44 offen lds")
        e(f"s_add_u32 m0, s45, {18432 + ii*1024}"); e("s_nop 0")
        e(f"buffer_load_dwordx4 v{d}, s[64:67], s49 offen lds")
def coop(e, base):
    e("s_lshr_b32 s44, s2, 3"); e("s_lshl_b32 s44, s44, 2"); e("s_add_u32 s44, s44, s5")
    e("s_and_b32 s45, s2, 1")
    e(f"v_lshlrev_b32 v{base}, 7, v1")
    e("s_mul_i32 s49, s44, 5248")
    e(f"buffer_load_dword v{base+1}, v{base}, s[12:15], s49 offen")
    e("s_mul_i32 s49, s44, 36"); e(f"v_add_u32 v{base+2}, s49, v1")
    e(f"v_lshrrev_b32 v{base+3}, 3, v{base+2}"); e(f"v_mul_u32_u24 v{base+3}, 9216, v{base+3}")
    e(f"v_bfe_u32 v{base}, v{base+2}, 1, 2"); e(f"v_mul_u32_u24 v{base}, 1152, v{base}"); e(f"v_add_u32 v{base+3}, v{base+3}, v{base}")
    e(f"v_and_b32 v{base}, 1, v{base+2}"); e(f"v_lshlrev_b32 v{base}, 7, v{base}"); e(f"v_add_u32 v{base+3}, v{base+3}, v{base}")
    e("s_mul_i32 s49, s45, 4608")
    e(f"buffer_load_dword v{base+4}, v{base+3}, s[28:31], s49 offen")

def xfrag_addr(e, dst, tmp):
    e(f"v_and_b32 v{tmp}, 31, v1"); e(f"v_bfe_u32 v{tmp+1}, v{tmp}, 1, 3"); e(f"v_mul_u32_u24 v{tmp}, 1152, v{tmp}")
    e("s_mul_i32 s45, s5, 36864"); e(f"v_add_u32 v{tmp}, s45, v{tmp}")
    for j in range(4):
        e(f"v_lshrrev_b32 v{dst+j}, 5, v1"); e(f"v_add_u32 v{dst+j}, {2*j}, v{dst+j}"); e(f"v_xor_b32 v{dst+j}, v{dst+j}, v{tmp+1}")
        e(f"v_lshlrev_b32 v{dst+j}, 4, v{dst+j}"); e(f"v_add_u32 v{dst+j}, v{tmp}, v{dst+j}")

def gen_attn_f(e):
    Q1 = lambda i: 16 + 8 * i
    Q2 = lambda i: 20 + 8 * i
    O = lambda i: 48 + 16 * i
    S = lambda b: 112 + 16 * b
    P = 144
    KV = lambda b: 152 + 16 * b
    aK1, aK2, aV = 184, 185, 186
    e.label("A_start")
    e("s_sub_u32 s4, s4, 16")
    e("s_lshl_b32 s6, s3, 1"); e("s_and_b32 s7, s4, 1"); e("s_lshr_b32 s3, s4, 1"); e("s_add_u32 s4, s6, s7")
    e("s_lshl_b32 s6, s4, 2"); e("s_add_u32 s6, s6, s5")
    e("v_lshlrev_b32 v2, 4, v1")
    e("v_and_b32 v3, 31, v1"); e("v_lshlrev_b32 v4, 2, v3")
    e("v_lshrrev_b32 v5, 5, v1")
    xdma(e, 112)
    coop(e, 120)
    e("s_mul_i32 s7, s3, 144")
    e(f"s_mul_i32 s8, s5, {144*1152}"); e("s_add_u32 s8, s8, s7")
    e("s_mov_b32 s9, 5462")
    for j in range(3):
        e(f"v_add_u32 v131, {64*j}, v1"); e("v_mul_lo_u32 v132, v131, s9"); e("v_lshrrev_b32 v132, 16, v132")
        e("v_mul_u32_u24 v133, 12, v132"); e("v_sub_u32 v131, v131, v133"); e("v_lshlrev_b32 v131, 4, v131")
        e("v_mul_u32_u24 v132, 1152, v132"); e(f"v_add_u32 v{134+j}, v131, v132")
    xfrag_addr(e, 146, 131)
    e("v_lshlrev_b32 v131, 3, v5"); e("v_bfe_u32 v132, v1, 2, 2"); e("v_add_u32 v131, v131, v132"); e("v_mul_u32_u24 v137, 192, v131")
    e("v_bfe_u32 v131, v1, 4, 1"); e("v_lshlrev_b32 v131, 5, v131"); e("v_add_u32 v137, v137, v131")
    e("v_and_b32 v131, 3, v1"); e("v_lshlrev_b32 v131, 3, v131"); e("v_add_u32 v137, v137, v131")
    e(f"v_add_u32 v138, {288*192}, v137")
    KVL = 110592
    e("s_cmp_ge_u32 s3, 2"); e("s_cbranch_scc1 A_nokv0")
    e("v_lshlrev_b32 v150, 4, v0")
    for k in range(6):
        e(f"s_mov_b32 s9, {k*4096}"); e(f"buffer_load_dwordx4 {vr(208+4*k,4)}, v150, s[16:19], s9 offen")
    e("s_mov_b32 s9, 58255")
    for k in range(6):
        e(f"v_lshlrev_b32 v151, 2, v0"); e(f"v_add_u32 v151, {k*1024}, v151")
        e("v_mul_lo_u32 v152, v151, s9"); e("v_lshrrev_b32 v152, 19, v152")
        e("v_mul_u32_u24 v153, 9, v152"); e("v_sub_u32 v151, v151, v153")
        e("v_lshlrev_b32 v152, 6, v152"); e(f"v_add_u32 v152, {KVL}, v152")
        for j in range(4):
            e(f"v_add_u32 v153, {j}, v151"); e("v_cmp_lt_u32 vcc, 8, v153"); e("v_lshlrev_b32 v153, 2, v153")
            e(f"v_add_u32 v{232+4*k+j}, v152, v153"); e(f"v_add_u32 v153, 28, v{232+4*k+j}")
            e(f"v_cndmask_b32 v{232+4*k+j}, v{232+4*k+j}, v153, vcc")
    tr_lane_addr(e, 154, 1, 152, 153, 8); e(f"v_add_u32 v154, {KVL}, v154")
    e.label("A_nokv0")
    for c in range(3):
        e(f"s_add_u32 s9, s5, {4*c}"); e("s_mul_i32 s10, s9, 43691"); e("s_lshr_b32 s10, s10, 17")
        e("s_mul_i32 s11, s10, 3"); e("s_sub_u32 s11, s9, s11")
        e(f"s_mul_i32 s10, s10, {16*1152}"); e(f"s_add_u32 s{50+c}, s10, s7")
        e("s_cmp_eq_u32 s11, 1"); e("s_cselect_b64 s[54:55], -1, 0"); e(f"v_cndmask_b32 v{140+c}, v134, v135, s[54:55]")
        e("s_cmp_eq_u32 s11, 2"); e("s_cselect_b64 s[54:55], -1, 0"); e(f"v_cndmask_b32 v{140+c}, v{140+c}, v136, s[54:55]")
    e("s_lshl_b32 s53, s5, 10")
    def wdma_unit(k):
        return [f"s_add_u32 m0, s53, {k*4096}", f"s_add_u32 s10, s{50+k%3}, {(k//3)*4*16*1152}", f"buffer_load_dwordx4 v{140+k%3}, s[12:15], s10 offen lds"]
    e("s_cmp_lt_u32 s3, 2"); e("s_cbranch_scc1 A_xw8"); e("s_waitcnt vmcnt(2)"); e("s_branch A_xwd"); e.label("A_xw8"); e("s_waitcnt vmcnt(8)"); e.label("A_xwd")
    for s_ in range(36): e(f"ds_read_b128 {ar(4*s_,4)}, v{146+s_%4} offset:{(s_//4)*128}")
    e("s_waitcnt vmcnt(0) lgkmcnt(0)"); stamp(e, 2); e("s_barrier")
    gen_mlp4.arrive(e, 205)
    e("s_cmp_lt_u32 s3, 2"); e("s_cbranch_scc1 A_kvjob")
    for k in range(27):
        for x in wdma_unit(k): e(x)
    e("s_branch A_nokv2")
    e.label("A_kvjob")
    for k in range(6):
        if k == 5:
            e("s_cmp_lg_u32 s5, 0"); e("s_cbranch_scc1 A_kvw5"); e("s_mov_b64 exec, 0xffff")
        for j in range(4): e(f"ds_write_b32 v{232+4*k+j}, v{208+4*k+j}")
        if k == 5:
            e("s_mov_b64 exec, -1"); e.label("A_kvw5")
    e("s_waitcnt lgkmcnt(0)"); e("s_barrier")
    AP = int(os.environ.get("APROF", "0"))
    if AP == 2: stamp(e, 3)
    RSK = [156, 160, 164, 168, 172, 176]
    def rdk(s_):
        d = RSK[s_ % 6]
        e(f"ds_read_b64_tr_b16 {vr(d,2)}, v154 offset:{s_*1024}"); e(f"ds_read_b64_tr_b16 {vr(d+2,2)}, v154 offset:{s_*1024+256}")
    DK = 180; PKK = 196
    e("v_mov_b32 v207, 0")
    e("s_lshr_b32 s49, s6, 4"); e(f"s_mul_i32 s49, s49, {QB}"); e(f"s_add_u32 s49, s49, {WS_K1}"); e("s_and_b32 s45, s6, 15")
    e("s_cmp_eq_u32 s3, 1"); e("s_cbranch_scc1 A_V")
    for variant in ("K", "V"):
        if variant == "V": e.label("A_V")
        for s_ in range(5): rdk(s_)
        for s_ in range(36):
            e(f"s_waitcnt lgkmcnt({2*(min(35, s_+4)-s_)})")
            c0 = "0" if s_ == 0 else vr(DK,16)
            w_ = vr(RSK[s_%6],4); xx = ar(4*s_,4)
            e(f"v_mfma_f32_32x32x16_bf16 {vr(DK,16)}, {w_ if variant=='K' else xx}, {xx if variant=='K' else w_}, {c0}")
            if s_ + 5 < 36: rdk(s_ + 5)
            if s_ < 27:
                for x in wdma_unit(s_): e(x)
        e("s_nop 7"); e("s_nop 3")
        if AP == 2: stamp(e, 4)
        if variant == "K":
            for i in range(5): e(f"v_cvt_pk_bf16_f32 v{PKK+i}, v{DK+2*i}, v{DK+2*i+1}")
            e("s_lshl_b32 s53, s45, 10"); e("s_add_u32 s53, s53, s49")
            e(f"buffer_store_dwordx4 {vr(PKK,4)}, v2, s[24:27], s53 offen sc1")
            e("s_lshl_b32 s53, s45, 7"); e("s_add_u32 s53, s53, s49"); e(f"s_add_u32 s53, s53, {KV_K2}")
            e("s_mov_b32 exec_hi, 0"); e(f"buffer_store_dword v{PKK+4}, v4, s[24:27], s53 offen sc1"); e("s_mov_b32 exec_hi, -1")
            e("v_cmp_gt_u32 vcc, 32, v1"); e("s_nop 1")
            e(f"v_cndmask_b32 v204, 0, v{PKK+4}, vcc"); e("v_mov_b32 v205, 0")
            for i in range(4): e(f"v_dot2_f32_bf16 v205, v{PKK+i}, v{PKK+i}, v205")
            e("v_dot2_f32_bf16 v205, v204, v204, v205")
            e("s_nop 3"); e("v_mov_b32 v206, v205"); e("s_nop 1"); e("v_permlane32_swap_b32 v205, v206"); e("s_nop 1"); e("v_add_f32 v205, v205, v206")
            for dpp in ("quad_perm:[1,0,3,2]", "quad_perm:[2,3,0,1]", "row_half_mirror", "row_mirror"):
                e("s_nop 1"); e(f"v_max_f32_dpp v205, v205, v205 {dpp} row_mask:0xf bank_mask:0xf")
            e("ds_swizzle_b32 v206, v205 offset:0x401F"); e("s_waitcnt lgkmcnt(0)"); e("v_max_f32 v205, v205, v206")
            e("s_lshl_b32 s53, s6, 2"); e(f"s_add_u32 s53, s53, {WS_KN}"); e("v_mov_b32 v206, 0")
            e("s_mov_b64 exec, 1"); e(f"buffer_store_dword v205, v206, s[24:27], s53 offen sc1"); e("s_mov_b64 exec, -1")
            e("s_branch A_kvpub")
        else:
            for i in range(8): e(f"v_cvt_pk_bf16_f32 v{PKK+i}, v{DK+2*i}, v{DK+2*i+1}")
            e("v_cmp_eq_u32 vcc, 18, v3"); e("v_mov_b32 v204, 0x3f803f80"); e("s_nop 0")
            for i in range(8): e(f"v_cndmask_b32 v{PKK+i}, v{PKK+i}, v204, vcc")
            e("v_cmp_eq_u32 vcc, 19, v3"); e("s_nop 1")
            for i in range(8): e(f"v_cndmask_b32 v{PKK+i}, v{PKK+i}, v207, vcc")
            e(f"v_mul_u32_u24 v205, {VP}, v3"); e("v_lshlrev_b32 v206, 4, v5"); e("v_add_u32 v205, v205, v206")
            e("s_lshl_b32 s53, s45, 6"); e("s_add_u32 s53, s53, s49"); e(f"s_add_u32 s53, s53, {KV_V}")
            e("v_cmp_gt_u32 vcc, 20, v3"); e("s_and_saveexec_b64 s[54:55], vcc")
            e(f"buffer_store_dwordx4 {vr(PKK,4)}, v205, s[24:27], s53 offen sc1")
            e(f"buffer_store_dwordx4 {vr(PKK+4,4)}, v205, s[24:27], s53 offen offset:32 sc1")
            e("s_mov_b64 exec, s[54:55]")
    e.label("A_kvpub")
    e("s_waitcnt vmcnt(0)")
    if AP == 2: stamp(e, 5)
    e("s_barrier")
    e("s_cmp_lg_u32 s5, 0"); e("s_cbranch_scc1 A_nokv2")
    e("s_lshl_b32 s9, s4, 1"); e("s_add_u32 s9, s9, s3"); e("s_lshl_b32 s9, s9, 2"); e(f"s_add_u32 s9, s9, {WS_KVFLAG}")
    e("v_mbcnt_lo_u32_b32 v204, -1, 0"); e("v_lshlrev_b32 v204, 7, v204"); e(f"v_mov_b32 v205, s{gen_mlp4.TAGR}")
    e("s_mov_b64 exec, 0xff")
    e("buffer_store_dword v205, v204, s[24:27], s9 offen sc1")
    e("s_mov_b64 exec, -1")
    if AP == 2:
        e("s_waitcnt vmcnt(0)"); stamp(e, 6); stamp_rt(e, 7); stamp_flush(e, 0, 58)
    e.label("A_nokv2")
    AP = int(os.environ.get("APROF", "0"))
    e("s_waitcnt vmcnt(18)")
    if AP == 1: stamp(e, 3)
    if AP == 2: e("s_endpgm")
    e("s_barrier")
    OFS = [0, 32, 72, 104]
    def wrd(gk):
        s_, hh = gk // 4, gk % 4
        d = 144 + 4 * (gk % 8)
        a_ = 137 if s_ < 18 else 138
        o = (s_ % 18) * 3072 + OFS[hh]
        e(f"ds_read_b64_tr_b16 {ar(d,2)}, v{a_} offset:{o}"); e(f"ds_read_b64_tr_b16 {ar(d+2,2)}, v{a_} offset:{o+768}")
    for gk in range(6): wrd(gk)
    for gk in range(144):
        s_, hh = gk // 4, gk % 4
        if gk % 2 == 0: e(f"s_waitcnt lgkmcnt({2*max(0, min(143, gk+5) - (gk+1))})")
        c0 = "0" if s_ == 0 else vr(O(hh),16)
        e(f"v_mfma_f32_32x32x16_bf16 {vr(O(hh),16)}, {ar(144+4*(gk%8),4)}, {ar(4*s_,4)}, {c0}")
        if gk + 6 == 48: e("s_waitcnt vmcnt(9)"); e("s_barrier")
        if gk + 6 == 96: e("s_waitcnt vmcnt(0)"); e("s_barrier")
        if gk + 6 < 144: wrd(gk + 6)
        if gk == int(os.environ.get('A_POLL', '123')):
            if AP == 1: e("s_waitcnt lgkmcnt(0)"); stamp(e, 4)
            e("s_and_b32 s57, s2, 7"); e("s_lshl_b32 s57, s57, 7"); e(f"s_add_u32 s57, s57, {WS_KVFLAG}")
            gen_mlp4.poll_flags(e, "A_kv", 0xffffffff, 120)
            if AP == 1: stamp(e, 5)
            e("v_lshlrev_b32 v6, 2, v1"); e(f"s_mov_b32 s11, {WS_KN}")
            e("buffer_load_dword v7, v6, s[24:27], s11 offen")
            e("s_lshl_b32 s18, s5, 10")
            for k in range(10):
                e(f"s_add_u32 m0, s18, {3*QB + k*4096}"); e(f"s_add_u32 s7, s18, {WS_K1 + k*4096}")
                e("buffer_load_dwordx4 v2, s[24:27], s7 offen lds")
    e("s_nop 7"); e("s_nop 3")
    e("v_cmp_gt_u32 vcc, 32, v1"); e("s_nop 1"); e("s_mov_b64 s[12:13], vcc")
    e(f"s_mov_b32 s9, {hexf(QSCALE)}")
    for i in range(4):
        Dq = O(i); odd = i % 2
        nr = 12 if odd else 10
        for r in range(nr): e(f"v_mul_f32 v{Dq+r}, s9, v{Dq+r}")
        PKq = 112
        for k in range(nr // 2): e(f"v_cvt_pk_bf16_f32 v{PKq+k}, v{Dq+2*k}, v{Dq+2*k+1}")
        if not odd:
            for k in range(4): e(f"v_mov_b32 v{Q1(i)+k}, v{PKq+k}")
            e(f"v_mov_b32 v{Q2(i)}, v{PKq+4}")
        else:
            e(f"v_mov_b32 v{Q1(i)}, v{PKq+1}"); e(f"v_mov_b32 v{Q1(i)+2}, v{PKq+3}"); e(f"v_mov_b32 v{Q2(i)}, v{PKq+5}")
            for (src_a, src_b, dst) in ((0, 2, 1), (2, 4, 3)):
                e(f"v_mov_b32 v120, v{PKq+src_a}"); e(f"v_mov_b32 v121, v{PKq+src_b}"); e("s_nop 1")
                e("v_permlane32_swap_b32 v120, v121"); e("s_nop 1")
                e(f"v_cndmask_b32 v{Q1(i)+dst}, v120, v121, s[12:13]")
    if not AP: stamp(e, 3)
    e("s_barrier")
    n0 = 10
    def emit_stage(lst, name):
        e("s_lshl_b32 s18, s5, 10")
        for k in range(30):
            if k == 29: e("s_cmp_lg_u32 s5, 0"); e(f"s_cbranch_scc1 {name}_x")
            e(f"s_add_u32 m0, s18, {k*4096}"); e(f"s_add_u32 s7, s18, {WS_K1 + QB + k*4096}")
            e("buffer_load_dwordx4 v2, s[24:27], s7 offen lds")
        e.label(f"{name}_x")
    st1 = None
    DEFER = int(os.environ.get("A_DEFER", "1"))
    def wpf():
        e("s_lshl_b32 s16, s4, 3"); e("s_add_u32 s16, s16, s3"); e("s_lshl_b32 s16, s16, 2"); e("s_add_u32 s16, s16, s5")
        e("v_lshlrev_b32 v201, 7, v1")
        e("s_lshl_b32 s17, s16, 13")
        e(f"s_add_u32 s18, s17, {512*8192}")
        e("buffer_load_dword v204, v201, s[28:31], s17 offen")
        e("buffer_load_dword v205, v201, s[28:31], s18 offen")
        e("buffer_load_dword v206, v201, s[32:35], s17 offen")
        e("buffer_load_dword v207, v201, s[32:35], s18 offen")
    if DEFER: n1 = 0; NPF = 0
    else:
        n1 = emit_stage(st1, "A_s1"); wpf(); NPF = 4
    for b in range(2):
        e(f"v_mov_b32 v{KV(b)+5}, 0x3f803f80"); e(f"v_mov_b32 v{KV(b)+6}, 0"); e(f"v_mov_b32 v{KV(b)+7}, 0")
    e(f"s_waitcnt vmcnt({n0 + n1 + NPF})")
    for dpp in ("quad_perm:[1,0,3,2]", "quad_perm:[2,3,0,1]", "row_half_mirror", "row_mirror"):
        e("s_nop 1"); e(f"v_max_f32_dpp v7, v7, v7 {dpp} row_mask:0xf bank_mask:0xf")
    e("ds_swizzle_b32 v8, v7 offset:0x401F"); e("s_waitcnt lgkmcnt(0)"); e("v_max_f32 v7, v7, v8")
    e("v_mov_b32 v8, v7"); e("s_nop 1"); e("v_permlane32_swap_b32 v7, v8"); e("s_nop 1"); e("v_max_f32 v7, v7, v8")
    e("v_cmp_gt_u32 vcc, 32, v1")
    e("s_mov_b64 s[12:13], vcc")
    for i in range(4):
        e(f"v_cndmask_b32 v{Q2(i)}, 0, v{Q2(i)}, s[12:13]")
        e("v_mov_b32 v8, 0")
        for k in range(4): e(f"v_dot2_f32_bf16 v8, v{Q1(i)+k}, v{Q1(i)+k}, v8")
        e(f"v_dot2_f32_bf16 v8, v{Q2(i)}, v{Q2(i)}, v8")
        e("s_nop 3"); e("v_mov_b32 v9, v8"); e("s_nop 1"); e("v_permlane32_swap_b32 v8, v9"); e("s_nop 1"); e("v_add_f32 v8, v8, v9")
        e("v_mul_f32 v8, v8, v7"); e("v_sqrt_f32 v8, v8"); e("s_nop 0")
        e(f"v_mul_f32 v8, {hexf(-1.001)}, v8")
        e(f"v_cvt_pk_bf16_f32 v9, v8, v8"); e("v_lshlrev_b32 v9, 16, v9"); e("v_sub_f32 v9, v8, v9")
        e(f"v_cvt_pk_bf16_f32 v9, v8, v9")
        e(f"v_cndmask_b32 v{Q2(i)+1}, 0, v9, s[12:13]")
        e(f"v_mov_b32 v{Q2(i)+2}, 0"); e(f"v_mov_b32 v{Q2(i)+3}, 0")
    e("s_mov_b32 s14, 0")
    e(f"s_waitcnt vmcnt({n1 + NPF}) lgkmcnt(0)")
    e("s_barrier")
    if AP == 1:
        stamp(e, 6); stamp_rt(e, 7); stamp_flush(e, 0, 58); e("s_endpgm")
    stamp(e, 4)
    inloop = [False]
    e.label("A_run")
    for i in range(4):
        for r in range(16): e(f"v_mov_b32 v{O(i)+r}, 0")
    for r in range(8): e(f"v_mov_b32 v{P+r}, 0")
    for r in range(4): e(f"v_mov_b32 v{KV(1)+12+r}, 0")
    e(f"v_add_u32 v{aK1}, {3*QB}, v2"); e(f"v_add_u32 v{aK2}, {3*QB + KV_K2}, v4")
    e(f"v_min_u32 v8, 19, v3"); e(f"v_mul_u32_u24 v8, {VP}, v8"); e("v_lshlrev_b32 v9, 4, v5"); e("v_add_u32 v8, v8, v9")
    e(f"v_add_u32 v{aV}, {3*QB + KV_V}, v8")
    A_NOLDS = int(os.environ.get("A_NOLDS", "0"))
    def ldK(b, joff):
        if A_NOLDS and inloop[0]: return
        e(f"ds_read_b128 {vr(KV(b),4)}, v{aK1} offset:{joff*1024}")
        e(f"ds_read_b32 v{KV(b)+4}, v{aK2} offset:{joff*128}")
    def ldV(b, joff):
        if A_NOLDS and inloop[0]: return
        e(f"ds_read_b128 {vr(KV(b)+8,4)}, v{aV} offset:{joff*64}")
        e(f"ds_read_b128 {vr(KV(b)+12,4)}, v{aV} offset:{joff*64+32}")
    def qk1(sb, b, i): return f"v_mfma_f32_32x32x16_bf16 {vr(S(sb),16)}, {vr(KV(b),4)}, {vr(Q1(i),4)}, 0"
    def qk2(sb, b, i): return f"v_mfma_f32_32x32x16_bf16 {vr(S(sb),16)}, {vr(KV(b)+4,4)}, {vr(Q2(i),4)}, {vr(S(sb),16)}"
    def pv(i, b, m): return f"v_mfma_f32_32x32x16_bf16 {vr(O(i),16)}, {vr(KV(b)+8+4*m,4)}, {vr(P+4*m,4)}, {vr(O(i),16)}"
    ldK(0, 0); ldV(0, 0)
    e("s_waitcnt lgkmcnt(0)")
    e(qk1(0, 0, 0)); e(qk2(0, 0, 0))
    e("s_nop 7"); e("s_nop 3")
    UN = int(os.environ.get("A_UN", "4"))
    NIT = 64 // UN
    e(f"s_mov_b32 s15, {NIT}")
    e("s_cmp_eq_u32 s14, 0"); e("s_cselect_b32 s20, -1, 0")
    e.label("A_loop")
    inloop[0] = True
    e("s_and_b32 s19, s15, s20")
    assert UN == 4
    e(f"s_mov_b32 s9, {QB}"); e("s_cmp_eq_u32 s15, 13"); e(f"s_cselect_b32 s9, {(-3*QB) & 0xffffffff}, s9")
    e(f"s_sub_u32 s21, s9, {12*1024}"); e(f"s_sub_u32 s22, s9, {12*128}"); e(f"s_sub_u32 s23, s9, {12*64}")
    e("s_and_b32 s9, s15, 3"); e("s_cmp_eq_u32 s9, 1")
    e("s_cselect_b32 s21, s21, 4096"); e("s_cselect_b32 s22, s22, 512"); e("s_cselect_b32 s23, s23, 256")
    for jj in range(UN):
        b = jj % 2
        for i in range(4):
            n = jj * 4 + i
            sb = n % 2
            i2 = (i + 1) % 4; b2 = b if i < 3 else 1 - b
            ip = (i - 1) % 4; bp = b if i > 0 else 1 - b
            def E(r): e(f"v_exp_f32 v{S(sb)+r}, v{S(sb)+r}")
            def C(k): e(f"v_cvt_pk_bf16_f32 v{P+k}, v{S(sb)+2*k}, v{S(sb)+2*k+1}")
            e(qk1(1 - sb, b2, i2))
            if i == 2:
                if jj == UN - 1: e(f"v_add_u32 v{aV}, s23, v{aV}"); ldV(1 - b, 0)
                else: ldV(1 - b, jj + 1)
            E(0); E(1); E(2); E(3)
            e(qk2(1 - sb, b2, i2))
            E(4); E(5); E(6); E(7); C(0); C(1)
            e(pv(ip, bp, 1))
            if i == 1 and jj == UN - 1:
                e(f"s_cmp_lg_u32 s19, {NIT - (16 // UN) + 1}"); e("s_cbranch_scc1 A_nost"); e("s_waitcnt vmcnt(0)"); e("s_barrier"); e.label("A_nost")
            if i == 1:
                if jj == UN - 1:
                    e(f"v_add_u32 v{aK1}, s21, v{aK1}"); e(f"v_add_u32 v{aK2}, s22, v{aK2}"); ldK(1 - b, 0)
                else: ldK(1 - b, jj + 1)
            if i == 0 and jj == 0 and DEFER:
                e(f"s_cmp_lg_u32 s19, {NIT}"); e("s_cbranch_scc1 A_nodef")
                emit_stage(st1, "A_s1"); wpf()
                e.label("A_nodef")
            E(8); E(9); E(10); E(11); C(2); C(3); E(12); E(13)
            e(pv(i, b, 0))
            E(14); E(15); C(4); C(5); C(6); C(7)
            if i == 2: e("s_waitcnt lgkmcnt(0)")
    e("s_sub_u32 s15, s15, 1"); e("s_cmp_lg_u32 s15, 0"); e("s_cbranch_scc1 A_loop")
    inloop[0] = False
    e("s_nop 1")
    e(pv(3, 1, 1))
    e("s_nop 7"); e("s_nop 3")
    e("s_cmp_lg_u32 s14, 0"); e("s_cbranch_scc1 A_fin")
    e(f"v_mov_b32 v10, {hexf(2.0**-40)}")
    e("s_mov_b64 s[16:17], 0")
    for i in range(4):
        e(f"v_cmp_nge_f32 vcc, v{O(i)+10}, v10"); e("s_nop 1"); e("s_or_b64 s[16:17], s[16:17], vcc")
    e("s_and_b32 s16, s16, -1")
    e("s_cbranch_scc0 A_fin")
    e("s_mov_b32 s14, 1")
    for i in range(4):
        e(f"v_mov_b32 v{Q2(i)+1}, 0"); e(f"v_mov_b32 v{O(i)}, 0xff800000")
    e("s_mov_b32 s15, 0")
    e.label("A_max")
    e("s_lshr_b32 s9, s15, 4"); e(f"s_mul_i32 s9, s9, {QB}"); e("s_and_b32 s10, s15, 15")
    e("s_lshl_b32 s11, s10, 10"); e("s_add_u32 s11, s11, s9"); e(f"v_add_u32 v{aK1}, s11, v2")
    e("s_lshl_b32 s11, s10, 7"); e("s_add_u32 s11, s11, s9"); e(f"s_add_u32 s11, s11, {KV_K2}"); e(f"v_add_u32 v{aK2}, s11, v4")
    ldK(0, 0); e("s_waitcnt lgkmcnt(0)")
    for i in range(4):
        e(qk1(0, 0, i)); e(qk2(0, 0, i)); e("s_nop 7"); e("s_nop 3")
        for r in range(0, 16, 2): e(f"v_max3_f32 v{O(i)}, v{S(0)+r}, v{S(0)+r+1}, v{O(i)}")
    e("s_add_u32 s15, s15, 1"); e("s_cmp_lg_u32 s15, 64"); e("s_cbranch_scc1 A_max")
    for i in range(4):
        e(f"v_mov_b32 v8, v{O(i)}"); e(f"v_mov_b32 v9, v{O(i)}"); e("s_nop 1"); e("v_permlane32_swap_b32 v8, v9"); e("s_nop 1")
        e("v_max_f32 v8, v8, v9"); e("v_sub_f32 v8, 0, v8")
        e(f"v_cvt_pk_bf16_f32 v9, v8, v8"); e("v_lshlrev_b32 v9, 16, v9"); e("v_sub_f32 v9, v8, v9")
        e(f"v_cvt_pk_bf16_f32 v9, v8, v9")
        e(f"v_cndmask_b32 v{Q2(i)+1}, 0, v9, s[12:13]")
    e("s_branch A_run")
    e.label("A_fin")
    stamp(e, 5)
    e("s_lshl_b32 s8, s6, 5"); e("s_lshl_b32 s9, s3, 2"); e("s_add_u32 s8, s8, s9"); e("s_lshl_b32 s8, s8, 10"); e(f"s_add_u32 s8, s8, {WS_O1}")
    e("s_lshl_b32 s9, s6, 12"); e("s_lshr_b32 s10, s3, 1"); e("s_lshl_b32 s10, s10, 10"); e("s_add_u32 s9, s9, s10")
    e("s_and_b32 s10, s3, 1"); e("s_lshl_b32 s10, s10, 9"); e("s_add_u32 s9, s9, s10"); e(f"s_add_u32 s9, s9, {WS_O2}")
    e("v_lshlrev_b32 v10, 4, v3")
    for i in range(4):
        e(f"v_mov_b32 v8, v{O(i)+10}"); e(f"v_mov_b32 v9, v{O(i)+10}"); e("s_nop 1"); e("v_permlane32_swap_b32 v8, v9"); e("s_nop 1")
        e("v_rcp_f32 v8, v8"); e("s_nop 0")
        for r in range(10): e(f"v_mul_f32 v{O(i)+r}, v8, v{O(i)+r}")
        for k in range(5): e(f"v_cvt_pk_bf16_f32 v{188+k}, v{O(i)+2*k}, v{O(i)+2*k+1}")
        e(f"buffer_store_dwordx4 {vr(188,4)}, v2, s[24:27], s8 offen offset:{i*1024}" + (" sc1" if gen_mlp4.TAIL else ""))
        e("s_mov_b32 exec_hi, 0")
        e(f"buffer_store_dword v192, v10, s[24:27], s9 offen offset:{i*4}" + (" sc1" if gen_mlp4.TAIL else ""))
        e("s_mov_b32 exec_hi, -1")
        e("s_nop 1")
    if gen_mlp4.TAIL:
        e("s_waitcnt vmcnt(0)"); e("s_barrier")
        e("s_cmp_lg_u32 s5, 0"); e("s_cbranch_scc1 A_nf")
        e("s_lshl_b32 s9, s4, 7"); e("s_lshl_b32 s10, s3, 2"); e("s_add_u32 s9, s9, s10"); e(f"s_add_u32 s9, s9, {WS_FLAG + 64}")
        gen_mlp4.set_flag(e, 9, 8)
        e.label("A_nf")
    if PROF:
        e("s_waitcnt vmcnt(0)"); stamp(e, 6); stamp_rt(e, 7); stamp_flush(e, 0, 58)
    e("s_endpgm")


def gen_fusedK(e, roles):
    K = "main_kernel"
    kernel_head(e, K)
    e("s_cmp_ge_u32 s2, 256"); e("s_cbranch_scc1 MK_end")
    stamp_rt(e, 0); stamp(e, 1)
    if int(os.environ.get("CODEPF", "1")):
        e("s_getpc_b64 s[68:69]")
        e.label("MK_pc")
        e("v_lshrrev_b32 v250, 6, v0"); e("s_lshr_b32 s7, s2, 3"); e("s_lshl_b32 s7, s7, 2"); e("v_add_u32 v250, s7, v250")
        e("v_lshlrev_b32 v250, 3, v250"); e("v_and_b32 v251, 7, v0"); e("v_add_u32 v250, v250, v251"); e("v_lshlrev_b32 v250, 7, v250")
        e("v_and_b32 v251, 63, v0"); e("v_cmp_gt_u32 vcc, 8, v251"); e("s_nop 3"); e("s_mov_b64 s[8:9], vcc")
        e("s_mov_b32 s7, MK_codeend-MK_pc"); e("v_cmp_gt_u32 vcc, s7, v250"); e("s_nop 3"); e("s_and_b64 vcc, vcc, s[8:9]")
        e("s_and_saveexec_b64 s[8:9], vcc"); e("s_cbranch_execz MK_nopf")
        e("global_load_dword v252, v250, s[68:69]")
        e.label("MK_nopf")
        e("s_mov_b64 exec, s[8:9]")
    e("s_load_dwordx4 s[40:43], s[0:1], 0")
    e("s_load_dwordx4 s[44:47], s[0:1], 16")
    e("s_load_dwordx4 s[52:55], s[0:1], 48")
    e("s_load_dwordx2 s[56:57], s[0:1], 64")
    e("s_load_dwordx2 s[48:49], s[0:1], 80")
    e("s_load_dwordx4 s[64:67], s[0:1], 96")
    e("s_and_b32 s3, s2, 7"); e("s_lshr_b32 s4, s2, 3")
    e("v_lshrrev_b32 v2, 6, v0"); e("v_and_b32 v1, 63, v0"); e("s_nop 0"); e("v_readfirstlane_b32 s5, v2")
    e("s_cmp_ge_u32 s4, 16")
    e("s_cbranch_scc1 MK_role")
    e("s_lshr_b32 s6, s3, 1"); e("s_and_b32 s7, s3, 1"); e("s_and_b32 s8, s4, 3"); e("s_lshr_b32 s9, s4, 2")
    e("s_lshl_b32 s6, s6, 2"); e("s_add_u32 s4, s6, s8"); e("s_lshl_b32 s7, s7, 2"); e("s_add_u32 s3, s7, s9")
    e.label("MK_role")
    e("s_waitcnt lgkmcnt(0)")
    e("s_mov_b64 s[58:59], s[66:67]")
    e(f"s_add_u32 s96, s66, {WS_EPOCH}"); e("s_addc_u32 s97, s67, 0")
    e("s_load_dword s98, s[96:97], 0")
    srd(e, 24, 58, WS_END); srd(e, 28, 52, 576 * 9216); srd(e, 32, 56, 4608 * 1152); srd(e, 36, 54, 9216); srd(e, 60, 64, 256)
    srd(e, 12, 42, 576 * 1152); srd(e, 20, 48, 1152)
    e("s_lshr_b32 s50, s2, 3"); e("s_sub_u32 s50, s50, 16"); e("s_lshr_b32 s50, s50, 1")
    e("s_cmp_eq_u32 s50, 0"); e("s_cselect_b32 s50, s44, s46"); e("s_cselect_b32 s51, s45, s47")
    srd(e, 16, 50, 576 * 36)
    srd(e, 64, 40, 2048 * 1152)
    if int(os.environ.get("COOPX", "1")):
        e("s_lshr_b32 s7, s2, 3"); e("s_lshl_b32 s7, s7, 2"); e("s_add_u32 s7, s7, s5")
        e("s_and_b32 s8, s2, 7"); e("s_lshr_b32 s9, s8, 1")
        e("v_lshlrev_b32 v250, 7, v1")
        e("s_mul_i32 s10, s7, 4608"); e("s_mul_i32 s11, s9, 589824"); e("s_add_u32 s10, s10, s11")
        e("s_mov_b32 exec_hi, 15")
        e("buffer_load_dword v251, v250, s[64:67], s10 offen")
        e("s_mov_b64 exec, -1")
    e("s_lshr_b32 s7, s2, 3"); e("s_cmp_ge_u32 s7, 16")
    if roles == "attn": e("s_cbranch_scc0 MK_end"); e("s_branch A_start")
    elif roles == "mlp": e("s_cbranch_scc1 MK_end")
    else: e("s_cbranch_scc1 A_start")
    gen_mlp4.gen_mlp4(e, xdma, xfrag_addr, coop)
    gen_attn_f(e)
    e.label("MK_end"); e("s_endpgm")
    e.label("MK_codeend")
    return kernel_desc(K, 512, 100, 256)
def add(body, descs, launches, which):
    roles = "both"
    if which in ("attn", "mlp"): roles = which
    descs.append(gen_fusedK(body, roles)); launches.append(f"; @launch kernel=main_kernel grid=(256,1,1) block=(256,1,1) lds={LDS_MAIN}")
    if not gen_mlp4.TAIL:
        import gen_final
        gen_final.add(body, descs, launches)
```

```python
import os, math
from gen import *
X_NODMA = int(os.environ.get("X_NODMA", "0")); X_NOGELU = int(os.environ.get("X_NOGELU", "0"))
ST_SC1 = " sc1" if int(os.environ.get("ST_SC1", "1")) else ""
PRERED = int(os.environ.get('PRERED', '1'))
SLOT = [0, 36864, 73728, 110592]; BIAS = 147456

TAIL = int(os.environ.get('TAIL', '1'))
TAGR = 98

def poll_flags(e, name, lo_mask, vtmp, sreg=57):
    e("s_cmp_lg_u32 s5, 0"); e(f"s_cbranch_scc1 {name}_w")
    e("v_mbcnt_lo_u32_b32 v{0}, -1, 0".format(vtmp)); e(f"v_lshlrev_b32 v{vtmp}, 2, v{vtmp}")
    e(f"s_mov_b32 exec_lo, {hex(lo_mask)}"); e("s_mov_b32 exec_hi, 0")
    e.label(f"{name}_p")
    e(f"buffer_load_dword v{vtmp+1}, v{vtmp}, s[24:27], s{sreg} offen sc1")
    e("s_waitcnt vmcnt(0)")
    e(f"v_cmp_ne_u32 vcc, s{TAGR}, v{vtmp+1}"); e("s_nop 7")
    e(f"s_cbranch_vccz {name}_d")
    e("s_sleep 4"); e(f"s_branch {name}_p")
    e.label(f"{name}_d")
    e("s_mov_b64 exec, -1")
    e("buffer_inv sc1"); e("s_waitcnt vmcnt(0)")
    e.label(f"{name}_w")
    e("s_barrier")
def set_flag(e, word_sreg_expr, vtmp):
    e("s_mov_b64 exec, 1"); e(f"v_mov_b32 v{vtmp}, 0"); e(f"v_mov_b32 v{vtmp+1}, s{TAGR}")
    e(f"buffer_store_dword v{vtmp+1}, v{vtmp}, s[24:27], s{word_sreg_expr} offen sc1")
    e("s_mov_b64 exec, -1")

def arrive(e, vt):
    e(f"s_add_u32 s{TAGR}, s{TAGR}, 1")
    e("s_mov_b64 s[94:95], exec")
    e("s_cmp_eq_u32 s5, 0"); e("s_cselect_b64 exec, 1, 0")
    e(f"v_mov_b32 v{vt}, 0"); e(f"v_mov_b32 v{vt+1}, 1")
    e("s_cbranch_execz L_arr%d" % len(ARR));
    e(f"buffer_atomic_add v{vt+1}, v{vt}, s[60:63], 0 offen offset:4")
    e.label("L_arr%d" % len(ARR)); ARR.append(1)
    e("s_mov_b64 exec, s[94:95]")
ARR = []
def gen_tail(e, vL16):
    e("s_lshl_b32 s57, s4, 7"); e(f"s_add_u32 s57, s57, {WS_FLAG}")
    e("s_load_dwordx2 s[40:41], s[0:1], 32"); e("s_load_dwordx2 s[42:43], s[0:1], 72"); e("s_load_dwordx2 s[44:45], s[0:1], 88")
    e("s_waitcnt vmcnt(0) lgkmcnt(0)"); e("s_barrier")
    srd(e, 16, 40, 576 * 1152); srd(e, 20, 42, 1152)
    e("s_cmp_lg_u32 s5, 0"); e("s_cbranch_scc1 T_nf1")
    e("s_lshl_b32 s8, s3, 2"); e("s_add_u32 s8, s8, s57"); set_flag(e, 8, 13)
    e.label("T_nf1")
    e("v_mbcnt_lo_u32_b32 v1, -1, 0"); e("v_mbcnt_hi_u32_b32 v1, -1, v1")
    e("v_lshrrev_b32 v2, 2, v1"); e("v_and_b32 v3, 3, v1"); e("v_lshlrev_b32 v3, 4, v3")
    e("v_mul_u32_u24 v4, 1152, v2"); e("v_add_u32 v4, v4, v3")
    e("s_lshl_b32 s52, s3, 7")
    e(f"s_mul_i32 s51, s5, {144*1152}"); e("s_add_u32 s51, s51, s52"); e("s_mul_i32 s53, s5, 9216")
    for ii in range(9):
        for img in range(2):
            e(f"s_add_u32 m0, s53, {img*36864 + ii*1024}"); e(f"s_add_u32 s54, s51, {ii*16*1152 + img*64}")
            e("buffer_load_dwordx4 v4, s[16:19], s54 offen lds")
    e("s_cmp_lg_u32 s3, 7"); e("s_cbranch_scc1 T_no2")
    for ii in range(9):
        for img in range(2):
            e(f"s_add_u32 m0, s53, {73728 + img*36864 + ii*1024}"); e(f"s_add_u32 s54, s51, {ii*16*1152 + img*64 + 128}")
            e("buffer_load_dwordx4 v4, s[16:19], s54 offen lds")
    e.label("T_no2")
    poll_flags(e, "T_pp", 0xff, 13)
    e("s_mul_i32 s11, s3, 18"); e("s_add_u32 s11, s11, s5")
    e(f"s_mul_i32 s12, s4, {4*18*2048}")
    e("s_lshl_b32 s13, s11, 10"); e("s_add_u32 s12, s12, s13")
    e(f"s_add_u32 s13, s12, {WS_P}"); e(f"s_add_u32 s14, s12, {WS_B}")
    e("s_mov_b32 s64, 0x3f80"); e("s_mov_b32 s65, 0x3f800000")
    for k in range(5):
        if k == 4: e("s_cmp_ge_u32 s5, 2"); e("s_cbranch_scc1 T_skip5a")
        for sp in range(NSPLIT):
            e(f"s_add_u32 s55, s13, {sp*64*18*2048 + k*4096}")
            e(f"buffer_load_dwordx4 {vr(96+32*k+4*sp,4)}, v{vL16}, s[24:27], s55 offen")
        if k == 4: e.label("T_skip5a")
    for k in range(5):
        if k == 4: e("s_cmp_ge_u32 s5, 2"); e("s_cbranch_scc1 T_skip5b")
        if k == 0: e("s_waitcnt vmcnt(0)")
        for sp in range(NSPLIT):
            for j in range(4):
                src = 96 + 32 * k + 4 * sp + j
                c0 = "0" if sp == 0 else f"v{16+2*j}"; c1 = "0" if sp == 0 else f"v{17+2*j}"
                e(f"v_dot2_f32_bf16 v{16+2*j}, v{src}, s64, {c0}"); e(f"v_dot2_f32_bf16 v{17+2*j}, v{src}, s65, {c1}")
        e("s_nop 3")
        for j in range(4): e(f"v_cvt_pk_bf16_f32 v{24+j+4*(k%2)}, v{16+2*j}, v{17+2*j}")
        e(f"s_add_u32 s55, s14, {k*4096}")
        e(f"buffer_store_dwordx4 {vr(24+4*(k%2),4)}, v{vL16}, s[24:27], s55 offen sc1")
        if k == 4: e.label("T_skip5b")
    e("s_waitcnt vmcnt(0)"); e("s_barrier")
    e("s_cmp_lg_u32 s5, 0"); e("s_cbranch_scc1 T_nf2")
    e("s_lshl_b32 s8, s3, 2"); e("s_add_u32 s8, s8, s57"); e("s_add_u32 s8, s8, 32"); set_flag(e, 8, 13)
    e.label("T_nf2")
    srd(e, 12, 44, 2048 * 1152)
    stamp(e, 5)
    e("v_and_b32 v6, 31, v1"); e("v_lshrrev_b32 v7, 5, v1")
    tr_lane_addr(e, 8, 1, 2, 3, 4)
    e("v_bfe_u32 v2, v1, 3, 1"); e("v_lshlrev_b32 v3, 2, v7"); e("v_add_u32 v2, v2, v3"); e("v_mul_u32_u24 v2, 18, v2")
    e("v_bfe_u32 v3, v1, 2, 1"); e("v_add_u32 v2, v2, v3"); e("v_add_u32 v2, 16, v2"); e("v_lshlrev_b32 v9, 6, v2")
    e("v_bfe_u32 v2, v1, 4, 1"); e("v_lshlrev_b32 v2, 5, v2"); e("v_add_u32 v9, v9, v2")
    e("v_and_b32 v2, 3, v1"); e("v_lshlrev_b32 v2, 3, v2"); e("v_add_u32 v9, v9, v2")
    e("v_add_u32 v10, 36864, v8"); e("v_add_u32 v11, 36864, v9")
    e("v_lshlrev_b32 v3, 3, v7")
    for jb in range(2):
        for j in range(2):
            for q in range(4): e(f"buffer_load_dwordx2 {vr(96+16*jb+8*j+2*q,2)}, v3, s[20:23], s52 offen offset:{jb*128+j*64+q*16}")
    poll_flags(e, "T_po", 0xffff00, 13)
    stamp(e, 4)
    e("s_lshl_b32 s55, s6, 15"); e(f"s_add_u32 s55, s55, {WS_O1}")
    e("s_lshl_b32 s56, s6, 12"); e(f"s_add_u32 s56, s56, {WS_O2}")
    for k in range(36):
        if k < 32:
            if k % 4 == 0: e(f"s_add_u32 s54, s55, {k*1024}")
            e(f"buffer_load_dwordx4 {ar(4*k,4)}, v{vL16}, s[24:27], s54 offen offset:{(k%4)*1024}")
        else: e(f"buffer_load_dwordx4 {ar(4*k,4)}, v{vL16}, s[24:27], s56 offen offset:{(k-32)*1024}")
    e("s_lshl_b32 s54, s6, 7"); e(f"s_add_u32 s54, s54, {WS_G}"); e("v_lshlrev_b32 v2, 2, v6")
    e("buffer_load_dword v5, v2, s[24:27], s54 offen")
    e("s_mul_i32 s50, s6, 18"); e("s_lshl_b32 s54, s3, 1"); e("s_add_u32 s50, s50, s54"); e("s_lshl_b32 s50, s50, 11"); e(f"s_add_u32 s50, s50, {WS_B}")
    for jb in range(2):
        for j in range(2):
            for hf in range(2):
                e(f"s_add_u32 s54, s50, {jb*4096}")
                e(f"buffer_load_dwordx4 {vr(128+16*jb+8*j+4*hf,4)}, v{vL16}, s[24:27], s54 offen offset:{j*2048+hf*1024}")
    NAFTER = 1 + 8
    e("v_mul_u32_u24 v2, 1152, v6"); e("v_lshlrev_b32 v3, 4, v7"); e("v_add_u32 v2, v2, v3")
    e(f"s_mul_i32 s55, s6, {32*1152}"); e("s_add_u32 s55, s55, s52")
    ACC = [16, 32]
    for jb in range(2):
        if jb == 1:
            e("s_cmp_lg_u32 s3, 7"); e("s_cbranch_scc1 T_done")
            for r in (8, 9, 10, 11): e(f"v_add_u32 v{r}, 73728, v{r}")
        def rd(k, img):
            d = 144 + 4 * ((2 * k + img) % 8)
            am, ae = (8, 9) if img == 0 else (10, 11)
            if k < 32: a_, o1, o2 = am, k * 1152, k * 1152 + 512
            else: a_, o1, o2 = ae, (k - 32) * 8 * 1152, (k - 32) * 8 * 1152 + 2 * 1152
            e(f"ds_read_b64_tr_b16 {ar(d,2)}, v{a_} offset:{o1}"); e(f"ds_read_b64_tr_b16 {ar(d+2,2)}, v{a_} offset:{o2}")
        for k in range(3): rd(k, 0); rd(k, 1)
        for k in range(36):
            nout = 4 * (min(35, k + 2) - k)
            e("s_waitcnt " + (f"vmcnt({35-k+NAFTER}) " if jb == 0 else "") + f"lgkmcnt({nout})")
            for img in range(2):
                c = "0" if k == 0 else vr(ACC[img], 16)
                e(f"v_mfma_f32_32x32x16_bf16 {vr(ACC[img],16)}, {ar(144+4*((2*k+img)%8),4)}, {ar(4*k,4)}, {c}")
                if k + 3 < 36: rd(k + 3, img)
        e("s_waitcnt vmcnt(0)")
        for j in range(2):
            PS = 48 + 16 * j
            for k in range(8):
                src = 128 + 16 * jb + 8 * j + k
                e(f"v_lshlrev_b32 v{PS+2*k}, 16, v{src}"); e(f"v_and_b32 v{PS+2*k+1}, 0xffff0000, v{src}")
            for r in range(16): e(f"v_mul_f32 v{PS+r}, {hexf(1/KAPPA)}, v{PS+r}")
            for k in range(8):
                src = 96 + 16 * jb + 8 * j + k
                e(f"v_dot2_f32_bf16 v{PS+2*k}, v{src}, s64, v{PS+2*k}"); e(f"v_dot2_f32_bf16 v{PS+2*k+1}, v{src}, s65, v{PS+2*k+1}")
            e("s_nop 3")
            A = ACC[j]
            for r in range(16):
                e(f"v_sub_f32 v{A+r}, v{A+r}, v{PS+r}"); e(f"v_fma_f32 v{A+r}, v5, v{A+r}, v{PS+r}")
            pk = 80 + 8 * j
            for k in range(8): e(f"v_cvt_pk_bf16_f32 v{pk+k}, v{A+2*k}, v{A+2*k+1}")
            e("s_nop 1")
            for base in (pk, pk + 4):
                e(f"v_permlane32_swap_b32 v{base}, v{base+2}"); e(f"v_permlane32_swap_b32 v{base+1}, v{base+3}")
            e("s_nop 1")
            e(f"buffer_store_dwordx4 {vr(pk,4)}, v2, s[12:15], s55 offen offset:{jb*128+j*64}")
            e(f"buffer_store_dwordx4 {vr(pk+4,4)}, v2, s[12:15], s55 offen offset:{jb*128+j*64+32}")
    e.label("T_done")
    e("s_or_b32 s8, s3, s4"); e("s_or_b32 s8, s8, s5"); e("s_cmp_lg_u32 s8, 0"); e("s_cbranch_scc1 T_end")
    e("s_mov_b64 exec, 1"); e("v_mov_b32 v13, 0")
    e.label("T_ep")
    e("buffer_load_dword v14, v13, s[60:63], 0 offen offset:4 sc1")
    e("s_waitcnt vmcnt(0)")
    e("v_readfirstlane_b32 s8, v14"); e("s_nop 3")
    e("s_cmp_ge_u32 s8, 256"); e("s_cbranch_scc1 T_epd")
    e("s_sleep 2"); e("s_branch T_ep")
    e.label("T_epd")
    e(f"v_mov_b32 v14, s{TAGR}"); e(f"s_mov_b32 s8, {WS_EPOCH}")
    e("buffer_store_dword v14, v13, s[24:27], s8 offen")
    e("s_mov_b64 exec, -1")
    e.label("T_end")

GWL = BIAS + 2304
def gen_mlp4(e, xdma, xfrag_addr, coop):
    YF = lambda s: ar(4 * s, 4)
    NR = 8
    RING = lambda k: 144 + 4 * (k % NR)
    SB = lambda b, u: 16 + 32 * b + 16 * u
    PR = lambda c: 112 + 8 * c
    PK = 80
    T = [96, 97, 98, 99, 100, 101]
    aX = [104, 105, 106, 107]; aY = [108, 109, 110, 111]
    dW1 = [2, 3, 4, 5]; dW2 = [6, 7, 8, 9]; aB, cC0, vL16 = 10, 11, 12
    D = 6
    e.label("M_start")
    e("s_lshl_b32 s6, s4, 2"); e("s_add_u32 s6, s6, s5")
    e(f"v_lshlrev_b32 v{vL16}, 4, v1")
    e("v_lshlrev_b32 v13, 3, v0"); e("v_lshlrev_b32 v14, 4, v0")
    e("v_cmp_gt_u32 vcc, 144, v0"); e("s_nop 1"); e("s_mov_b64 s[46:47], vcc")
    e("v_and_b32 v74, 31, v1"); e("v_lshrrev_b32 v75, 5, v1")
    xdma(e, 40)
    e("v_and_b32 v15, 3, v1"); e("v_lshlrev_b32 v15, 4, v15")
    e("v_lshrrev_b32 v16, 5, v1"); e("v_lshlrev_b32 v16, 6, v16"); e("v_add_u32 v15, v15, v16")
    e("v_bfe_u32 v16, v1, 2, 3")
    e(f"v_mul_u32_u24 v{dW1[0]}, 9216, v16"); e(f"v_add_u32 v{dW1[0]}, v{dW1[0]}, v15")
    e(f"v_mul_u32_u24 v{dW2[0]}, 1152, v16"); e(f"v_add_u32 v{dW2[0]}, v{dW2[0]}, v15")
    S1, S2 = 8 * 9216, 8 * 1152
    for q in range(1, 4):
        e(f"v_add_u32 v{dW1[q]}, {q*(S1-1024)}, v{dW1[0]}"); e(f"v_add_u32 v{dW2[q]}, {q*(S2-1024)}, v{dW2[0]}")
    e("v_lshrrev_b32 v15, 5, v1")
    e("v_bfe_u32 v16, v1, 2, 2"); e("v_lshlrev_b32 v16, 6, v16")
    e("v_bfe_u32 v17, v1, 4, 1"); e("v_lshlrev_b32 v17, 5, v17"); e("v_add_u32 v16, v16, v17")
    e("v_and_b32 v17, 3, v1"); e("v_lshlrev_b32 v17, 3, v17"); e("v_add_u32 v16, v16, v17")
    e("v_lshlrev_b32 v17, 10, v15"); e("v_add_u32 v17, v17, v16")
    e("v_lshlrev_b32 v18, 8, v15"); e("v_add_u32 v18, v18, v16")
    for k in range(4):
        e(f"v_add_u32 v{aX[k]}, {SLOT[k]}, v17"); e(f"v_add_u32 v{aY[k]}, {SLOT[k]}, v18")
    e("v_lshlrev_b32 v15, 4, v15"); e(f"v_add_u32 v{aB}, {BIAS}, v15")
    e(f"v_mov_b32 v{cC0}, {hexf(GC0)}")
    e(f"s_mul_i32 s40, s5, {72*9216}"); e("s_mul_i32 s42, s3, 1152"); e("s_add_u32 s40, s40, s42")
    e(f"s_mul_i32 s41, s3, {576*1152}"); e(f"s_mul_i32 s42, s5, {72*1152}"); e("s_add_u32 s41, s41, s42")
    e("s_mul_i32 s43, s5, 9216")
    vq = []
    def vm_issue(tag, ins):
        for x in ins: e(x)
        vq.append(tag)
    def vm_need(tag):
        idx = max((i for i, t in enumerate(vq) if t == tag), default=None)
        if idx is None: return None
        n = len(vq) - 1 - idx
        del vq[:idx + 1]
        return n
    def dma_groups(phi, ybase=None, solo=False):
        slot = SLOT[phi % 4]; out = []
        t, hh = phi // 2, phi % 2
        for ii in range(9):
            q = 0 if solo else ii % 4; g = []
            if phi < 18:
                if q == 0: g += [f"s_add_u32 m0, s43, {slot + ii*1024}", f"s_add_u32 s44, s40, {hh*288*9216 + ii*S1 + t*128}"]
                g.append(f"buffer_load_dwordx4 v{dW1[q]}, s[28:31], s44 offen offset:{q*1024} lds")
            else:
                np_ = (t - 9) if ybase is None else (t - ybase)
                if q == 0: g += [f"s_add_u32 m0, s43, {slot + ii*1024}", f"s_add_u32 s44, s41, {hh*288*1152 + ii*S2 + np_*128}"]
                g.append(f"buffer_load_dwordx4 v{dW2[q]}, s[32:35], s44 offen offset:{q*1024} lds")
            out.append(g)
        return out
    class LT:
        def __init__(self): self.q = []
        def issue(self, tag, ins):
            for x in ins: e(x); self.q.append(tag)
        def wait(self, tag):
            idx = max((i for i, t in enumerate(self.q) if t == tag), default=None)
            if idx is None: return
            n = len(self.q) - 1 - idx
            e(f"s_waitcnt lgkmcnt({min(n, 15)})")
            self.q = self.q[idx + 1:] if n <= 15 else self.q[len(self.q) - 15:]
    lt = LT()
    def frag_rd(phi, i):
        s, u = i // 2, i % 2
        d = RING(phi * 36 + i)
        if phi < 18:
            a = aX[phi % 4]; o1 = s * 2048 + u * 512; o2 = o1 + 256
        else:
            a = aY[phi % 4]; o1 = s * 2048 + u * 512; o2 = o1 + 1024
        return [f"ds_read_b64_tr_b16 {ar(d,2)}, v{a} offset:{o1}", f"ds_read_b64_tr_b16 {ar(d+2,2)}, v{a} offset:{o2}"]
    def mfma(phi, i):
        t, hh = phi // 2, phi % 2
        s, u = i // 2, i % 2
        ks = 18 * hh + s
        A = ar(RING(phi * 36 + i), 4); Dst = vr(SB(t % 2, u), 16)
        if phi < 18: return f"v_mfma_f32_32x32x16_bf16 {Dst}, {A}, {YF(ks)}, {Dst}"
        B = vr(PR(ks // 2) + 4 * (ks % 2), 4)
        C = "0" if ks == 0 else Dst
        return f"v_mfma_f32_32x32x16_bf16 {Dst}, {A}, {B}, {C}"
    def gelu(x, t):
        return [f"v_fma_f32 v{t}, v{x}, v{x}, v{cC0}", f"v_mul_f32 v{t}, v{x}, v{t}", f"v_exp_f32 v{t}, -v{t}",
                f"v_add_f32 v{t}, 1.0, v{t}", f"v_rcp_f32 v{t}, v{t}", f"v_mul_f32 v{x}, v{x}, v{t}"]
    def gelu_tile(b, u, c):
        out = []
        base = SB(b, u)
        for g0 in (0, 3, 6, 9, 12, 14):
            grp = list(range(g0, g0 + 3)) if g0 < 12 else [g0, g0 + 1]
            seqs = [gelu(base + r, T[(i + (3 if (g0 // 3) % 2 else 0)) % 6]) for i, r in enumerate(grp)]
            for op in range(6):
                for sq in seqs: out.append(sq[op])
        for k in range(8): out.append(f"v_cvt_pk_bf16_f32 v{PR(c)+k}, v{base+2*k}, v{base+2*k+1}")
        return out
    def bias_rd(b, u, c): return [f"ds_read_b128 {vr(SB(b,u)+4*q,4)}, v{aB} offset:{c*128+q*32}" for q in range(4)]
    def cost(x): return 8 if x.startswith(("v_exp", "v_rcp")) else 4
    WP = 2
    def need(gk):
        if gk % WP == 0:
            for kk in range(gk + WP - 1, gk - 1, -1):
                if ("f", kk) in lt.q:
                    lt.wait(("f", kk)); return
    def spread(items, n):
        tot = sum(cost(x) for x in items if isinstance(x, str)) or 1
        out = [[] for _ in range(n)]; acc = 0; g = 0
        for x in items:
            while g < n - 1 and acc >= tot * (g + 1) / n: g += 1
            out[g].append(x); acc += cost(x) if isinstance(x, str) else 4
        return out
    def phase(phi, fills, dma, next_phi, extra=None, ybase=None, pend=None):
        dma = list(dma)
        for i in range(36):
            gk = phi * 36 + i
            e(mfma(phi, i))
            nxt = i + D
            if nxt == 36 and next_phi is not None:
                n = vm_need(("d", next_phi))
                if n is not None: e(f"s_waitcnt vmcnt({n})")
                e("s_barrier")
            if nxt < 36: lt.issue(("f", gk + D), frag_rd(phi, nxt))
            elif next_phi is not None: lt.issue(("f", gk + D), frag_rd(next_phi, nxt - 36))
            if extra and i in extra: extra[i]()
            if dma and i % 4 == 1:
                g = dma.pop(0)
                if not X_NODMA: vm_issue(("d", phi + 3), g)
            if pend:
                pend(i)
            if not X_NOGELU:
                for x in fills[i]:
                    if isinstance(x, tuple): vm_issue(x[0], [x[1]])
                    else: e(x)
            need(gk + 1)
        assert not dma
    XR = 112
    vq.extend([("x", 0)] * 36)
    e("s_mul_i32 s42, s3, 1152")
    e("s_mov_b64 s[50:51], exec"); e("s_mov_b64 exec, s[46:47]")
    vm_issue("bias", ["buffer_load_dwordx2 v[60:61], v13, s[36:39], s42 offen"])
    e("s_mov_b64 exec, s[50:51]")
    e("v_cmp_gt_u32 vcc, 72, v0"); e("s_nop 1"); e("s_mov_b64 s[54:55], vcc"); e("s_mov_b64 exec, s[54:55]")
    vm_issue("gw", ["buffer_load_dwordx4 v[64:67], v14, s[20:23], 0 offen"])
    e("s_mov_b64 exec, s[50:51]")
    coop(e, 48); vq.extend(["pf", "pf"])
    xfrag_addr(e, 68, 72)
    n = vm_need(("x", 0)); e(f"s_waitcnt vmcnt({n})")
    for s_ in range(36): e(f"ds_read_b128 {vr(XR+4*s_,4)}, v{68+s_%4} offset:{(s_//4)*128}")
    n = vm_need("gw"); e(f"s_waitcnt vmcnt({n}) lgkmcnt(0)"); stamp(e, 2); e("s_barrier")
    arrive(e, 13 + 70)
    vq.append("arr")
    pend = [(("d", ph), g) for ph in range(3) for g in dma_groups(ph, solo=True)]
    e("s_mov_b64 exec, s[46:47]")
    e("v_and_b32 v63, 0xffff0000, v61"); e("v_lshlrev_b32 v62, 16, v61"); e("v_and_b32 v61, 0xffff0000, v60"); e("v_lshlrev_b32 v60, 16, v60")
    for r in range(60, 64): e(f"v_mul_f32 v{r}, {hexf(KAPPA)}, v{r}")
    e(f"v_add_u32 v76, {BIAS}, v14"); e("ds_write_b128 v76, v[60:63]")
    e("s_mov_b64 exec, s[54:55]"); e(f"v_add_u32 v76, {GWL}, v14"); e("ds_write_b128 v76, v[64:67]")
    e("s_mov_b64 exec, s[50:51]")
    A0, A1, A2 = 78, 79, 80
    e("s_mov_b32 s56, 0x3f803f80")
    e(f"v_mov_b32 v{A0}, 0"); e(f"v_mov_b32 v{A1}, 0"); e(f"v_mov_b32 v81, 0"); e(f"v_mov_b32 v82, 0")
    for i in range(144):
        e(f"v_dot2_f32_bf16 v{A0 if i%2==0 else 81}, v{XR+i}, s56, v{A0 if i%2==0 else 81}")
        e(f"v_dot2_f32_bf16 v{A1 if i%2==0 else 82}, v{XR+i}, v{XR+i}, v{A1 if i%2==0 else 82}")
        if i % 5 == 0 and pend:
            tag, g = pend.pop(0); vm_issue(tag, g)
    assert not pend
    e("s_nop 3")
    e(f"v_add_f32 v{A0}, v{A0}, v81"); e(f"v_add_f32 v{A1}, v{A1}, v82")
    for r in (A0, A1):
        e(f"v_mov_b32 v83, v{r}"); e("s_nop 1"); e(f"v_permlane32_swap_b32 v{r}, v83"); e("s_nop 1"); e(f"v_add_f32 v{r}, v{r}, v83")
    e(f"v_mul_f32 v{A0}, {hexf(1/576)}, v{A0}"); e(f"v_mul_f32 v{A1}, {hexf(1/576)}, v{A1}")
    e(f"v_fma_f32 v{A1}, -v{A0}, v{A0}, v{A1}"); e(f"v_max_f32 v{A1}, 0, v{A1}"); e(f"v_add_f32 v{A1}, {hexf(1e-5)}, v{A1}")
    e(f"v_rsq_f32 v{A1}, v{A1}"); e("s_nop 0"); e(f"v_mul_f32 v{A1}, {hexf(KAPPA)}, v{A1}")
    e(f"v_mul_f32 v{A0}, v{A0}, v{A1}")
    e("s_waitcnt lgkmcnt(0)"); e("s_barrier")
    e("s_cmp_lg_u32 s3, 2"); e("s_cbranch_scc1 M_nogate")
    e("v_lshlrev_b32 v83, 4, v75"); e(f"v_add_u32 v83, {GWL}, v83"); e(f"v_mov_b32 v{A2}, 0")
    for g0 in range(0, 36, 4):
        for k in range(4): e(f"ds_read_b128 {vr(84+4*k,4)}, v83 offset:{(g0+k)*32}")
        e("s_waitcnt lgkmcnt(0)")
        for k in range(4):
            for j in range(4): e(f"v_dot2_f32_bf16 v{A2}, v{XR+4*(g0+k)+j}, v{84+4*k+j}, v{A2}")
    e("s_nop 3"); e(f"v_mov_b32 v83, v{A2}"); e("s_nop 1"); e(f"v_permlane32_swap_b32 v{A2}, v83"); e("s_nop 1"); e(f"v_add_f32 v{A2}, v{A2}, v83")
    e(f"v_mul_f32 v{A2}, {hexf(-math.log2(math.e))}, v{A2}"); e(f"v_exp_f32 v{A2}, v{A2}"); e("s_nop 0")
    e(f"v_add_f32 v{A2}, 1.0, v{A2}"); e(f"v_rcp_f32 v{A2}, v{A2}")
    e("s_lshl_b32 s53, s6, 7"); e(f"s_add_u32 s53, s53, {WS_G}"); e("v_lshlrev_b32 v83, 2, v74")
    e("s_mov_b32 exec_hi, 0"); e(f"buffer_store_dword v{A2}, v83, s[24:27], s53 offen sc1"); e("s_mov_b32 exec_hi, -1")
    e("s_waitcnt vmcnt(0)")
    e.label("M_nogate")
    e(f"v_mov_b32 v84, v{A1}"); e(f"v_mov_b32 v85, v{A1}"); e(f"v_sub_f32 v86, 0, v{A0}"); e(f"v_sub_f32 v87, 0, v{A0}")
    for i in range(144):
        t0 = 16 + 2 * (i % 4)
        e(f"v_lshlrev_b32 v{t0}, 16, v{XR+i}"); e(f"v_and_b32 v{t0+1}, 0xffff0000, v{XR+i}")
        e(f"v_pk_fma_f32 v[{t0}:{t0+1}], v[{t0}:{t0+1}], v[84:85], v[86:87]")
        if i > 0:
            p0 = 16 + 2 * ((i - 1) % 4)
            e(f"v_cvt_pk_bf16_f32 v{p0}, v{p0}, v{p0+1}"); e(f"v_accvgpr_write_b32 a{i-1}, v{p0}")
    p0 = 16 + 2 * (143 % 4)
    e(f"v_cvt_pk_bf16_f32 v{p0}, v{p0}, v{p0+1}"); e(f"v_accvgpr_write_b32 a143, v{p0}")
    if int(os.environ.get("DBG_Y", "0")):
        e("s_mul_i32 s53, s6, 36864")
        for s_ in range(36):
            e(f"s_add_u32 s44, s53, {s_*1024}"); e("s_nop 4")
            e(f"buffer_store_dwordx4 {ar(4*s_,4)}, v{vL16}, s[24:27], s44 offen")
        e("s_waitcnt vmcnt(0)")
    n = vm_need(("d", 0)); e(f"s_waitcnt vmcnt({n})")
    stamp(e, 3)
    e("s_barrier")
    lt.issue("b", bias_rd(0, 0, 0) + bias_rd(0, 1, 1))
    for k in range(D): lt.issue(("f", k), frag_rd(0, k))
    lt.wait("b")
    need(0)
    def pend_fn(phi): return None
    for t in range(9):
        fl = []
        if t > 0:
            fl = gelu_tile(1 - t % 2, 0, 2 * (t - 1)) + gelu_tile(1 - t % 2, 1, 2 * (t - 1) + 1)
        buckets = [[] for _ in range(72)]
        if fl:
            sp = spread(fl, 62)
            for i in range(62): buckets[3 + i] = sp[i]
        for hh in range(2):
            phi = 2 * t + hh
            extra = {}
            if hh == 1 and t < 8:
                extra[30] = (lambda tt=t: lt.issue("b", bias_rd((tt + 1) % 2, 0, 2 * (tt + 1)) + bias_rd((tt + 1) % 2, 1, 2 * (tt + 1) + 1)))
            dm = dma_groups(phi + 3)
            phase(phi, buckets[36 * hh: 36 * hh + 36], dm, phi + 1, extra)
        if t == 0:
            stamp(e, 4)
    def epi(b, np_imm):
        out = []
        for u in range(2):
            base = SB(b, u)
            for k in range(8): out.append(f"v_cvt_pk_bf16_f32 v{PK+8*u+k}, v{base+2*k}, v{base+2*k+1}")
            out.append((("s", 0), f"buffer_store_dwordx4 {vr(PK+8*u,4)}, v{vL16}, s[24:27], s52 offen offset:{u*2048}{ST_SC1}"))
            out.append((("s", 0), f"buffer_store_dwordx4 {vr(PK+8*u+4,4)}, v{vL16}, s[24:27], s52 offen offset:{u*2048+1024}{ST_SC1}"))
        return out
    e("s_lshl_b32 s52, s3, 6"); e("s_add_u32 s52, s52, s6"); e(f"s_mul_i32 s52, s52, {18*2048}"); e(f"s_add_u32 s52, s52, {WS_P}")
    def ystep(t, first=False, ybase=9, last=False):
        if first:
            fl = gelu_tile(1 - t % 2, 0, 16) + gelu_tile(1 - t % 2, 1, 17)
            sp = spread(fl, 56); buckets = [[] for _ in range(72)]
            for i in range(56): buckets[3 + i] = sp[i]
        else:
            fl = epi(1 - t % 2, 0)
            buckets = [[] for _ in range(72)]
            pos = 3
            for x in fl:
                while pos % 4 == 1: pos += 1
                buckets[pos].append(x)
                if len(buckets[pos]) >= 2 or isinstance(x, tuple): pos += 1
            buckets[pos + 1].append("s_add_u32 s52, s52, 4096")
        for hh in range(2):
            phi = 2 * t + hh
            nphi = phi + 1
            phase(phi, buckets[36 * hh: 36 * hh + 36], [] if (last and phi + 3 >= 36) else dma_groups(phi + 3, ybase), None if phi == 35 else nphi)
    ystep(9, first=True)
    e("s_mov_b32 s15, 3")
    vq_save = list(vq); lq_save = [(t[0], t[1] - 20 * 36) if isinstance(t, tuple) else t for t in lt.q]
    e.label("M_loop")
    ystep(10); ystep(11)
    vq_n = [(t[0], t[1] - 4) if t[0] == "d" else t for t in vq]
    lq_n = [(t[0], t[1] - 24 * 36) if isinstance(t, tuple) else t for t in lt.q]
    assert lq_n == lq_save, (lq_n, lq_save)
    e("s_add_u32 s41, s41, 256")
    e("s_sub_u32 s15, s15, 1"); e("s_cmp_lg_u32 s15, 0"); e("s_cbranch_scc1 M_loop")
    LOOPCHK.append((vq_save, vq_n))
    for i, tg in enumerate(vq):
        if tg[0] == "d": vq[i] = ("d", tg[1] + 8)
    lt.q[:] = [(tg[0], tg[1] + 8 * 36) if isinstance(tg, tuple) else tg for tg in lt.q]
    ystep(16, ybase=15, last=True); ystep(17, ybase=15, last=True)
    e("s_nop 7"); e("s_nop 3")
    stamp(e, 5)
    for x in epi(1, 0):
        if isinstance(x, tuple): e("s_nop 0"); e(x[1])
        else: e(x)
    if PRERED and not TAIL:
            e("s_waitcnt vmcnt(0)"); e("s_barrier")
            e("s_lshl_b32 s9, s4, 3"); e("s_add_u32 s9, s9, 64")
            e("v_mov_b32 v13, 0"); e("v_mov_b32 v14, 1")
            e("s_cmp_lg_u32 s5, 0"); e("s_cbranch_scc1 M_nosig")
            e("s_mov_b64 exec, 1")
            e("buffer_atomic_add v14, v13, s[60:63], s9 offen")
            e.label("M_poll")
            e("buffer_load_dword v15, v13, s[60:63], s9 offen sc1")
            e("s_waitcnt vmcnt(0)")
            e("v_readfirstlane_b32 s10, v15"); e("s_nop 3")
            e("s_cmp_ge_u32 s10, 8"); e("s_cbranch_scc1 M_polled")
            e("s_sleep 1"); e("s_branch M_poll")
            e.label("M_polled")
            e("s_mov_b64 exec, -1")
            e.label("M_nosig")
            e("s_barrier")
            e("s_mul_i32 s11, s3, 18"); e("s_add_u32 s11, s11, s5")
            e(f"s_mul_i32 s12, s4, {4*18*2048}")
            e("s_lshl_b32 s13, s11, 10"); e("s_add_u32 s12, s12, s13")
            e(f"s_add_u32 s13, s12, {WS_P}"); e(f"s_add_u32 s14, s12, {WS_B}")
            e("s_mov_b32 s16, 0x3f80"); e("s_mov_b32 s17, 0x3f800000")
            for k in range(5):
                if k == 4: e("s_cmp_ge_u32 s5, 2"); e("s_cbranch_scc1 M_skip5a")
                for sp in range(NSPLIT):
                    e(f"s_add_u32 s18, s13, {sp*64*18*2048 + k*4096}")
                    e(f"buffer_load_dwordx4 {vr(96+32*k+4*sp,4)}, v{vL16}, s[24:27], s18 offen sc1")
                if k == 4: e.label("M_skip5a")
            for k in range(5):
                if k == 4: e("s_cmp_ge_u32 s5, 2"); e("s_cbranch_scc1 M_skip5b")
                if k == 0: e("s_waitcnt vmcnt(0)")
                for sp in range(NSPLIT):
                    for j in range(4):
                        src = 96 + 32 * k + 4 * sp + j
                        c0 = "0" if sp == 0 else f"v{16+2*j}"; c1 = "0" if sp == 0 else f"v{17+2*j}"
                        e(f"v_dot2_f32_bf16 v{16+2*j}, v{src}, s16, {c0}"); e(f"v_dot2_f32_bf16 v{17+2*j}, v{src}, s17, {c1}")
                e("s_nop 3")
                for j in range(4): e(f"v_cvt_pk_bf16_f32 v{24+j+4*(k%2)}, v{16+2*j}, v{17+2*j}")
                e(f"s_add_u32 s18, s14, {k*4096}")
                e(f"buffer_store_dwordx4 {vr(24+4*(k%2),4)}, v{vL16}, s[24:27], s18 offen")
                if k == 4: e.label("M_skip5b")
    if TAIL:
        gen_tail(e, vL16)
    if PROF:
        e("s_waitcnt vmcnt(0)"); stamp(e, 6); stamp_rt(e, 7); stamp_flush(e, 0, 58)
    e("s_endpgm")
LOOPCHK = []
```

```python
import math
WS_Y  = 0
WS_Q1 = 0x240000
WS_Q2 = WS_Q1 + 0x200000
WS_K1 = WS_Q2 + 0x40000
WS_K2 = WS_K1 + 0x10000
VROW = 4112
WS_V  = WS_K2 + 0x2000
QB = 39936; KV_K2 = 16384; KV_V = 18432; VP = 1040
WS_KN = WS_K1 + 0x28000
WS_G  = WS_KN + 0x1000
WS_O1 = WS_G + 0x2000
WS_O2 = WS_O1 + 0x200000
WS_P  = WS_O2 + 0x40000
NSPLIT = 8
WS_B = WS_P + 8 * 64 * 18 * 2048
WS_END = WS_B + 64 * 18 * 2048
QSCALE = 18 ** -0.5 * math.log2(math.e)

_c0 = 2.0 * math.sqrt(2.0 / math.pi) * math.log2(math.e); _c1 = _c0 * 0.044715
KAPPA = _c1 ** (1.0 / 3.0); GC0 = _c0 / KAPPA

WS_FLAG = 0x1c00000
WS_KVFLAG = WS_FLAG + 0x1000
WS_EPOCH = WS_FLAG + 0x2000
WS_END = WS_FLAG + 0x3000
```

```python
import math, sys, os
from gen import *
import gen_mlp4
LDS_MAIN = 4 * QB + 1024

XD = [0]
def xdma(e, base):
    e("s_mov_b32 s42, 911"); e("s_mul_i32 s44, s6, 36864"); e(f"s_add_u32 s99, s44, {16*1152}"); e("s_mul_i32 s45, s5, 36864")
    t0, t1, t2, p, d = base, base + 1, base + 2, base + 3, base + 4
    e(f"v_mov_b32 v{p}, v1"); e("s_mov_b32 s43, 18")
    L = f"XD_{XD[0]}"; XD[0] += 1
    e.label(L)
    e(f"v_mul_lo_u32 v{t1}, v{p}, s42"); e(f"v_lshrrev_b32 v{t1}, 16, v{t1}")
    e(f"v_mul_u32_u24 v{t2}, 72, v{t1}"); e(f"v_sub_u32 v{t0}, v{p}, v{t2}")
    e(f"v_bfe_u32 v{t2}, v{t1}, 1, 3"); e(f"v_xor_b32 v{t0}, v{t0}, v{t2}"); e(f"v_lshlrev_b32 v{t0}, 4, v{t0}")
    e(f"v_mul_u32_u24 v{t1}, 1152, v{t1}"); e("s_mov_b32 m0, s45"); e(f"v_add_u32 v{d}, v{t0}, v{t1}")
    e(f"buffer_load_dwordx4 v{d}, s[64:67], s44 offen lds")
    e("s_add_u32 m0, s45, 18432"); e(f"v_add_u32 v{p}, 64, v{p}")
    e(f"buffer_load_dwordx4 v{d}, s[64:67], s99 offen lds")
    e("s_add_u32 s45, s45, 1024"); e("s_sub_u32 s43, s43, 1"); e("s_cmp_lg_u32 s43, 0"); e(f"s_cbranch_scc1 {L}")
def coop(e, base):
    e("s_lshr_b32 s44, s2, 3"); e("s_lshl_b32 s44, s44, 2"); e("s_add_u32 s44, s44, s5")
    e("s_and_b32 s45, s2, 1")
    e(f"v_lshlrev_b32 v{base}, 7, v1")
    e("s_mul_i32 s49, s44, 5248")
    e(f"buffer_load_dword v{base+1}, v{base}, s[12:15], s49 offen")
    e("s_mul_i32 s49, s44, 36"); e(f"v_add_u32 v{base+2}, s49, v1")
    e(f"v_lshrrev_b32 v{base+3}, 3, v{base+2}"); e(f"v_mul_u32_u24 v{base+3}, 9216, v{base+3}")
    e(f"v_bfe_u32 v{base}, v{base+2}, 1, 2"); e(f"v_mul_u32_u24 v{base}, 1152, v{base}"); e(f"v_add_u32 v{base+3}, v{base+3}, v{base}")
    e(f"v_and_b32 v{base}, 1, v{base+2}"); e(f"v_lshlrev_b32 v{base}, 7, v{base}"); e(f"v_add_u32 v{base+3}, v{base+3}, v{base}")
    e("s_mul_i32 s49, s45, 4608")
    e(f"buffer_load_dword v{base+4}, v{base+3}, s[28:31], s49 offen")

def xfrag_addr(e, dst, tmp):
    e(f"v_and_b32 v{tmp}, 31, v1"); e(f"v_bfe_u32 v{tmp+1}, v{tmp}, 1, 3"); e(f"v_mul_u32_u24 v{tmp}, 1152, v{tmp}")
    e("s_mul_i32 s11, s5, 36864"); e(f"v_add_u32 v{tmp}, s11, v{tmp}")
    for j in range(4):
        e(f"v_lshrrev_b32 v{dst+j}, 5, v1"); e(f"v_add_u32 v{dst+j}, {2*j}, v{dst+j}"); e(f"v_xor_b32 v{dst+j}, v{dst+j}, v{tmp+1}")
        e(f"v_lshlrev_b32 v{dst+j}, 4, v{dst+j}"); e(f"v_add_u32 v{dst+j}, v{tmp}, v{dst+j}")

def gen_attn_f(e, common):
    Q1 = lambda i: 16 + 8 * i
    Q2 = lambda i: 20 + 8 * i
    O = lambda i: 48 + 16 * i
    S = lambda b: 112 + 16 * b
    P = 144
    KV = lambda b: 152 + 16 * b
    aK1, aK2, aV = 184, 185, 186
    e.label("A_start")
    e("v_lshlrev_b32 v2, 4, v1")
    e("v_and_b32 v3, 31, v1"); e("v_lshlrev_b32 v4, 2, v3")
    e("v_lshrrev_b32 v5, 5, v1")
    e("s_mov_b32 s9, 5462")
    for j in range(3):
        e(f"v_add_u32 v131, {64*j}, v1"); e("v_mul_lo_u32 v132, v131, s9"); e("v_lshrrev_b32 v132, 16, v132")
        e("v_mul_u32_u24 v133, 12, v132"); e("v_sub_u32 v131, v131, v133"); e("v_lshlrev_b32 v131, 4, v131")
        e("v_mul_u32_u24 v132, 1152, v132"); e(f"v_add_u32 v{134+j}, v131, v132")
    xfrag_addr(e, 146, 131)
    e("v_lshlrev_b32 v131, 3, v5"); e("v_bfe_u32 v132, v1, 2, 2"); e("v_add_u32 v131, v131, v132"); e("v_mul_u32_u24 v137, 192, v131")
    e("v_bfe_u32 v131, v1, 4, 1"); e("v_lshlrev_b32 v131, 5, v131"); e("v_add_u32 v137, v137, v131")
    e("v_and_b32 v131, 3, v1"); e("v_lshlrev_b32 v131, 3, v131"); e("v_add_u32 v137, v137, v131")
    e(f"v_add_u32 v138, {288*192}, v137")
    KVL = 110592
    e("v_lshlrev_b32 v150, 4, v0")
    e("s_cmp_ge_u32 s3, 2"); e("s_cbranch_scc1 A_nokv0")
    e("s_mov_b32 s9, 58255")
    for k in range(6):
        e(f"v_lshlrev_b32 v151, 2, v0"); e(f"v_add_u32 v151, {k*1024}, v151")
        e("v_mul_lo_u32 v152, v151, s9"); e("v_lshrrev_b32 v152, 19, v152")
        e("v_mul_u32_u24 v153, 9, v152"); e("v_sub_u32 v151, v151, v153")
        e("v_lshlrev_b32 v152, 6, v152"); e(f"v_add_u32 v152, {KVL}, v152")
        for j in range(4):
            e(f"v_add_u32 v153, {j}, v151"); e("v_cmp_lt_u32 vcc, 8, v153"); e("v_lshlrev_b32 v153, 2, v153")
            e(f"v_add_u32 v{232+4*k+j}, v152, v153"); e(f"v_add_u32 v153, 28, v{232+4*k+j}")
            e(f"v_cndmask_b32 v{232+4*k+j}, v{232+4*k+j}, v153, vcc")
    tr_lane_addr(e, 154, 1, 152, 153, 8); e(f"v_add_u32 v154, {KVL}, v154")
    e.label("A_nokv0")
    for c in range(3):
        e(f"s_add_u32 s9, s5, {4*c}"); e("s_mul_i32 s10, s9, 43691"); e("s_lshr_b32 s10, s10, 17")
        e("s_mul_i32 s11, s10, 3"); e("s_sub_u32 s11, s9, s11")
        e("s_cmp_eq_u32 s11, 1"); e("s_cselect_b64 vcc, -1, 0"); e(f"v_cndmask_b32 v{140+c}, v134, v135, vcc")
        e("s_cmp_eq_u32 s11, 2"); e("s_cselect_b64 vcc, -1, 0"); e(f"v_cndmask_b32 v{140+c}, v{140+c}, v136, vcc")
    common(e, True)
    e("s_mul_i32 s7, s3, 144")
    for c in range(3):
        e(f"s_add_u32 s9, s5, {4*c}"); e("s_mul_i32 s10, s9, 43691"); e("s_lshr_b32 s10, s10, 17")
        e(f"s_mul_i32 s10, s10, {16*1152}"); e(f"s_add_u32 s{50+c}, s10, s7")
    e("s_lshl_b32 s53, s5, 10")
    coop(e, 120)
    def wdma_unit(k):
        return [f"s_add_u32 m0, s53, {k*4096}", f"s_add_u32 s10, s{50+k%3}, {(k//3)*4*16*1152}", f"buffer_load_dwordx4 v{140+k%3}, s[12:15], s10 offen lds"]
    e("s_waitcnt vmcnt(2)")
    for s_ in range(36): e(f"ds_read_b128 {ar(4*s_,4)}, v{146+s_%4} offset:{(s_//4)*128}")
    e("s_waitcnt lgkmcnt(0)"); stamp(e, 2); e("s_barrier")
    gen_mlp4.mktag(e)
    e("s_cmp_lt_u32 s3, 2"); e("s_cbranch_scc1 A_kvjob")
    for k in range(27):
        for x in wdma_unit(k): e(x)
    e("s_branch A_nokv2")
    e.label("A_kvjob")
    for k in range(6):
        if k == 5:
            e("s_cmp_lg_u32 s5, 0"); e("s_cbranch_scc1 A_kvw5"); e("s_mov_b64 exec, 0xffff")
        for j in range(4): e(f"ds_write_b32 v{232+4*k+j}, v{208+4*k+j}")
        if k == 5:
            e("s_mov_b64 exec, -1"); e.label("A_kvw5")
    e("s_waitcnt lgkmcnt(0)"); e("s_barrier")
    AP = int(os.environ.get("APROF", "0"))
    if AP == 2: stamp(e, 3)
    RSK = [156, 160, 164, 168, 172, 176]
    def rdk(s_):
        d = RSK[s_ % 6]
        e(f"ds_read_b64_tr_b16 {vr(d,2)}, v154 offset:{s_*1024}"); e(f"ds_read_b64_tr_b16 {vr(d+2,2)}, v154 offset:{s_*1024+256}")
    DK = 180; PKK = 196
    e("v_mov_b32 v207, 0")
    e("s_lshr_b32 s49, s6, 4"); e(f"s_mul_i32 s49, s49, {QB}"); e(f"s_add_u32 s49, s49, {WS_K1}"); e("s_and_b32 s45, s6, 15")
    e("s_cmp_eq_u32 s3, 1"); e("s_cbranch_scc1 A_V")
    for variant in ("K", "V"):
        if variant == "V": e.label("A_V")
        for s_ in range(5): rdk(s_)
        for s_ in range(36):
            e(f"s_waitcnt lgkmcnt({2*(min(35, s_+4)-s_)})")
            c0 = "0" if s_ == 0 else vr(DK,16)
            w_ = vr(RSK[s_%6],4); xx = ar(4*s_,4)
            e(f"v_mfma_f32_32x32x16_bf16 {vr(DK,16)}, {w_ if variant=='K' else xx}, {xx if variant=='K' else w_}, {c0}")
            if s_ + 5 < 36: rdk(s_ + 5)
            if s_ < 27:
                for x in wdma_unit(s_): e(x)
        e("s_nop 7"); e("s_nop 3")
        if AP == 2: stamp(e, 4)
        if variant == "K":
            for i in range(5): e(f"v_cvt_pk_bf16_f32 v{PKK+i}, v{DK+2*i}, v{DK+2*i+1}")
            e("s_lshl_b32 s53, s45, 10"); e("s_add_u32 s53, s53, s49")
            e(f"buffer_store_dwordx4 {vr(PKK,4)}, v2, s[24:27], s53 offen sc1")
            e("s_lshl_b32 s53, s45, 7"); e("s_add_u32 s53, s53, s49"); e(f"s_add_u32 s53, s53, {KV_K2}")
            e("s_mov_b32 exec_hi, 0"); e(f"buffer_store_dword v{PKK+4}, v4, s[24:27], s53 offen sc1"); e("s_mov_b32 exec_hi, -1")
            e("v_cmp_gt_u32 vcc, 32, v1"); e("s_nop 1")
            e(f"v_cndmask_b32 v204, 0, v{PKK+4}, vcc"); e("v_mov_b32 v205, 0")
            for i in range(4): e(f"v_dot2_f32_bf16 v205, v{PKK+i}, v{PKK+i}, v205")
            e("v_dot2_f32_bf16 v205, v204, v204, v205")
            e("s_nop 3"); e("v_mov_b32 v206, v205"); e("s_nop 1"); e("v_permlane32_swap_b32 v205, v206"); e("s_nop 1"); e("v_add_f32 v205, v205, v206")
            for dpp in ("quad_perm:[1,0,3,2]", "quad_perm:[2,3,0,1]", "row_half_mirror", "row_mirror"):
                e("s_nop 1"); e(f"v_max_f32_dpp v205, v205, v205 {dpp} row_mask:0xf bank_mask:0xf")
            e("ds_swizzle_b32 v206, v205 offset:0x401F"); e("s_waitcnt lgkmcnt(0)"); e("v_max_f32 v205, v205, v206")
            e("s_lshl_b32 s53, s6, 2"); e(f"s_add_u32 s53, s53, {WS_KN}"); e("v_mov_b32 v206, 0")
            e("s_mov_b64 exec, 1"); e(f"buffer_store_dword v205, v206, s[24:27], s53 offen sc1"); e("s_mov_b64 exec, -1")
            e("s_branch A_kvpub")
        else:
            for i in range(8): e(f"v_cvt_pk_bf16_f32 v{PKK+i}, v{DK+2*i}, v{DK+2*i+1}")
            e("v_cmp_eq_u32 vcc, 18, v3"); e("v_mov_b32 v204, 0x3f803f80"); e("s_nop 0")
            for i in range(8): e(f"v_cndmask_b32 v{PKK+i}, v{PKK+i}, v204, vcc")
            e("v_cmp_eq_u32 vcc, 19, v3"); e("s_nop 1")
            for i in range(8): e(f"v_cndmask_b32 v{PKK+i}, v{PKK+i}, v207, vcc")
            e(f"v_mul_u32_u24 v205, {VP}, v3"); e("v_lshlrev_b32 v206, 4, v5"); e("v_add_u32 v205, v205, v206")
            e("s_lshl_b32 s53, s45, 6"); e("s_add_u32 s53, s53, s49"); e(f"s_add_u32 s53, s53, {KV_V}")
            e("v_cmp_gt_u32 vcc, 20, v3"); e("s_and_saveexec_b64 s[54:55], vcc")
            e(f"buffer_store_dwordx4 {vr(PKK,4)}, v205, s[24:27], s53 offen sc1")
            e(f"buffer_store_dwordx4 {vr(PKK+4,4)}, v205, s[24:27], s53 offen offset:32 sc1")
            e("s_mov_b64 exec, s[54:55]")
    e.label("A_kvpub")
    e("s_waitcnt vmcnt(0)")
    if AP == 2: stamp(e, 5)
    e("s_barrier")
    e("s_cmp_lg_u32 s5, 0"); e("s_cbranch_scc1 A_nokv2")
    e("s_lshl_b32 s9, s4, 1"); e("s_add_u32 s9, s9, s3"); e("s_lshl_b32 s9, s9, 2"); e(f"s_add_u32 s9, s9, {WS_KVFLAG}")
    e("v_mbcnt_lo_u32_b32 v204, -1, 0"); e("v_lshlrev_b32 v204, 7, v204"); e(f"v_mov_b32 v205, s{gen_mlp4.TAGR}")
    e("s_mov_b64 exec, 0xff")
    e("buffer_store_dword v205, v204, s[24:27], s9 offen sc1")
    e("s_mov_b64 exec, -1")
    if AP == 2:
        e("s_waitcnt vmcnt(0)"); stamp(e, 6); stamp_rt(e, 7); stamp_flush(e, 0, 58)
    e.label("A_nokv2")
    AP = int(os.environ.get("APROF", "0"))
    e("s_waitcnt vmcnt(18)")
    if AP == 1: stamp(e, 3)
    if AP == 2: e("s_endpgm")
    e("s_barrier")
    OFS = [0, 32, 72, 104]
    def wrd(gk):
        s_, hh = gk // 4, gk % 4
        d = 144 + 4 * (gk % 8)
        a_ = 137 if s_ < 18 else 138
        o = (s_ % 18) * 3072 + OFS[hh]
        e(f"ds_read_b64_tr_b16 {ar(d,2)}, v{a_} offset:{o}"); e(f"ds_read_b64_tr_b16 {ar(d+2,2)}, v{a_} offset:{o+768}")
    for gk in range(6): wrd(gk)
    for gk in range(144):
        s_, hh = gk // 4, gk % 4
        if gk % 2 == 0: e(f"s_waitcnt lgkmcnt({2*max(0, min(143, gk+5) - (gk+1))})")
        c0 = "0" if s_ == 0 else vr(O(hh),16)
        e(f"v_mfma_f32_32x32x16_bf16 {vr(O(hh),16)}, {ar(144+4*(gk%8),4)}, {ar(4*s_,4)}, {c0}")
        if gk + 6 == 48: e("s_waitcnt vmcnt(9)"); e("s_barrier")
        if gk + 6 == 96: e("s_waitcnt vmcnt(0)"); e("s_barrier")
        if gk + 6 < 144: wrd(gk + 6)
        if gk == int(os.environ.get('A_POLL', '123')):
            if AP == 1: e("s_waitcnt lgkmcnt(0)"); stamp(e, 4)
            e("s_and_b32 s57, s2, 7"); e("s_lshl_b32 s57, s57, 7"); e(f"s_add_u32 s57, s57, {WS_KVFLAG}")
            gen_mlp4.poll_flags(e, "A_kv", 0xffffffff, 120)
            if AP == 1: stamp(e, 5)
            e("v_lshlrev_b32 v6, 2, v1"); e(f"s_mov_b32 s11, {WS_KN}")
            e("buffer_load_dword v7, v6, s[24:27], s11 offen")
            e("s_lshl_b32 s18, s5, 10")
            for k in range(10):
                e(f"s_add_u32 m0, s18, {3*QB + k*4096}"); e(f"s_add_u32 s7, s18, {WS_K1 + k*4096}")
                e("buffer_load_dwordx4 v2, s[24:27], s7 offen lds")
    e("s_nop 7"); e("s_nop 3")
    e("v_cmp_gt_u32 vcc, 32, v1"); e("s_nop 1"); e("s_mov_b64 s[12:13], vcc")
    e(f"s_mov_b32 s9, {hexf(QSCALE)}")
    for i in range(4):
        Dq = O(i); odd = i % 2
        nr = 12 if odd else 10
        for r in range(nr): e(f"v_mul_f32 v{Dq+r}, s9, v{Dq+r}")
        PKq = 112
        for k in range(nr // 2): e(f"v_cvt_pk_bf16_f32 v{PKq+k}, v{Dq+2*k}, v{Dq+2*k+1}")
        if not odd:
            for k in range(4): e(f"v_mov_b32 v{Q1(i)+k}, v{PKq+k}")
            e(f"v_mov_b32 v{Q2(i)}, v{PKq+4}")
        else:
            e(f"v_mov_b32 v{Q1(i)}, v{PKq+1}"); e(f"v_mov_b32 v{Q1(i)+2}, v{PKq+3}"); e(f"v_mov_b32 v{Q2(i)}, v{PKq+5}")
            for (src_a, src_b, dst) in ((0, 2, 1), (2, 4, 3)):
                e(f"v_mov_b32 v120, v{PKq+src_a}"); e(f"v_mov_b32 v121, v{PKq+src_b}"); e("s_nop 1")
                e("v_permlane32_swap_b32 v120, v121"); e("s_nop 1")
                e(f"v_cndmask_b32 v{Q1(i)+dst}, v120, v121, s[12:13]")
    if not AP: stamp(e, 3)
    e("s_barrier")
    n0 = 10
    def emit_stage(lst, name):
        e("s_lshl_b32 s18, s5, 10")
        for k in range(30):
            if k == 29: e("s_cmp_lg_u32 s5, 0"); e(f"s_cbranch_scc1 {name}_x")
            e(f"s_add_u32 m0, s18, {k*4096}"); e(f"s_add_u32 s7, s18, {WS_K1 + QB + k*4096}")
            e("buffer_load_dwordx4 v2, s[24:27], s7 offen lds")
        e.label(f"{name}_x")
    st1 = None
    DEFER = int(os.environ.get("A_DEFER", "1"))
    def wpf():
        e("s_lshl_b32 s16, s4, 3"); e("s_add_u32 s16, s16, s3"); e("s_lshl_b32 s16, s16, 2"); e("s_add_u32 s16, s16, s5")
        e("v_lshlrev_b32 v201, 7, v1")
        e("s_lshl_b32 s17, s16, 13")
        e(f"s_add_u32 s18, s17, {512*8192}")
        e("buffer_load_dword v204, v201, s[28:31], s17 offen")
        e("buffer_load_dword v205, v201, s[28:31], s18 offen")
        e("buffer_load_dword v206, v201, s[32:35], s17 offen")
        e("buffer_load_dword v207, v201, s[32:35], s18 offen")
        e("s_load_dwordx2 s[8:9], s[0:1], 32"); e("s_waitcnt lgkmcnt(0)")
        e("s_and_b32 s9, s9, 0xffff"); e("s_mov_b32 s10, 663552"); e("s_mov_b32 s11, 0x20000")
        e("buffer_load_dword v203, v201, s[8:11], s17 offen")
    if DEFER: n1 = 0; NPF = 0
    else:
        n1 = emit_stage(st1, "A_s1"); wpf(); NPF = 4
    for b in range(2):
        e(f"v_mov_b32 v{KV(b)+5}, 0x3f803f80"); e(f"v_mov_b32 v{KV(b)+6}, 0"); e(f"v_mov_b32 v{KV(b)+7}, 0")
    e(f"s_waitcnt vmcnt({n0 + n1 + NPF})")
    for dpp in ("quad_perm:[1,0,3,2]", "quad_perm:[2,3,0,1]", "row_half_mirror", "row_mirror"):
        e("s_nop 1"); e(f"v_max_f32_dpp v7, v7, v7 {dpp} row_mask:0xf bank_mask:0xf")
    e("ds_swizzle_b32 v8, v7 offset:0x401F"); e("s_waitcnt lgkmcnt(0)"); e("v_max_f32 v7, v7, v8")
    e("v_mov_b32 v8, v7"); e("s_nop 1"); e("v_permlane32_swap_b32 v7, v8"); e("s_nop 1"); e("v_max_f32 v7, v7, v8")
    e("v_cmp_gt_u32 vcc, 32, v1")
    e("s_mov_b64 s[12:13], vcc")
    for i in range(4):
        e(f"v_cndmask_b32 v{Q2(i)}, 0, v{Q2(i)}, s[12:13]")
        e("v_mov_b32 v8, 0")
        for k in range(4): e(f"v_dot2_f32_bf16 v8, v{Q1(i)+k}, v{Q1(i)+k}, v8")
        e(f"v_dot2_f32_bf16 v8, v{Q2(i)}, v{Q2(i)}, v8")
        e("s_nop 3"); e("v_mov_b32 v9, v8"); e("s_nop 1"); e("v_permlane32_swap_b32 v8, v9"); e("s_nop 1"); e("v_add_f32 v8, v8, v9")
        e("v_mul_f32 v8, v8, v7"); e("v_sqrt_f32 v8, v8"); e("s_nop 0")
        e(f"v_mul_f32 v8, {hexf(-1.001)}, v8")
        e(f"v_cvt_pk_bf16_f32 v9, v8, v8"); e("v_lshlrev_b32 v9, 16, v9"); e("v_sub_f32 v9, v8, v9")
        e(f"v_cvt_pk_bf16_f32 v9, v8, v9")
        e(f"v_cndmask_b32 v{Q2(i)+1}, 0, v9, s[12:13]")
        e(f"v_mov_b32 v{Q2(i)+2}, 0"); e(f"v_mov_b32 v{Q2(i)+3}, 0")
    e("s_mov_b32 s14, 0")
    e(f"s_waitcnt vmcnt({n1 + NPF}) lgkmcnt(0)")
    e("s_barrier")
    if AP == 1:
        stamp(e, 6); stamp_rt(e, 7); stamp_flush(e, 0, 58); e("s_endpgm")
    stamp(e, 4)
    inloop = [False]
    e.label("A_run")
    for i in range(4):
        for r in range(16): e(f"v_mov_b32 v{O(i)+r}, 0")
    for r in range(8): e(f"v_mov_b32 v{P+r}, 0")
    for r in range(4): e(f"v_mov_b32 v{KV(1)+12+r}, 0")
    e(f"v_add_u32 v{aK1}, {3*QB}, v2"); e(f"v_add_u32 v{aK2}, {3*QB + KV_K2}, v4")
    e(f"v_min_u32 v8, 19, v3"); e(f"v_mul_u32_u24 v8, {VP}, v8"); e("v_lshlrev_b32 v9, 4, v5"); e("v_add_u32 v8, v8, v9")
    e(f"v_add_u32 v{aV}, {3*QB + KV_V}, v8")
    A_NOLDS = int(os.environ.get("A_NOLDS", "0"))
    def ldK(b, joff):
        if A_NOLDS and inloop[0]: return
        e(f"ds_read_b128 {vr(KV(b),4)}, v{aK1} offset:{joff*1024}")
        e(f"ds_read_b32 v{KV(b)+4}, v{aK2} offset:{joff*128}")
    def ldV(b, joff):
        if A_NOLDS and inloop[0]: return
        e(f"ds_read_b128 {vr(KV(b)+8,4)}, v{aV} offset:{joff*64}")
        e(f"ds_read_b128 {vr(KV(b)+12,4)}, v{aV} offset:{joff*64+32}")
    def qk1(sb, b, i): return f"v_mfma_f32_32x32x16_bf16 {vr(S(sb),16)}, {vr(KV(b),4)}, {vr(Q1(i),4)}, 0"
    def qk2(sb, b, i): return f"v_mfma_f32_32x32x16_bf16 {vr(S(sb),16)}, {vr(KV(b)+4,4)}, {vr(Q2(i),4)}, {vr(S(sb),16)}"
    def pv(i, b, m): return f"v_mfma_f32_32x32x16_bf16 {vr(O(i),16)}, {vr(KV(b)+8+4*m,4)}, {vr(P+4*m,4)}, {vr(O(i),16)}"
    ldK(0, 0); ldV(0, 0)
    e("s_waitcnt lgkmcnt(0)")
    e(qk1(0, 0, 0)); e(qk2(0, 0, 0))
    e("s_nop 7"); e("s_nop 3")
    UN = int(os.environ.get("A_UN", "4"))
    NIT = 64 // UN
    e(f"s_mov_b32 s15, {NIT}")
    e("s_cmp_eq_u32 s14, 0"); e("s_cselect_b32 s20, -1, 0")
    e.label("A_loop")
    inloop[0] = True
    e("s_and_b32 s19, s15, s20")
    assert UN == 4
    e(f"s_mov_b32 s9, {QB}"); e("s_cmp_eq_u32 s15, 13"); e(f"s_cselect_b32 s9, {(-3*QB) & 0xffffffff}, s9")
    e(f"s_sub_u32 s21, s9, {12*1024}"); e(f"s_sub_u32 s22, s9, {12*128}"); e(f"s_sub_u32 s23, s9, {12*64}")
    e("s_and_b32 s9, s15, 3"); e("s_cmp_eq_u32 s9, 1")
    e("s_cselect_b32 s21, s21, 4096"); e("s_cselect_b32 s22, s22, 512"); e("s_cselect_b32 s23, s23, 256")
    for jj in range(UN):
        b = jj % 2
        for i in range(4):
            n = jj * 4 + i
            sb = n % 2
            i2 = (i + 1) % 4; b2 = b if i < 3 else 1 - b
            ip = (i - 1) % 4; bp = b if i > 0 else 1 - b
            def E(r): e(f"v_exp_f32 v{S(sb)+r}, v{S(sb)+r}")
            def C(k): e(f"v_cvt_pk_bf16_f32 v{P+k}, v{S(sb)+2*k}, v{S(sb)+2*k+1}")
            e(qk1(1 - sb, b2, i2))
            if i == 2:
                if jj == UN - 1: e(f"v_add_u32 v{aV}, s23, v{aV}"); ldV(1 - b, 0)
                else: ldV(1 - b, jj + 1)
            E(0); E(1); E(2); E(3)
            e(qk2(1 - sb, b2, i2))
            E(4); E(5); E(6); E(7); C(0); C(1)
            e(pv(ip, bp, 1))
            if i == 1 and jj == UN - 1:
                e(f"s_cmp_lg_u32 s19, {NIT - (16 // UN) + 1}"); e("s_cbranch_scc1 A_nost"); e("s_waitcnt vmcnt(0)"); e("s_barrier"); e.label("A_nost")
            if i == 1:
                if jj == UN - 1:
                    e(f"v_add_u32 v{aK1}, s21, v{aK1}"); e(f"v_add_u32 v{aK2}, s22, v{aK2}"); ldK(1 - b, 0)
                else: ldK(1 - b, jj + 1)
            if i == 0 and jj == 0 and DEFER:
                e(f"s_cmp_lg_u32 s19, {NIT}"); e("s_cbranch_scc1 A_nodef")
                emit_stage(st1, "A_s1"); wpf()
                e.label("A_nodef")
            E(8); E(9); E(10); E(11); C(2); C(3); E(12); E(13)
            e(pv(i, b, 0))
            E(14); E(15); C(4); C(5); C(6); C(7)
            if i == 2: e("s_waitcnt lgkmcnt(0)")
    e("s_sub_u32 s15, s15, 1"); e("s_cmp_lg_u32 s15, 0"); e("s_cbranch_scc1 A_loop")
    inloop[0] = False
    e("s_nop 1")
    e(pv(3, 1, 1))
    e("s_nop 7"); e("s_nop 3")
    e("s_cmp_lg_u32 s14, 0"); e("s_cbranch_scc1 A_fin")
    e(f"v_mov_b32 v10, {hexf(2.0**-40)}")
    e("s_mov_b64 s[16:17], 0")
    for i in range(4):
        e(f"v_cmp_nge_f32 vcc, v{O(i)+10}, v10"); e("s_nop 1"); e("s_or_b64 s[16:17], s[16:17], vcc")
    e("s_and_b32 s16, s16, -1")
    e("s_cbranch_scc0 A_fin")
    e("s_mov_b32 s14, 1")
    for i in range(4):
        e(f"v_mov_b32 v{Q2(i)+1}, 0"); e(f"v_mov_b32 v{O(i)}, 0xff800000")
    e("s_mov_b32 s15, 0")
    e.label("A_max")
    e("s_lshr_b32 s9, s15, 4"); e(f"s_mul_i32 s9, s9, {QB}"); e("s_and_b32 s10, s15, 15")
    e("s_lshl_b32 s11, s10, 10"); e("s_add_u32 s11, s11, s9"); e(f"v_add_u32 v{aK1}, s11, v2")
    e("s_lshl_b32 s11, s10, 7"); e("s_add_u32 s11, s11, s9"); e(f"s_add_u32 s11, s11, {KV_K2}"); e(f"v_add_u32 v{aK2}, s11, v4")
    ldK(0, 0); e("s_waitcnt lgkmcnt(0)")
    for i in range(4):
        e(qk1(0, 0, i)); e(qk2(0, 0, i)); e("s_nop 7"); e("s_nop 3")
        for r in range(0, 16, 2): e(f"v_max3_f32 v{O(i)}, v{S(0)+r}, v{S(0)+r+1}, v{O(i)}")
    e("s_add_u32 s15, s15, 1"); e("s_cmp_lg_u32 s15, 64"); e("s_cbranch_scc1 A_max")
    for i in range(4):
        e(f"v_mov_b32 v8, v{O(i)}"); e(f"v_mov_b32 v9, v{O(i)}"); e("s_nop 1"); e("v_permlane32_swap_b32 v8, v9"); e("s_nop 1")
        e("v_max_f32 v8, v8, v9"); e("v_sub_f32 v8, 0, v8")
        e(f"v_cvt_pk_bf16_f32 v9, v8, v8"); e("v_lshlrev_b32 v9, 16, v9"); e("v_sub_f32 v9, v8, v9")
        e(f"v_cvt_pk_bf16_f32 v9, v8, v9")
        e(f"v_cndmask_b32 v{Q2(i)+1}, 0, v9, s[12:13]")
    e("s_branch A_run")
    e.label("A_fin")
    stamp(e, 5)
    e("s_lshl_b32 s8, s6, 5"); e("s_lshl_b32 s9, s3, 2"); e("s_add_u32 s8, s8, s9"); e("s_lshl_b32 s8, s8, 10"); e(f"s_add_u32 s8, s8, {WS_O1}")
    e("s_lshl_b32 s9, s6, 12"); e("s_lshr_b32 s10, s3, 1"); e("s_lshl_b32 s10, s10, 10"); e("s_add_u32 s9, s9, s10")
    e("s_and_b32 s10, s3, 1"); e("s_lshl_b32 s10, s10, 9"); e("s_add_u32 s9, s9, s10"); e(f"s_add_u32 s9, s9, {WS_O2}")
    e("v_lshlrev_b32 v10, 4, v3")
    for i in range(4):
        e(f"v_mov_b32 v8, v{O(i)+10}"); e(f"v_mov_b32 v9, v{O(i)+10}"); e("s_nop 1"); e("v_permlane32_swap_b32 v8, v9"); e("s_nop 1")
        e("v_rcp_f32 v8, v8"); e("s_nop 0")
        for r in range(10): e(f"v_mul_f32 v{O(i)+r}, v8, v{O(i)+r}")
        for k in range(5): e(f"v_cvt_pk_bf16_f32 v{188+k}, v{O(i)+2*k}, v{O(i)+2*k+1}")
        e(f"buffer_store_dwordx4 {vr(188,4)}, v2, s[24:27], s8 offen offset:{i*1024}" + (" sc1" if gen_mlp4.TAIL else ""))
        e("s_mov_b32 exec_hi, 0")
        e(f"buffer_store_dword v192, v10, s[24:27], s9 offen offset:{i*4}" + (" sc1" if gen_mlp4.TAIL else ""))
        e("s_mov_b32 exec_hi, -1")
        e("s_nop 1")
    if gen_mlp4.TAIL:
        e("s_waitcnt vmcnt(0)"); e("s_barrier")
        e("s_cmp_lg_u32 s5, 0"); e("s_cbranch_scc1 A_nf")
        e("s_lshl_b32 s9, s4, 7"); e("s_lshl_b32 s10, s3, 2"); e("s_add_u32 s9, s9, s10"); e(f"s_add_u32 s9, s9, {WS_FLAG + 64}")
        gen_mlp4.set_flag(e, 9, 8)
        e.label("A_nf")
        gen_mlp4.arrive(e, 8)
    if PROF:
        e("s_waitcnt vmcnt(0)"); stamp(e, 6); stamp_rt(e, 7); stamp_flush(e, 0, 58)
    e("s_endpgm")


def gen_fusedK(e, roles):
    K = "main_kernel"
    kernel_head(e, K)
    e("s_cmp_ge_u32 s2, 256"); e("s_cbranch_scc1 MK_end")
    stamp_rt(e, 0); stamp(e, 1)
    if int(os.environ.get("CODEPF", "1")):
        e("s_getpc_b64 s[68:69]")
        e.label("MK_pc")
        e("v_lshrrev_b32 v126, 6, v0"); e("s_lshr_b32 s7, s2, 3"); e("s_lshl_b32 s7, s7, 2"); e("v_add_u32 v126, s7, v126")
        e("v_lshlrev_b32 v126, 3, v126"); e("v_and_b32 v127, 7, v0"); e("v_add_u32 v126, v126, v127"); e("v_lshlrev_b32 v126, 7, v126")
        e("v_and_b32 v127, 63, v0"); e("v_cmp_gt_u32 vcc, 8, v127"); e("s_nop 3"); e("s_mov_b64 s[8:9], vcc")
        e("s_mov_b32 s7, MK_codeend-MK_pc"); e("v_cmp_gt_u32 vcc, s7, v126"); e("s_nop 3"); e("s_and_b64 vcc, vcc, s[8:9]")
        e("s_and_saveexec_b64 s[8:9], vcc"); e("s_cbranch_execz MK_nopf")
        e("global_load_dword v128, v126, s[68:69]")
        e.label("MK_nopf")
        e("s_mov_b64 exec, s[8:9]")
    e("s_load_dwordx4 s[40:43], s[0:1], 0")
    e("s_load_dwordx4 s[56:59], s[0:1], 96")
    e("s_load_dwordx4 s[44:47], s[0:1], 16")
    e("s_load_dwordx4 s[52:55], s[0:1], 48")
    e("s_load_dwordx2 s[50:51], s[0:1], 64")
    e("s_load_dwordx2 s[48:49], s[0:1], 80")
    e("s_and_b32 s3, s2, 7"); e("s_lshr_b32 s4, s2, 3")
    e("v_lshrrev_b32 v2, 6, v0"); e("v_and_b32 v1, 63, v0"); e("s_nop 0"); e("v_readfirstlane_b32 s5, v2")
    e("s_cmp_ge_u32 s4, 16"); e("s_cbranch_scc1 MK_ida")
    e("s_lshr_b32 s6, s3, 1"); e("s_and_b32 s7, s3, 1"); e("s_and_b32 s8, s4, 3"); e("s_lshr_b32 s9, s4, 2")
    e("s_lshl_b32 s6, s6, 2"); e("s_add_u32 s4, s6, s8"); e("s_lshl_b32 s7, s7, 2"); e("s_add_u32 s3, s7, s9")
    e("s_branch MK_idd")
    e.label("MK_ida")
    e("s_sub_u32 s4, s4, 16")
    e("s_lshl_b32 s6, s3, 1"); e("s_and_b32 s7, s4, 1"); e("s_lshr_b32 s3, s4, 1"); e("s_add_u32 s4, s6, s7")
    e.label("MK_idd")
    e("s_lshl_b32 s6, s4, 2"); e("s_add_u32 s6, s6, s5")
    def common(e, attn):
        e("s_waitcnt lgkmcnt(0)")
        AP3 = int(os.environ.get("APROF", "0")) == 3
        if AP3: stamp(e, 2)
        srd(e, 64, 40, 2048 * 1152)
        if int(os.environ.get("COOPX", "1")):
            e("s_lshr_b32 s7, s2, 3"); e("s_lshl_b32 s7, s7, 2"); e("s_add_u32 s7, s7, s5")
            e("s_and_b32 s8, s2, 7"); e("s_lshr_b32 s9, s8, 1")
            e("v_lshlrev_b32 v118, 7, v1")
            e("s_mul_i32 s10, s7, 4608"); e("s_mul_i32 s11, s9, 589824"); e("s_add_u32 s10, s10, s11")
            e("s_mov_b32 exec_hi, 15")
            e("buffer_load_dword v119, v118, s[64:67], s10 offen")
            e("s_mov_b32 exec_hi, -1")
        e("s_mov_b64 s[94:95], s[42:43]")
        if attn:
            e("s_cmp_eq_u32 s3, 0"); e("s_cselect_b32 s92, s44, s46"); e("s_cselect_b32 s93, s45, s47")
            srd(e, 16, 92, 576 * 36)
            e("s_cmp_ge_u32 s3, 2"); e("s_cbranch_scc1 A_nokv1")
            for k in range(6):
                e(f"s_mov_b32 s9, {k*4096}"); e(f"buffer_load_dwordx4 {vr(208+4*k,4)}, v150, s[16:19], s9 offen")
            e.label("A_nokv1")
        xdma(e, 112)
        if AP3:
            stamp(e, 3); e("s_waitcnt vmcnt(30)"); stamp(e, 4); e("s_waitcnt vmcnt(0)"); stamp(e, 5); stamp(e, 6); stamp_rt(e, 7); stamp_flush(e, 0, 58); e("s_endpgm")
        e(f"s_add_u32 s96, s58, {WS_EPOCH}"); e("s_addc_u32 s97, s59, 0")
        e("s_load_dword s98, s[96:97], 0")
        srd(e, 24, 58, WS_END); srd(e, 28, 52, 576 * 9216); srd(e, 32, 50, 4608 * 1152); srd(e, 36, 54, 9216); srd(e, 60, 56, 256)
        srd(e, 12, 94, 576 * 1152)
        if not attn: srd(e, 20, 48, 1152)
    e("s_lshr_b32 s7, s2, 3"); e("s_cmp_ge_u32 s7, 16")
    if roles == "attn": e("s_cbranch_scc0 MK_end"); e("s_branch A_start")
    elif roles == "mlp": e("s_cbranch_scc1 MK_end")
    else: e("s_cbranch_scc1 A_start")
    gen_mlp4.gen_mlp4(e, common, xfrag_addr, coop)
    gen_attn_f(e, common)
    e.label("MK_end"); e("s_endpgm")
    e.label("MK_codeend")
    return kernel_desc(K, 512, 100, 256)
def add(body, descs, launches, which):
    roles = "both"
    if which in ("attn", "mlp"): roles = which
    descs.append(gen_fusedK(body, roles)); launches.append(f"; @launch kernel=main_kernel grid=(256,1,1) block=(256,1,1) lds={LDS_MAIN}")
    if not gen_mlp4.TAIL:
        import gen_final
        gen_final.add(body, descs, launches)
```

```python
import os, math
from gen import *
X_NODMA = int(os.environ.get("X_NODMA", "0")); X_NOGELU = int(os.environ.get("X_NOGELU", "0"))
ST_SC1 = " sc1" if int(os.environ.get("ST_SC1", "1")) else ""
PRERED = int(os.environ.get('PRERED', '1'))
SLOT = [0, 36864, 73728, 110592]; BIAS = 147456

TAIL = int(os.environ.get('TAIL', '1'))
INRED = TAIL and int(os.environ.get('INRED', '0'))
RCL = []
WS_DUMMY = WS_FLAG - 0x1000
TAGR = 98

def poll_flags(e, name, lo_mask, vtmp, sreg=57, cmp=None, inv=True):
    e("s_cmp_lg_u32 s5, 0"); e(f"s_cbranch_scc1 {name}_w")
    e("v_mbcnt_lo_u32_b32 v{0}, -1, 0".format(vtmp)); e(f"v_lshlrev_b32 v{vtmp}, 2, v{vtmp}")
    e(f"s_mov_b32 exec_lo, {hex(lo_mask)}"); e("s_mov_b32 exec_hi, 0")
    e.label(f"{name}_p")
    e(f"buffer_load_dword v{vtmp+1}, v{vtmp}, s[24:27], s{sreg} offen sc1")
    e("s_waitcnt vmcnt(0)")
    e(f"v_cmp_ne_u32 vcc, s{cmp or TAGR}, v{vtmp+1}"); e("s_nop 7")
    e(f"s_cbranch_vccz {name}_d")
    e("s_sleep 4"); e(f"s_branch {name}_p")
    e.label(f"{name}_d")
    e("s_mov_b64 exec, -1")
    if inv: e("buffer_inv sc1"); e("s_waitcnt vmcnt(0)")
    e.label(f"{name}_w")
    e("s_barrier")
def set_flag(e, word_sreg_expr, vtmp):
    e("s_mov_b64 exec, 1"); e(f"v_mov_b32 v{vtmp}, 0"); e(f"v_mov_b32 v{vtmp+1}, s{TAGR}")
    e(f"buffer_store_dword v{vtmp+1}, v{vtmp}, s[24:27], s{word_sreg_expr} offen sc1")
    e("s_mov_b64 exec, -1")

def mktag(e):
    e(f"s_add_u32 s{TAGR}, s{TAGR}, 1")
def arrive(e, vt):
    e("s_mov_b64 s[94:95], exec")
    e("s_cmp_eq_u32 s5, 0"); e("s_cselect_b64 exec, 1, 0")
    e(f"v_mov_b32 v{vt}, 0"); e(f"v_mov_b32 v{vt+1}, 1")
    e("s_cbranch_execz L_arr%d" % len(ARR));
    e(f"buffer_atomic_add v{vt+1}, v{vt}, s[60:63], 0 offen offset:4")
    e.label("L_arr%d" % len(ARR)); ARR.append(1)
    e("s_mov_b64 exec, s[94:95]")
ARR = []
def gen_tail(e, vL16):
    e("s_lshl_b32 s57, s4, 7"); e(f"s_add_u32 s57, s57, {WS_FLAG}")
    e("s_load_dwordx2 s[42:43], s[0:1], 72"); e("s_load_dwordx2 s[92:93], s[0:1], 88")
    e("s_waitcnt vmcnt(0) lgkmcnt(0)"); e("s_barrier")
    srd(e, 20, 42, 1152)
    if not INRED:
        e(f"s_lshl_b32 s97, s{TAGR}, 4"); e("s_lshl_b32 s99, s3, 2"); e("s_add_u32 s99, s99, s57")
    e("s_add_u32 s96, s97, 9")
    e("s_cmp_lg_u32 s5, 0"); e("s_cbranch_scc1 T_nf1")
    e("s_mov_b64 exec, 1"); e("v_mov_b32 v13, 0"); e("v_mov_b32 v14, s96")
    e("buffer_store_dword v14, v13, s[24:27], s99 offen sc1")
    e("s_mov_b64 exec, -1")
    e.label("T_nf1")
    arrive(e, 13)
    e("v_mbcnt_lo_u32_b32 v1, -1, 0"); e("v_mbcnt_hi_u32_b32 v1, -1, v1")
    if INRED:
        e("v_mbcnt_lo_u32_b32 v15, -1, 0"); e("v_mbcnt_hi_u32_b32 v15, -1, v15"); e("v_lshlrev_b32 v15, 3, v15")
        def sum_store(srcs, soff):
            for sp in range(NSPLIT):
                for j in range(2):
                    c0 = "0" if sp == 0 else f"v{16+2*j}"; c1 = "0" if sp == 0 else f"v{17+2*j}"
                    e(f"v_dot2_f32_bf16 v{16+2*j}, v{srcs[sp]+j}, s64, {c0}"); e(f"v_dot2_f32_bf16 v{17+2*j}, v{srcs[sp]+j}, s65, {c1}")
            e("s_nop 3"); e("v_cvt_pk_bf16_f32 v20, v16, v17"); e("v_cvt_pk_bf16_f32 v21, v18, v19"); e("s_nop 1")
            e(f"buffer_store_dwordx2 v[20:21], v15, s[24:27], s{soff} offen sc1"); e("s_nop 1")
        for r in range(16): e(f"v_accvgpr_read_b32 v{32+r}, a{r}")
        sum_store([32 + 2 * sp for sp in range(NSPLIT)], 47)
        poll_flags(e, "T_pp", 0xff, 13, cmp=96, inv=False)
        for p in range(5, 9):
            for sp in range(NSPLIT):
                e(f"s_add_u32 s8, s45, {p*4096 + sp*64*18*2048}")
                e(f"buffer_load_dwordx2 {vr(128+16*(p-5)+2*sp,2)}, v15, s[24:27], s8 offen sc1")
        for p in range(5, 9):
            e(f"s_waitcnt vmcnt({8*(8-p) + (p-5)})")
            e(f"s_add_u32 s47, s45, {p*4096 + WS_B - WS_P}")
            sum_store([128 + 16 * (p - 5) + 2 * sp for sp in range(NSPLIT)], 47)
    if not INRED:
        poll_flags(e, "T_pp", 0xff, 13, cmp=96, inv=False)
        e("s_mul_i32 s11, s3, 18"); e("s_add_u32 s11, s11, s5")
        e(f"s_mul_i32 s12, s4, {4*18*2048}")
        e("s_lshl_b32 s13, s11, 10"); e("s_add_u32 s12, s12, s13")
        e(f"s_add_u32 s13, s12, {WS_P}"); e(f"s_add_u32 s14, s12, {WS_B}")
        e("s_mov_b32 s64, 0x3f80"); e("s_mov_b32 s65, 0x3f800000")
        for k in range(5):
            if k == 4: e("s_cmp_ge_u32 s5, 2"); e("s_cbranch_scc1 T_skip5a")
            for sp in range(NSPLIT):
                e(f"s_add_u32 s55, s13, {sp*64*18*2048 + k*4096}")
                e(f"buffer_load_dwordx4 {vr(96+32*k+4*sp,4)}, v{vL16}, s[24:27], s55 offen sc1")
            if k == 4: e.label("T_skip5a")
        for k in range(5):
            if k == 4: e("s_cmp_ge_u32 s5, 2"); e("s_cbranch_scc1 T_skip5b")
            if k == 0: e("s_waitcnt vmcnt(0)")
            for sp in range(NSPLIT):
                for j in range(4):
                    src = 96 + 32 * k + 4 * sp + j
                    c0 = "0" if sp == 0 else f"v{16+2*j}"; c1 = "0" if sp == 0 else f"v{17+2*j}"
                    e(f"v_dot2_f32_bf16 v{16+2*j}, v{src}, s64, {c0}"); e(f"v_dot2_f32_bf16 v{17+2*j}, v{src}, s65, {c1}")
            e("s_nop 3")
            for j in range(4): e(f"v_cvt_pk_bf16_f32 v{24+j+4*(k%2)}, v{16+2*j}, v{17+2*j}")
            e(f"s_add_u32 s55, s14, {k*4096}")
            e(f"buffer_store_dwordx4 {vr(24+4*(k%2),4)}, v{vL16}, s[24:27], s55 offen sc1")
            if k == 4: e.label("T_skip5b")
    e("s_waitcnt vmcnt(0)"); e("s_barrier")
    e("s_cmp_lg_u32 s5, 0"); e("s_cbranch_scc1 T_nf2")
    e("s_lshl_b32 s8, s3, 2"); e("s_add_u32 s8, s8, s57"); e("s_add_u32 s8, s8, 32"); set_flag(e, 8, 13)
    e.label("T_nf2")
    srd(e, 12, 92, 2048 * 1152)
    stamp(e, 5)
    e("v_lshrrev_b32 v2, 2, v1"); e("v_and_b32 v3, 3, v1"); e("v_lshlrev_b32 v3, 4, v3")
    e("v_mul_u32_u24 v4, 1152, v2"); e("v_add_u32 v4, v4, v3")
    e("s_lshl_b32 s52, s3, 7")
    e(f"s_mul_i32 s51, s5, {144*1152}"); e("s_add_u32 s51, s51, s52"); e("s_mul_i32 s53, s5, 9216")
    e("s_cmp_lg_u32 s3, 7"); e("s_cbranch_scc1 T_no2")
    for ii in range(9):
        e(f"s_add_u32 m0, s53, {3*36864 + ii*1024}"); e(f"s_add_u32 s54, s51, {ii*16*1152 + 192}")
        e("buffer_load_dwordx4 v4, s[16:19], s54 offen lds")
    e.label("T_no2")
    e("v_and_b32 v6, 31, v1"); e("v_lshrrev_b32 v7, 5, v1")
    tr_lane_addr(e, 8, 1, 2, 3, 4)
    e("v_bfe_u32 v2, v1, 3, 1"); e("v_lshlrev_b32 v3, 2, v7"); e("v_add_u32 v2, v2, v3"); e("v_mul_u32_u24 v2, 18, v2")
    e("v_bfe_u32 v3, v1, 2, 1"); e("v_add_u32 v2, v2, v3"); e("v_add_u32 v2, 16, v2"); e("v_lshlrev_b32 v9, 6, v2")
    e("v_bfe_u32 v2, v1, 4, 1"); e("v_lshlrev_b32 v2, 5, v2"); e("v_add_u32 v9, v9, v2")
    e("v_and_b32 v2, 3, v1"); e("v_lshlrev_b32 v2, 3, v2"); e("v_add_u32 v9, v9, v2")
    e("v_add_u32 v10, 36864, v8"); e("v_add_u32 v11, 36864, v9")
    e("v_lshlrev_b32 v3, 3, v7")
    for jb in range(2):
        for j in range(2):
            for q in range(4): e(f"buffer_load_dwordx2 {vr(96+16*jb+8*j+2*q,2)}, v3, s[20:23], s52 offen offset:{jb*128+j*64+q*16}")
    e("s_lshl_b32 s46, s6, 7"); e(f"s_add_u32 s46, s46, {WS_G}"); e("v_lshlrev_b32 v12, 2, v6".replace("v12", "v4"))
    e("s_mul_i32 s50, s6, 18"); e("s_lshl_b32 s54, s3, 1"); e("s_add_u32 s50, s50, s54"); e("s_lshl_b32 s50, s50, 11"); e(f"s_add_u32 s50, s50, {WS_B}")
    def b_loads():
        e("buffer_load_dword v5, v4, s[24:27], s46 offen sc1")
        for jb in range(2):
            for j in range(2):
                for hf in range(2):
                    e(f"s_add_u32 s54, s50, {jb*4096}")
                    e(f"buffer_load_dwordx4 {vr(128+16*jb+8*j+4*hf,4)}, v{vL16}, s[24:27], s54 offen offset:{j*2048+hf*1024} sc1")
    def ps_compute():
        for jb in range(2):
            for j in range(2):
                PS = 160 + 32 * jb + 16 * j
                for k in range(8):
                    src = 128 + 16 * jb + 8 * j + k
                    e(f"v_lshlrev_b32 v{PS+2*k}, 16, v{src}"); e(f"v_and_b32 v{PS+2*k+1}, 0xffff0000, v{src}")
                for r in range(16): e(f"v_mul_f32 v{PS+r}, {hexf(1/KAPPA)}, v{PS+r}")
                for k in range(8):
                    src = 96 + 16 * jb + 8 * j + k
                    e(f"v_dot2_f32_bf16 v{PS+2*k}, v{src}, s64, v{PS+2*k}"); e(f"v_dot2_f32_bf16 v{PS+2*k+1}, v{src}, s65, v{PS+2*k+1}")
    e("v_mul_u32_u24 v2, 1152, v6"); e("v_lshlrev_b32 v3, 4, v7"); e("v_add_u32 v2, v2, v3")
    e(f"s_mul_i32 s51, s6, {32*1152}"); e("s_add_u32 s51, s51, s52")
    e("s_lshl_b32 s55, s6, 15"); e(f"s_add_u32 s55, s55, {WS_O1}")
    e("s_lshl_b32 s56, s6, 12"); e(f"s_add_u32 s56, s56, {WS_O2}")
    ACC = [16, 32]
    MB = 159744
    def rdk(k, img, slot):
        d = 144 + 4 * slot
        am, ae = (8, 9) if img == 0 else (10, 11)
        if k < 32: a_, o1, o2 = am, k * 1152, k * 1152 + 512
        else: a_, o1, o2 = ae, (k - 32) * 8 * 1152, (k - 32) * 8 * 1152 + 2 * 1152
        e(f"ds_read_b64_tr_b16 {ar(d,2)}, v{a_} offset:{o1}"); e(f"ds_read_b64_tr_b16 {ar(d+2,2)}, v{a_} offset:{o2}")
    def mm_block(ks):
        fr = [(k, img) for k in ks for img in range(2)]
        for i, (k, img) in enumerate(fr): rdk(k, img, i)
        for i, (k, img) in enumerate(fr):
            e(f"s_waitcnt lgkmcnt({min(15, 2*(len(fr)-1-i))})")
            e(f"v_mfma_f32_32x32x16_bf16 {vr(ACC[img],16)}, {ar(144+4*i,4)}, {ar(4*k,4)}, {vr(ACC[img],16)}")
    for r in range(32): e(f"v_mov_b32 v{16+r}, 0")
    e("s_waitcnt vmcnt(0)"); e("s_barrier")
    e(f"v_mov_b32 v14, {MB}"); e("v_mov_b32 v13, 0")
    e("s_cmp_lg_u32 s5, 0"); e("s_cbranch_scc1 T_mbi"); e("ds_write_b32 v14, v13"); e.label("T_mbi")
    e("s_waitcnt lgkmcnt(0)"); e("s_barrier")
    e("s_mov_b32 s8, 0"); e("s_mov_b32 s9, 0")
    e("v_mbcnt_lo_u32_b32 v15, -1, 0"); e("v_lshlrev_b32 v15, 2, v15")
    e.label("T_round")
    e("s_cmp_lg_u32 s5, 0"); e("s_cbranch_scc1 T_rd_mb")
    e("s_mov_b32 exec_lo, 0xffff00"); e("s_mov_b32 exec_hi, 0")
    e("buffer_load_dword v13, v15, s[24:27], s57 offen sc1")
    e("s_waitcnt vmcnt(0)")
    e(f"v_cmp_eq_u32 vcc, s{TAGR}, v13"); e("s_mov_b64 exec, -1"); e("s_nop 4")
    e("s_lshr_b32 s10, vcc_lo, 8")
    e("s_and_b32 s7, s10, 0xff"); e("s_lshr_b32 s10, s10, 8"); e("s_cmp_eq_u32 s7, 0xff"); e("s_cselect_b32 s7, 0x1000, 0"); e("s_or_b32 s10, s10, s7")
    e("v_mov_b32 v13, s10"); e("ds_write_b32 v14, v13")
    e("s_branch T_have")
    e.label("T_rd_mb")
    e("ds_read_b32 v13, v14"); e("s_waitcnt vmcnt(0) lgkmcnt(0)"); e("v_readfirstlane_b32 s10, v13"); e("s_nop 3")
    e.label("T_have")
    e("s_andn2_b32 s11, s8, s9"); e("s_or_b32 s9, s9, s11")
    for g in range(8):
        e(f"s_bitcmp1_b32 s11, {g}"); e(f"s_cbranch_scc0 T_nc{g}")
        mm_block([4 * g + i for i in range(4)])
        e.label(f"T_nc{g}")
    for x in range(4):
        e(f"s_bitcmp1_b32 s11, {8+x}"); e(f"s_cbranch_scc0 T_ncx{x}")
        mm_block([32 + x])
        e.label(f"T_ncx{x}")
    e("s_bitcmp1_b32 s11, 12"); e("s_cbranch_scc0 T_ncb")
    ps_compute()
    e.label("T_ncb")
    e("s_cmp_eq_u32 s9, 0x1fff"); e("s_cbranch_scc1 T_alld")
    e("s_lshr_b32 s11, s10, 1"); e("s_and_b32 s11, s11, s10")
    for x in range(4):
        e(f"s_bitcmp1_b32 s11, {2*x}"); e(f"s_cselect_b32 s7, {1 << (8+x)}, 0"); e("s_or_b32 s10, s10, s7")
    e("s_andn2_b32 s11, s10, s8"); e("s_or_b32 s8, s8, s11")
    e("s_cmp_eq_u32 s11, 0"); e("s_cbranch_scc1 T_idle")
    for g in range(8):
        e(f"s_bitcmp1_b32 s11, {g}"); e(f"s_cbranch_scc0 T_nl{g}")
        e(f"s_add_u32 s54, s55, {g*4096}")
        for i in range(4): e(f"buffer_load_dwordx4 {ar(16*g+4*i,4)}, v{vL16}, s[24:27], s54 offen offset:{i*1024} sc1")
        e.label(f"T_nl{g}")
    for x in range(4):
        e(f"s_bitcmp1_b32 s11, {8+x}"); e(f"s_cbranch_scc0 T_nlx{x}")
        e(f"buffer_load_dwordx4 {ar(128+4*x,4)}, v{vL16}, s[24:27], s56 offen offset:{x*1024} sc1")
        e.label(f"T_nlx{x}")
    e("s_bitcmp1_b32 s11, 12"); e("s_cbranch_scc0 T_nlb")
    b_loads()
    e.label("T_nlb")
    e("s_branch T_round")
    e.label("T_idle")
    e("s_sleep 3"); e("s_branch T_round")
    e.label("T_alld")
    stamp(e, 4)
    def rd(k, img):
        d = 144 + 4 * ((2 * k + img) % 8)
        am, ae = (8, 9) if img == 0 else (10, 11)
        if k < 32: a_, o1, o2 = am, k * 1152, k * 1152 + 512
        else: a_, o1, o2 = ae, (k - 32) * 8 * 1152, (k - 32) * 8 * 1152 + 2 * 1152
        e(f"ds_read_b64_tr_b16 {ar(d,2)}, v{a_} offset:{o1}"); e(f"ds_read_b64_tr_b16 {ar(d+2,2)}, v{a_} offset:{o2}")
    for jb in range(2):
        if jb == 1:
            e("s_cmp_lg_u32 s3, 7"); e("s_cbranch_scc1 T_done")
            for r in (8, 9, 10, 11): e(f"v_add_u32 v{r}, 73728, v{r}")
            for k in range(3): rd(k, 0); rd(k, 1)
            for k in range(36):
                nout = 4 * (min(35, k + 2) - k)
                e(f"s_waitcnt lgkmcnt({nout})")
                for img in range(2):
                    c = "0" if k == 0 else vr(ACC[img], 16)
                    e(f"v_mfma_f32_32x32x16_bf16 {vr(ACC[img],16)}, {ar(144+4*((2*k+img)%8),4)}, {ar(4*k,4)}, {c}")
                    if k + 3 < 36: rd(k + 3, img)
        e("s_nop 7"); e("s_nop 3")
        for j in range(2):
            PS = 160 + 32 * jb + 16 * j
            A = ACC[j]
            for r in range(16):
                e(f"v_sub_f32 v{A+r}, v{A+r}, v{PS+r}"); e(f"v_fma_f32 v{A+r}, v5, v{A+r}, v{PS+r}")
            pk = 80 + 8 * j
            for k in range(8): e(f"v_cvt_pk_bf16_f32 v{pk+k}, v{A+2*k}, v{A+2*k+1}")
            e("s_nop 1")
            for base in (pk, pk + 4):
                e(f"v_permlane32_swap_b32 v{base}, v{base+2}"); e(f"v_permlane32_swap_b32 v{base+1}, v{base+3}")
            e("s_nop 1")
            e(f"buffer_store_dwordx4 {vr(pk,4)}, v2, s[12:15], s51 offen offset:{jb*128+j*64}")
            e(f"buffer_store_dwordx4 {vr(pk+4,4)}, v2, s[12:15], s51 offen offset:{jb*128+j*64+32}")
    e.label("T_done")
    e("s_or_b32 s8, s3, s4"); e("s_or_b32 s8, s8, s5"); e("s_cmp_lg_u32 s8, 0"); e("s_cbranch_scc1 T_end")
    e("s_mov_b64 exec, 1"); e("v_mov_b32 v13, 0")
    e.label("T_ep")
    e("buffer_load_dword v14, v13, s[60:63], 0 offen offset:4 sc1")
    e("s_waitcnt vmcnt(0)")
    e("v_readfirstlane_b32 s8, v14"); e("s_nop 3")
    e("s_cmp_ge_u32 s8, 256"); e("s_cbranch_scc1 T_epd")
    e("s_sleep 2"); e("s_branch T_ep")
    e.label("T_epd")
    e(f"v_mov_b32 v14, s{TAGR}"); e(f"s_mov_b32 s8, {WS_EPOCH}")
    e("buffer_store_dword v14, v13, s[24:27], s8 offen")
    e("s_mov_b64 exec, -1")
    e.label("T_end")

GWL = BIAS + 2304
def gen_mlp4(e, common, xfrag_addr, coop):
    YF = lambda s: ar(4 * s, 4)
    NR = 8
    RING = lambda k: 144 + 4 * (k % NR)
    SB = lambda b, u: 16 + 32 * b + 16 * u
    PR = lambda c: 112 + 8 * c
    PK = 80
    T = [96, 97, 98, 99, 100, 101]
    aX = [104, 105, 106, 107]; aY = [108, 109, 110, 111]
    dW1 = [2, 3, 4, 5]; dW2 = [6, 7, 8, 9]; aB, cC0, vL16 = 10, 11, 12
    D = 6
    e.label("M_start")
    e(f"v_lshlrev_b32 v{vL16}, 4, v1")
    e("v_lshlrev_b32 v13, 3, v0"); e("v_lshlrev_b32 v14, 4, v0")
    e("v_and_b32 v74, 31, v1"); e("v_lshrrev_b32 v75, 5, v1")
    e("v_and_b32 v15, 3, v1"); e("v_lshlrev_b32 v15, 4, v15")
    e("v_lshrrev_b32 v16, 5, v1"); e("v_lshlrev_b32 v16, 6, v16"); e("v_add_u32 v15, v15, v16")
    e("v_bfe_u32 v16, v1, 2, 3")
    e(f"v_mul_u32_u24 v{dW1[0]}, 9216, v16"); e(f"v_add_u32 v{dW1[0]}, v{dW1[0]}, v15")
    e(f"v_mul_u32_u24 v{dW2[0]}, 1152, v16"); e(f"v_add_u32 v{dW2[0]}, v{dW2[0]}, v15")
    S1, S2 = 8 * 9216, 8 * 1152
    for q in range(1, 4):
        e(f"v_add_u32 v{dW1[q]}, {q*(S1-1024)}, v{dW1[0]}"); e(f"v_add_u32 v{dW2[q]}, {q*(S2-1024)}, v{dW2[0]}")
    e("v_lshrrev_b32 v15, 5, v1")
    e("v_bfe_u32 v16, v1, 2, 2"); e("v_lshlrev_b32 v16, 6, v16")
    e("v_bfe_u32 v17, v1, 4, 1"); e("v_lshlrev_b32 v17, 5, v17"); e("v_add_u32 v16, v16, v17")
    e("v_and_b32 v17, 3, v1"); e("v_lshlrev_b32 v17, 3, v17"); e("v_add_u32 v16, v16, v17")
    e("v_lshlrev_b32 v17, 10, v15"); e("v_add_u32 v17, v17, v16")
    e("v_lshlrev_b32 v18, 8, v15"); e("v_add_u32 v18, v18, v16")
    for k in range(4):
        e(f"v_add_u32 v{aX[k]}, {SLOT[k]}, v17"); e(f"v_add_u32 v{aY[k]}, {SLOT[k]}, v18")
    e("v_lshlrev_b32 v15, 4, v15"); e(f"v_add_u32 v{aB}, {BIAS}, v15")
    e(f"v_mov_b32 v{cC0}, {hexf(GC0)}")
    xfrag_addr(e, 68, 72)
    common(e, False)
    e("v_cmp_gt_u32 vcc, 144, v0"); e("s_nop 1"); e("s_mov_b64 s[46:47], vcc")
    e(f"s_mul_i32 s40, s5, {72*9216}"); e("s_mul_i32 s42, s3, 1152"); e("s_add_u32 s40, s40, s42")
    e(f"s_mul_i32 s41, s3, {576*1152}"); e(f"s_mul_i32 s42, s5, {72*1152}"); e("s_add_u32 s41, s41, s42")
    e("s_mul_i32 s43, s5, 9216")
    vq = []
    def vm_issue(tag, ins):
        for x in ins: e(x)
        vq.append(tag)
    def vm_need(tag):
        idx = max((i for i, t in enumerate(vq) if t == tag), default=None)
        if idx is None: return None
        n = len(vq) - 1 - idx
        del vq[:idx + 1]
        return n
    REC = {"mode": None, "log": [], "over": None, "i": 0}
    def vm_wait(tag):
        n = vm_need(tag)
        if REC["mode"] == "rec": REC["log"].append(n)
        if REC["mode"] == "use":
            n = REC["over"][REC["i"]]; REC["i"] += 1
        if n is not None: e(f"s_waitcnt vmcnt({n})")
    def dma_groups(phi, ybase=None, solo=False):
        slot = SLOT[phi % 4]; out = []
        t, hh = phi // 2, phi % 2
        for ii in range(9):
            q = 0 if solo else ii % 4; g = []
            if phi < 18:
                if q == 0: g += [f"s_add_u32 m0, s43, {slot + ii*1024}", f"s_add_u32 s44, s40, {hh*288*9216 + ii*S1 + t*128}"]
                g.append(f"buffer_load_dwordx4 v{dW1[q]}, s[28:31], s44 offen offset:{q*1024} lds")
            else:
                np_ = (t - 9) if ybase is None else (t - ybase)
                if q == 0: g += [f"s_add_u32 m0, s43, {slot + ii*1024}", f"s_add_u32 s44, s41, {hh*288*1152 + ii*S2 + np_*128}"]
                g.append(f"buffer_load_dwordx4 v{dW2[q]}, s[32:35], s44 offen offset:{q*1024} lds")
            out.append(g)
        return out
    class LT:
        def __init__(self): self.q = []
        def issue(self, tag, ins):
            for x in ins: e(x); self.q.append(tag)
        def wait(self, tag):
            idx = max((i for i, t in enumerate(self.q) if t == tag), default=None)
            if idx is None: return
            n = len(self.q) - 1 - idx
            e(f"s_waitcnt lgkmcnt({min(n, 15)})")
            self.q = self.q[idx + 1:] if n <= 15 else self.q[len(self.q) - 15:]
    lt = LT()
    def frag_rd(phi, i):
        s, u = i // 2, i % 2
        d = RING(phi * 36 + i)
        if phi < 18:
            a = aX[phi % 4]; o1 = s * 2048 + u * 512; o2 = o1 + 256
        else:
            a = aY[phi % 4]; o1 = s * 2048 + u * 512; o2 = o1 + 1024
        return [f"ds_read_b64_tr_b16 {ar(d,2)}, v{a} offset:{o1}", f"ds_read_b64_tr_b16 {ar(d+2,2)}, v{a} offset:{o2}"]
    def mfma(phi, i):
        t, hh = phi // 2, phi % 2
        s, u = i // 2, i % 2
        ks = 18 * hh + s
        A = ar(RING(phi * 36 + i), 4); Dst = vr(SB(t % 2, u), 16)
        if phi < 18: return f"v_mfma_f32_32x32x16_bf16 {Dst}, {A}, {YF(ks)}, {Dst}"
        B = vr(PR(ks // 2) + 4 * (ks % 2), 4)
        C = "0" if ks == 0 else Dst
        return f"v_mfma_f32_32x32x16_bf16 {Dst}, {A}, {B}, {C}"
    def gelu(x, t):
        return [f"v_fma_f32 v{t}, v{x}, v{x}, v{cC0}", f"v_mul_f32 v{t}, v{x}, v{t}", f"v_exp_f32 v{t}, -v{t}",
                f"v_add_f32 v{t}, 1.0, v{t}", f"v_rcp_f32 v{t}, v{t}", f"v_mul_f32 v{x}, v{x}, v{t}"]
    def gelu_tile(b, u, c):
        out = []
        base = SB(b, u)
        for g0 in (0, 3, 6, 9, 12, 14):
            grp = list(range(g0, g0 + 3)) if g0 < 12 else [g0, g0 + 1]
            seqs = [gelu(base + r, T[(i + (3 if (g0 // 3) % 2 else 0)) % 6]) for i, r in enumerate(grp)]
            for op in range(6):
                for sq in seqs: out.append(sq[op])
        for k in range(8): out.append(f"v_cvt_pk_bf16_f32 v{PR(c)+k}, v{base+2*k}, v{base+2*k+1}")
        return out
    def bias_rd(b, u, c): return [f"ds_read_b128 {vr(SB(b,u)+4*q,4)}, v{aB} offset:{c*128+q*32}" for q in range(4)]
    def cost(x): return 8 if x.startswith(("v_exp", "v_rcp")) else 4
    WP = 2
    def need(gk):
        if gk % WP == 0:
            for kk in range(gk + WP - 1, gk - 1, -1):
                if ("f", kk) in lt.q:
                    lt.wait(("f", kk)); return
    def spread(items, n):
        tot = sum(cost(x) for x in items if isinstance(x, str)) or 1
        out = [[] for _ in range(n)]; acc = 0; g = 0
        for x in items:
            while g < n - 1 and acc >= tot * (g + 1) / n: g += 1
            out[g].append(x); acc += cost(x) if isinstance(x, str) else 4
        return out
    def phase(phi, fills, dma, next_phi, extra=None, ybase=None, pend=None):
        dma = list(dma)
        for i in range(36):
            gk = phi * 36 + i
            e(mfma(phi, i))
            nxt = i + D
            if nxt == 36 and next_phi is not None:
                vm_wait(("d", next_phi))
                e("s_barrier")
            if nxt < 36: lt.issue(("f", gk + D), frag_rd(phi, nxt))
            elif next_phi is not None: lt.issue(("f", gk + D), frag_rd(next_phi, nxt - 36))
            if extra and i in extra: extra[i]()
            if dma and i % 4 == 1:
                g = dma.pop(0)
                if not X_NODMA: vm_issue(("d", phi + 3), g)
            if pend:
                pend(i)
            if not X_NOGELU:
                for x in fills[i]:
                    if isinstance(x, tuple): vm_issue(x[0], [x[1]])
                    else: e(x)
            need(gk + 1)
        assert not dma
    XR = 112
    vq.extend([("x", 0)] * 36)
    e("s_mul_i32 s42, s3, 1152")
    e("s_mov_b64 s[50:51], exec"); e("s_mov_b64 exec, s[46:47]")
    vm_issue("bias", ["buffer_load_dwordx2 v[60:61], v13, s[36:39], s42 offen"])
    e("s_mov_b64 exec, s[50:51]")
    e("v_cmp_gt_u32 vcc, 72, v0"); e("s_nop 1"); e("s_mov_b64 s[54:55], vcc"); e("s_mov_b64 exec, s[54:55]")
    vm_issue("gw", ["buffer_load_dwordx4 v[64:67], v14, s[20:23], 0 offen"])
    e("s_mov_b64 exec, s[50:51]")
    coop(e, 48); vq.extend(["pf", "pf"])
    n = vm_need(("x", 0)); e(f"s_waitcnt vmcnt({n})")
    for s_ in range(36): e(f"ds_read_b128 {vr(XR+4*s_,4)}, v{68+s_%4} offset:{(s_//4)*128}")
    n = vm_need("gw"); e(f"s_waitcnt vmcnt({n}) lgkmcnt(0)"); stamp(e, 2); e("s_barrier")
    mktag(e)
    pend = [(("d", ph), g) for ph in range(3) for g in dma_groups(ph, solo=True)]
    e("s_mov_b64 exec, s[46:47]")
    e("v_and_b32 v63, 0xffff0000, v61"); e("v_lshlrev_b32 v62, 16, v61"); e("v_and_b32 v61, 0xffff0000, v60"); e("v_lshlrev_b32 v60, 16, v60")
    for r in range(60, 64): e(f"v_mul_f32 v{r}, {hexf(KAPPA)}, v{r}")
    e(f"v_add_u32 v76, {BIAS}, v14"); e("ds_write_b128 v76, v[60:63]")
    e("s_mov_b64 exec, s[54:55]"); e(f"v_add_u32 v76, {GWL}, v14"); e("ds_write_b128 v76, v[64:67]")
    e("s_mov_b64 exec, s[50:51]")
    A0, A1, A2 = 78, 79, 80
    e("s_mov_b32 s56, 0x3f803f80")
    e(f"v_mov_b32 v{A0}, 0"); e(f"v_mov_b32 v{A1}, 0"); e(f"v_mov_b32 v81, 0"); e(f"v_mov_b32 v82, 0")
    for i in range(144):
        e(f"v_dot2_f32_bf16 v{A0 if i%2==0 else 81}, v{XR+i}, s56, v{A0 if i%2==0 else 81}")
        e(f"v_dot2_f32_bf16 v{A1 if i%2==0 else 82}, v{XR+i}, v{XR+i}, v{A1 if i%2==0 else 82}")
        if i % 5 == 0 and pend:
            tag, g = pend.pop(0); vm_issue(tag, g)
    assert not pend
    e("s_nop 3")
    e(f"v_add_f32 v{A0}, v{A0}, v81"); e(f"v_add_f32 v{A1}, v{A1}, v82")
    for r in (A0, A1):
        e(f"v_mov_b32 v83, v{r}"); e("s_nop 1"); e(f"v_permlane32_swap_b32 v{r}, v83"); e("s_nop 1"); e(f"v_add_f32 v{r}, v{r}, v83")
    e(f"v_mul_f32 v{A0}, {hexf(1/576)}, v{A0}"); e(f"v_mul_f32 v{A1}, {hexf(1/576)}, v{A1}")
    e(f"v_fma_f32 v{A1}, -v{A0}, v{A0}, v{A1}"); e(f"v_max_f32 v{A1}, 0, v{A1}"); e(f"v_add_f32 v{A1}, {hexf(1e-5)}, v{A1}")
    e(f"v_rsq_f32 v{A1}, v{A1}"); e("s_nop 0"); e(f"v_mul_f32 v{A1}, {hexf(KAPPA)}, v{A1}")
    e(f"v_mul_f32 v{A0}, v{A0}, v{A1}")
    e("s_waitcnt lgkmcnt(0)"); e("s_barrier")
    e("s_cmp_lg_u32 s3, 2"); e("s_cbranch_scc1 M_nogate")
    e("v_lshlrev_b32 v83, 4, v75"); e(f"v_add_u32 v83, {GWL}, v83"); e(f"v_mov_b32 v{A2}, 0")
    for g0 in range(0, 36, 4):
        for k in range(4): e(f"ds_read_b128 {vr(84+4*k,4)}, v83 offset:{(g0+k)*32}")
        e("s_waitcnt lgkmcnt(0)")
        for k in range(4):
            for j in range(4): e(f"v_dot2_f32_bf16 v{A2}, v{XR+4*(g0+k)+j}, v{84+4*k+j}, v{A2}")
    e("s_nop 3"); e(f"v_mov_b32 v83, v{A2}"); e("s_nop 1"); e(f"v_permlane32_swap_b32 v{A2}, v83"); e("s_nop 1"); e(f"v_add_f32 v{A2}, v{A2}, v83")
    e(f"v_mul_f32 v{A2}, {hexf(-math.log2(math.e))}, v{A2}"); e(f"v_exp_f32 v{A2}, v{A2}"); e("s_nop 0")
    e(f"v_add_f32 v{A2}, 1.0, v{A2}"); e(f"v_rcp_f32 v{A2}, v{A2}")
    e("s_lshl_b32 s53, s6, 7"); e(f"s_add_u32 s53, s53, {WS_G}"); e("v_lshlrev_b32 v83, 2, v74")
    e("s_mov_b32 exec_hi, 0"); e(f"buffer_store_dword v{A2}, v83, s[24:27], s53 offen sc1"); e("s_mov_b32 exec_hi, -1")
    e("s_waitcnt vmcnt(0)")
    e.label("M_nogate")
    e(f"v_mov_b32 v84, v{A1}"); e(f"v_mov_b32 v85, v{A1}"); e(f"v_sub_f32 v86, 0, v{A0}"); e(f"v_sub_f32 v87, 0, v{A0}")
    for i in range(144):
        t0 = 16 + 2 * (i % 4)
        e(f"v_lshlrev_b32 v{t0}, 16, v{XR+i}"); e(f"v_and_b32 v{t0+1}, 0xffff0000, v{XR+i}")
        e(f"v_pk_fma_f32 v[{t0}:{t0+1}], v[{t0}:{t0+1}], v[84:85], v[86:87]")
        if i > 0:
            p0 = 16 + 2 * ((i - 1) % 4)
            e(f"v_cvt_pk_bf16_f32 v{p0}, v{p0}, v{p0+1}"); e(f"v_accvgpr_write_b32 a{i-1}, v{p0}")
    p0 = 16 + 2 * (143 % 4)
    e(f"v_cvt_pk_bf16_f32 v{p0}, v{p0}, v{p0+1}"); e(f"v_accvgpr_write_b32 a143, v{p0}")
    if int(os.environ.get("DBG_Y", "0")):
        e("s_mul_i32 s53, s6, 36864")
        for s_ in range(36):
            e(f"s_add_u32 s44, s53, {s_*1024}"); e("s_nop 4")
            e(f"buffer_store_dwordx4 {ar(4*s_,4)}, v{vL16}, s[24:27], s44 offen")
        e("s_waitcnt vmcnt(0)")
    n = vm_need(("d", 0)); e(f"s_waitcnt vmcnt({n})")
    stamp(e, 3)
    e("s_barrier")
    lt.issue("b", bias_rd(0, 0, 0) + bias_rd(0, 1, 1))
    for k in range(D): lt.issue(("f", k), frag_rd(0, k))
    lt.wait("b")
    need(0)
    def pend_fn(phi): return None
    for t in range(9):
        fl = []
        if t > 0:
            fl = gelu_tile(1 - t % 2, 0, 2 * (t - 1)) + gelu_tile(1 - t % 2, 1, 2 * (t - 1) + 1)
        buckets = [[] for _ in range(72)]
        if fl:
            sp = spread(fl, 62)
            for i in range(62): buckets[3 + i] = sp[i]
        for hh in range(2):
            phi = 2 * t + hh
            extra = {}
            if hh == 1 and t < 8:
                extra[30] = (lambda tt=t: lt.issue("b", bias_rd((tt + 1) % 2, 0, 2 * (tt + 1)) + bias_rd((tt + 1) % 2, 1, 2 * (tt + 1) + 1)))
            dm = dma_groups(phi + 3)
            phase(phi, buckets[36 * hh: 36 * hh + 36], dm, phi + 1, extra)
        if t == 0:
            stamp(e, 4)
    def epi(b, np_imm):
        out = []
        for u in range(2):
            base = SB(b, u)
            for k in range(8): out.append(f"v_cvt_pk_bf16_f32 v{PK+8*u+k}, v{base+2*k}, v{base+2*k+1}")
            out.append((("s", 0), f"buffer_store_dwordx4 {vr(PK+8*u,4)}, v{vL16}, s[24:27], s52 offen offset:{u*2048}{ST_SC1}"))
            out.append((("s", 0), f"buffer_store_dwordx4 {vr(PK+8*u+4,4)}, v{vL16}, s[24:27], s52 offen offset:{u*2048+1024}{ST_SC1}"))
        return out
    e("s_lshl_b32 s52, s3, 6"); e("s_add_u32 s52, s52, s6"); e(f"s_mul_i32 s52, s52, {18*2048}"); e(f"s_add_u32 s52, s52, {WS_P}")
    RL = 4
    SPL = 64 * 18 * 2048
    def red_compute():
        out = []
        for sp in range(NSPLIT):
            t0 = 96 + 2 * (sp % 2)
            out += [f"v_accvgpr_read_b32 v{t0}, a{2*sp}", f"v_accvgpr_read_b32 v{t0+1}, a{2*sp+1}"]
            for j in range(2):
                c0 = "0" if sp == 0 else f"v{100+2*j}"; c1 = "0" if sp == 0 else f"v{101+2*j}"
                out += [f"v_dot2_f32_bf16 v{100+2*j}, v{t0+j}, s64, {c0}", f"v_dot2_f32_bf16 v{101+2*j}, v{t0+j}, s65, {c1}"]
        out += ["s_nop 2", "v_cvt_pk_bf16_f32 v96, v100, v101", "v_cvt_pk_bf16_f32 v97, v102, v103", "s_nop 0"]
        out.append((("rs", 0), "buffer_store_dwordx2 v[96:97], v1, s[24:27], s47 offen sc1"))
        return out
    def wo_groups(img):
        return [[f"s_add_u32 m0, s43, {SLOT[img] + ii*1024}", f"s_add_u32 s44, s53, {ii*16*1152 + img*64}",
                 "buffer_load_dwordx4 v13, s[16:19], s44 offen lds"] for ii in range(9)]
    def ystep(t, first=False, ybase=9, last=False):
        extra = [{}, {}]
        if first:
            fl = gelu_tile(1 - t % 2, 0, 16) + gelu_tile(1 - t % 2, 1, 17)
            sp = spread(fl, 56); buckets = [[] for _ in range(72)]
            for i in range(56): buckets[3 + i] = sp[i]
        else:
            fl = epi(1 - t % 2, 0)
            buckets = [[] for _ in range(72)]
            pos = 3
            for x in fl:
                while pos % 4 == 1: pos += 1
                buckets[pos].append(x)
                if len(buckets[pos]) >= 2 or isinstance(x, tuple): pos += 1
            buckets[pos + 1].append("s_add_u32 s52, s52, 4096")
        if INRED and not first:
            if True:
                extra[0][23] = lambda: vm_wait(("r", 7))
                rc = red_compute(); pos = 24
                for x in rc:
                    while pos % 4 == 1 or pos == 31: pos += 1
                    buckets[pos].append(x)
                    if len(buckets[pos]) >= 3 or isinstance(x, tuple): pos += 1
                assert pos < 36 + 22, pos
            buckets[31] += ["s_add_u32 s46, s46, 1", "s_max_i32 s8, s46, 0", "s_add_u32 s8, s8, s97", "v_mov_b32 v14, s8", "s_mov_b64 exec, 1",
                            (("fl", 0), "buffer_store_dword v14, v15, s[24:27], s99 offen sc1"), "s_mov_b64 exec, -1"]
            def chk():
                vm_wait(("fload", 0))
                e("s_add_u32 s9, s48, 1"); e("s_max_i32 s9, s9, 0"); e("s_add_u32 s10, s97, s9"); e("s_sub_u32 s11, 9, s9")
                lab = f"M_rc{len(RCL)}"; RCL.append(1)
                e("s_cmp_lt_i32 s48, 0"); e(f"s_cbranch_scc1 {lab}b")
                e.label(lab + "a")
                e("v_subrev_u32 v14, s10, v13"); e("s_mov_b64 exec, 0xff"); e("v_cmp_lt_u32 vcc, s11, v14"); e("s_mov_b64 exec, -1"); e("s_nop 4")
                e(f"s_cbranch_vccz {lab}b")
                e("s_sleep 2"); e("s_mov_b64 exec, 0xff"); e("buffer_load_dword v13, v0, s[24:27], s57 offen sc1"); e("s_mov_b64 exec, -1"); e("s_waitcnt vmcnt(0)"); e(f"s_branch {lab}a")
                e.label(lab + "b")
                e("s_max_i32 s9, s48, 0"); e("s_lshl_b32 s9, s9, 12"); e("s_add_u32 s49, s45, s9")
                e(f"s_add_u32 s47, s49, {WS_B - WS_P}"); e(f"s_add_u32 s9, s45, {8*4096 + WS_B - WS_P}"); e("s_cmp_lt_i32 s48, 0"); e("s_cselect_b32 s47, s9, s47")
                e("s_add_u32 s48, s48, 1")
            extra[1][23] = chk
            pos = 36 + 24
            for sp in range(NSPLIT):
                while pos % 4 == 1: pos += 1
                buckets[pos] += [f"s_add_u32 s8, s49, {sp*SPL}", (("r", sp), f"buffer_load_dwordx2 {ar(2*sp,2)}, v1, s[24:27], s8 offen sc1")]
                pos += 1
            buckets[4] = ["s_mov_b64 exec, 0xff", (("fload", 0), "buffer_load_dword v13, v0, s[24:27], s57 offen sc1"), "s_mov_b64 exec, -1"] + buckets[4]
        for hh in range(2):
            phi = 2 * t + hh
            nphi = phi + 1
            if last and phi + 3 >= 36: dm = wo_groups(phi - 33) if TAIL else []
            else: dm = dma_groups(phi + 3, ybase)
            phase(phi, buckets[36 * hh: 36 * hh + 36], dm, None if phi == 35 else nphi, extra[hh])
    if INRED:
        e("s_lshl_b32 s57, s4, 7"); e(f"s_add_u32 s57, s57, {WS_FLAG}")
        e("s_lshl_b32 s99, s3, 2"); e("s_add_u32 s99, s99, s57")
        e(f"s_lshl_b32 s97, s{TAGR}, 4")
        e("s_mov_b32 s46, -1")
        e(f"s_mov_b32 s48, {1 - RL}")
        e("s_lshr_b32 s8, s3, 1"); e("s_lshl_b32 s9, s4, 2"); e("s_add_u32 s8, s8, s9"); e("s_mul_i32 s8, s8, 18")
        e("s_and_b32 s9, s3, 1"); e("s_add_u32 s8, s8, s9"); e("s_lshl_b32 s45, s8, 11")
        e("s_and_b32 s9, s5, 1"); e("s_lshl_b32 s9, s9, 10"); e("s_add_u32 s45, s45, s9"); e("s_lshr_b32 s9, s5, 1"); e("s_lshl_b32 s9, s9, 9"); e("s_add_u32 s45, s45, s9")
        e(f"s_add_u32 s45, s45, {WS_P}")
        e(f"s_add_u32 s47, s45, {8*4096 + WS_B - WS_P}")
        e("s_mov_b32 s64, 0x3f80"); e("s_mov_b32 s65, 0x3f800000")
        e("v_lshlrev_b32 v0, 2, v1"); e("v_lshlrev_b32 v1, 3, v1"); e("v_mov_b32 v15, 0")
    ystep(9, first=True)
    e("s_mov_b32 s15, 3")
    def retag(dphi):
        for i, tg in enumerate(vq):
            if isinstance(tg, tuple) and tg[0] == "d": vq[i] = ("d", tg[1] + dphi)
        lt.q[:] = [(tg[0], tg[1] + dphi * 36) if isinstance(tg, tuple) else tg for tg in lt.q]
    vq0, lq0, keep = list(vq), list(lt.q), e.l
    logs = []
    for rep in range(3):
        e.l = []; REC["mode"] = "rec"; REC["log"] = []; nl = len(RCL)
        ystep(10); ystep(11)
        del RCL[nl:]
        logs.append(REC["log"]); retag(-4)
    vq_steady, lq_steady = list(vq), list(lt.q)
    assert lq_steady == lq0, (lq_steady, lq0)
    over = []
    for vals in zip(*logs):
        v = [x for x in vals if x is not None]
        over.append(min(v) if v else None)
    e.l = keep; vq[:] = vq0; lt.q[:] = lq0
    REC["mode"] = "use"; REC["over"] = over; REC["i"] = 0
    e.label("M_loop")
    ystep(10); ystep(11)
    REC["mode"] = None
    e("s_add_u32 s41, s41, 256")
    e("s_sub_u32 s15, s15, 1"); e("s_cmp_lg_u32 s15, 0"); e("s_cbranch_scc1 M_loop")
    vq[:] = vq_steady; lt.q[:] = lq_steady
    retag(12)
    if TAIL:
        e("s_load_dwordx2 s[92:93], s[0:1], 32"); e("s_waitcnt lgkmcnt(0)"); lt.q[:] = []
        srd(e, 16, 92, 576 * 1152)
        e("v_mbcnt_lo_u32_b32 v14, -1, 0"); e("v_mbcnt_hi_u32_b32 v14, -1, v14")
        e("v_lshrrev_b32 v13, 2, v14"); e("v_mul_u32_u24 v13, 1152, v13"); e("v_and_b32 v14, 3, v14"); e("v_lshlrev_b32 v14, 4, v14"); e("v_add_u32 v13, v13, v14")
        e(f"s_mul_i32 s53, s5, {144*1152}"); e("s_lshl_b32 s8, s3, 7"); e("s_add_u32 s53, s53, s8")
    ystep(16, ybase=15, last=True); ystep(17, ybase=15, last=True)
    e("s_nop 7"); e("s_nop 3")
    stamp(e, 5)
    for x in epi(1, 0):
        if isinstance(x, tuple): e("s_nop 0"); e(x[1])
        else: e(x)
    if PRERED and not TAIL:
            e("s_waitcnt vmcnt(0)"); e("s_barrier")
            e("s_lshl_b32 s9, s4, 3"); e("s_add_u32 s9, s9, 64")
            e("v_mov_b32 v13, 0"); e("v_mov_b32 v14, 1")
            e("s_cmp_lg_u32 s5, 0"); e("s_cbranch_scc1 M_nosig")
            e("s_mov_b64 exec, 1")
            e("buffer_atomic_add v14, v13, s[60:63], s9 offen")
            e.label("M_poll")
            e("buffer_load_dword v15, v13, s[60:63], s9 offen sc1")
            e("s_waitcnt vmcnt(0)")
            e("v_readfirstlane_b32 s10, v15"); e("s_nop 3")
            e("s_cmp_ge_u32 s10, 8"); e("s_cbranch_scc1 M_polled")
            e("s_sleep 1"); e("s_branch M_poll")
            e.label("M_polled")
            e("s_mov_b64 exec, -1")
            e.label("M_nosig")
            e("s_barrier")
            e("s_mul_i32 s11, s3, 18"); e("s_add_u32 s11, s11, s5")
            e(f"s_mul_i32 s12, s4, {4*18*2048}")
            e("s_lshl_b32 s13, s11, 10"); e("s_add_u32 s12, s12, s13")
            e(f"s_add_u32 s13, s12, {WS_P}"); e(f"s_add_u32 s14, s12, {WS_B}")
            e("s_mov_b32 s16, 0x3f80"); e("s_mov_b32 s17, 0x3f800000")
            for k in range(5):
                if k == 4: e("s_cmp_ge_u32 s5, 2"); e("s_cbranch_scc1 M_skip5a")
                for sp in range(NSPLIT):
                    e(f"s_add_u32 s18, s13, {sp*64*18*2048 + k*4096}")
                    e(f"buffer_load_dwordx4 {vr(96+32*k+4*sp,4)}, v{vL16}, s[24:27], s18 offen sc1")
                if k == 4: e.label("M_skip5a")
            for k in range(5):
                if k == 4: e("s_cmp_ge_u32 s5, 2"); e("s_cbranch_scc1 M_skip5b")
                if k == 0: e("s_waitcnt vmcnt(0)")
                for sp in range(NSPLIT):
                    for j in range(4):
                        src = 96 + 32 * k + 4 * sp + j
                        c0 = "0" if sp == 0 else f"v{16+2*j}"; c1 = "0" if sp == 0 else f"v{17+2*j}"
                        e(f"v_dot2_f32_bf16 v{16+2*j}, v{src}, s16, {c0}"); e(f"v_dot2_f32_bf16 v{17+2*j}, v{src}, s17, {c1}")
                e("s_nop 3")
                for j in range(4): e(f"v_cvt_pk_bf16_f32 v{24+j+4*(k%2)}, v{16+2*j}, v{17+2*j}")
                e(f"s_add_u32 s18, s14, {k*4096}")
                e(f"buffer_store_dwordx4 {vr(24+4*(k%2),4)}, v{vL16}, s[24:27], s18 offen")
                if k == 4: e.label("M_skip5b")
    if TAIL:
        gen_tail(e, vL16)
    if PROF:
        e("s_waitcnt vmcnt(0)"); stamp(e, 6); stamp_rt(e, 7); stamp_flush(e, 0, 58)
    e("s_endpgm")
LOOPCHK = []
```

```python
import math, sys, os
from gen import *
import gen_mlp4
LDS_MAIN = 4 * QB + 1024

XD = [0]
def xdma(e, base):
    e("s_mov_b32 s42, 911"); e("s_mul_i32 s44, s6, 36864"); e(f"s_add_u32 s99, s44, {16*1152}"); e("s_mul_i32 s45, s5, 36864")
    t0, t1, t2, p, d = base, base + 1, base + 2, base + 3, base + 4
    e(f"v_mov_b32 v{p}, v1"); e("s_mov_b32 s43, 18")
    L = f"XD_{XD[0]}"; XD[0] += 1
    e.label(L)
    e(f"v_mul_lo_u32 v{t1}, v{p}, s42"); e(f"v_lshrrev_b32 v{t1}, 16, v{t1}")
    e(f"v_mul_u32_u24 v{t2}, 72, v{t1}"); e(f"v_sub_u32 v{t0}, v{p}, v{t2}")
    e(f"v_bfe_u32 v{t2}, v{t1}, 1, 3"); e(f"v_xor_b32 v{t0}, v{t0}, v{t2}"); e(f"v_lshlrev_b32 v{t0}, 4, v{t0}")
    e(f"v_mul_u32_u24 v{t1}, 1152, v{t1}"); e("s_mov_b32 m0, s45"); e(f"v_add_u32 v{d}, v{t0}, v{t1}")
    e(f"buffer_load_dwordx4 v{d}, s[64:67], s44 offen lds")
    e("s_add_u32 m0, s45, 18432"); e(f"v_add_u32 v{p}, 64, v{p}")
    e(f"buffer_load_dwordx4 v{d}, s[64:67], s99 offen lds")
    e("s_add_u32 s45, s45, 1024"); e("s_sub_u32 s43, s43, 1"); e("s_cmp_lg_u32 s43, 0"); e(f"s_cbranch_scc1 {L}")
def coop(e, base):
    e("s_lshr_b32 s44, s2, 3"); e("s_lshl_b32 s44, s44, 2"); e("s_add_u32 s44, s44, s5")
    e("s_and_b32 s45, s2, 1")
    e(f"v_lshlrev_b32 v{base}, 7, v1")
    e("s_mul_i32 s49, s44, 5248")
    if not int(os.environ.get("WQEARLY", "0")): e(f"buffer_load_dword v{base+1}, v{base}, s[12:15], s49 offen")
    e("s_mul_i32 s49, s44, 36"); e(f"v_add_u32 v{base+2}, s49, v1")
    e(f"v_lshrrev_b32 v{base+3}, 3, v{base+2}"); e(f"v_mul_u32_u24 v{base+3}, 9216, v{base+3}")
    e(f"v_bfe_u32 v{base}, v{base+2}, 1, 2"); e(f"v_mul_u32_u24 v{base}, 1152, v{base}"); e(f"v_add_u32 v{base+3}, v{base+3}, v{base}")
    e(f"v_and_b32 v{base}, 1, v{base+2}"); e(f"v_lshlrev_b32 v{base}, 7, v{base}"); e(f"v_add_u32 v{base+3}, v{base+3}, v{base}")
    e("s_mul_i32 s49, s45, 4608")
    e(f"buffer_load_dword v{base+4}, v{base+3}, s[28:31], s49 offen")

def xfrag_addr(e, dst, tmp):
    e(f"v_and_b32 v{tmp}, 31, v1"); e(f"v_bfe_u32 v{tmp+1}, v{tmp}, 1, 3"); e(f"v_mul_u32_u24 v{tmp}, 1152, v{tmp}")
    e("s_mul_i32 s11, s5, 36864"); e(f"v_add_u32 v{tmp}, s11, v{tmp}")
    for j in range(4):
        e(f"v_lshrrev_b32 v{dst+j}, 5, v1"); e(f"v_add_u32 v{dst+j}, {2*j}, v{dst+j}"); e(f"v_xor_b32 v{dst+j}, v{dst+j}, v{tmp+1}")
        e(f"v_lshlrev_b32 v{dst+j}, 4, v{dst+j}"); e(f"v_add_u32 v{dst+j}, v{tmp}, v{dst+j}")

def gen_attn_f(e, common):
    Q1 = lambda i: 16 + 8 * i
    Q2 = lambda i: 20 + 8 * i
    O = lambda i: 48 + 16 * i
    S = lambda b: 112 + 16 * b
    P = 144
    KV = lambda b: 152 + 16 * b
    aK1, aK2, aV = 184, 185, 186
    e.label("A_start")
    e("v_lshlrev_b32 v2, 4, v1")
    e("v_and_b32 v3, 31, v1"); e("v_lshlrev_b32 v4, 2, v3")
    e("v_lshrrev_b32 v5, 5, v1")
    e("s_mov_b32 s9, 5462")
    for j in range(3):
        e(f"v_add_u32 v131, {64*j}, v1"); e("v_mul_lo_u32 v132, v131, s9"); e("v_lshrrev_b32 v132, 16, v132")
        e("v_mul_u32_u24 v133, 12, v132"); e("v_sub_u32 v131, v131, v133"); e("v_lshlrev_b32 v131, 4, v131")
        e("v_mul_u32_u24 v132, 1152, v132"); e(f"v_add_u32 v{134+j}, v131, v132")
    xfrag_addr(e, 146, 131)
    e("v_lshlrev_b32 v131, 3, v5"); e("v_bfe_u32 v132, v1, 2, 2"); e("v_add_u32 v131, v131, v132"); e("v_mul_u32_u24 v137, 192, v131")
    e("v_bfe_u32 v131, v1, 4, 1"); e("v_lshlrev_b32 v131, 5, v131"); e("v_add_u32 v137, v137, v131")
    e("v_and_b32 v131, 3, v1"); e("v_lshlrev_b32 v131, 3, v131"); e("v_add_u32 v137, v137, v131")
    e(f"v_add_u32 v138, {288*192}, v137")
    KVL = 110592
    KVDMA = int(os.environ.get('KVDMA', '1'))
    e("v_lshlrev_b32 v150, 4, v0")
    e("s_cmp_ge_u32 s3, 2"); e("s_cbranch_scc1 A_nokv0")
    e("s_mov_b32 s9, 58255")
    for k in range(6):
        e(f"v_lshlrev_b32 v151, 2, v0"); e(f"v_add_u32 v151, {k*1024}, v151")
        e("v_mul_lo_u32 v152, v151, s9"); e("v_lshrrev_b32 v152, 19, v152")
        e("v_mul_u32_u24 v153, 9, v152"); e("v_sub_u32 v151, v151, v153")
        e("v_lshlrev_b32 v152, 6, v152"); e(f"v_add_u32 v152, {KVL}, v152")
        for j in range(4):
            e(f"v_add_u32 v153, {j}, v151"); e("v_cmp_lt_u32 vcc, 8, v153"); e("v_lshlrev_b32 v153, 2, v153")
            e(f"v_add_u32 v{232+4*k+j}, v152, v153"); e(f"v_add_u32 v153, 28, v{232+4*k+j}")
            e(f"v_cndmask_b32 v{232+4*k+j}, v{232+4*k+j}, v153, vcc")
    tr_lane_addr(e, 154, 1, 152, 153, 8); e(f"v_add_u32 v154, {KVL}, v154")
    e.label("A_nokv0")
    for c in range(3):
        e(f"s_add_u32 s9, s5, {4*c}"); e("s_mul_i32 s10, s9, 43691"); e("s_lshr_b32 s10, s10, 17")
        e("s_mul_i32 s11, s10, 3"); e("s_sub_u32 s11, s9, s11")
        e("s_cmp_eq_u32 s11, 1"); e("s_cselect_b64 vcc, -1, 0"); e(f"v_cndmask_b32 v{140+c}, v134, v135, vcc")
        e("s_cmp_eq_u32 s11, 2"); e("s_cselect_b64 vcc, -1, 0"); e(f"v_cndmask_b32 v{140+c}, v{140+c}, v136, vcc")
    common(e, True)
    e("s_mul_i32 s7, s3, 144")
    for c in range(3):
        e(f"s_add_u32 s9, s5, {4*c}"); e("s_mul_i32 s10, s9, 43691"); e("s_lshr_b32 s10, s10, 17")
        e(f"s_mul_i32 s10, s10, {16*1152}"); e(f"s_add_u32 s{50+c}, s10, s7")
    e("s_lshl_b32 s53, s5, 10")
    coop(e, 120)
    def wdma_unit(k):
        return [f"s_add_u32 m0, s53, {k*4096}", f"s_add_u32 s10, s{50+k%3}, {(k//3)*4*16*1152}", f"buffer_load_dwordx4 v{140+k%3}, s[12:15], s10 offen lds"]
    e("s_waitcnt vmcnt(%d)" % (1 if int(os.environ.get("WQEARLY", "0")) else 2))
    for s_ in range(36): e(f"ds_read_b128 {ar(4*s_,4)}, v{146+s_%4} offset:{(s_//4)*128}")
    e("s_waitcnt lgkmcnt(0)"); stamp(e, 2); e("s_barrier")
    gen_mlp4.mktag(e)
    e("s_cmp_lt_u32 s3, 2"); e("s_cbranch_scc1 A_kvjob")
    for k in range(27):
        for x in wdma_unit(k): e(x)
    e("s_branch A_nokv2")
    e.label("A_kvjob")
    for k in range(6):
        if k == 5:
            e("s_cmp_lg_u32 s5, 0"); e("s_cbranch_scc1 A_kvw5"); e("s_mov_b64 exec, 0xffff")
        for j in range(4): e(f"ds_write_b32 v{232+4*k+j}, v{208+4*k+j}")
        if k == 5:
            e("s_mov_b64 exec, -1"); e.label("A_kvw5")
    e("s_waitcnt lgkmcnt(0)"); e("s_barrier")
    AP = int(os.environ.get("APROF", "0"))
    if AP == 2: stamp(e, 3)
    RSK = [156, 160, 164, 168, 172, 176]
    def rdk(s_):
        d = RSK[s_ % 6]
        e(f"ds_read_b64_tr_b16 {vr(d,2)}, v154 offset:{s_*1024}"); e(f"ds_read_b64_tr_b16 {vr(d+2,2)}, v154 offset:{s_*1024+256}")
    DK = 180; PKK = 196
    e("v_mov_b32 v207, 0")
    e("s_lshr_b32 s49, s6, 4"); e(f"s_mul_i32 s49, s49, {QB}"); e(f"s_add_u32 s49, s49, {WS_K1}"); e("s_and_b32 s45, s6, 15")
    e("s_cmp_eq_u32 s3, 1"); e("s_cbranch_scc1 A_V")
    for variant in ("K", "V"):
        if variant == "V": e.label("A_V")
        for s_ in range(5): rdk(s_)
        for s_ in range(36):
            e(f"s_waitcnt lgkmcnt({2*(min(35, s_+4)-s_)})")
            c0 = "0" if s_ == 0 else vr(DK,16)
            w_ = vr(RSK[s_%6],4); xx = ar(4*s_,4)
            e(f"v_mfma_f32_32x32x16_bf16 {vr(DK,16)}, {w_ if variant=='K' else xx}, {xx if variant=='K' else w_}, {c0}")
            if s_ + 5 < 36: rdk(s_ + 5)
            if s_ < 27 and KVDMA:
                for x in wdma_unit(s_): e(x)
        e("s_nop 7"); e("s_nop 3")
        if AP == 2: stamp(e, 4)
        if variant == "K":
            for i in range(5): e(f"v_cvt_pk_bf16_f32 v{PKK+i}, v{DK+2*i}, v{DK+2*i+1}")
            e("s_lshl_b32 s53, s45, 10"); e("s_add_u32 s53, s53, s49")
            e(f"buffer_store_dwordx4 {vr(PKK,4)}, v2, s[24:27], s53 offen sc1")
            e("s_lshl_b32 s53, s45, 7"); e("s_add_u32 s53, s53, s49"); e(f"s_add_u32 s53, s53, {KV_K2}")
            e("s_mov_b32 exec_hi, 0"); e(f"buffer_store_dword v{PKK+4}, v4, s[24:27], s53 offen sc1"); e("s_mov_b32 exec_hi, -1")
            e("v_cmp_gt_u32 vcc, 32, v1"); e("s_nop 1")
            e(f"v_cndmask_b32 v204, 0, v{PKK+4}, vcc"); e("v_mov_b32 v205, 0")
            for i in range(4): e(f"v_dot2_f32_bf16 v205, v{PKK+i}, v{PKK+i}, v205")
            e("v_dot2_f32_bf16 v205, v204, v204, v205")
            e("s_nop 3"); e("v_mov_b32 v206, v205"); e("s_nop 1"); e("v_permlane32_swap_b32 v205, v206"); e("s_nop 1"); e("v_add_f32 v205, v205, v206")
            for dpp in ("quad_perm:[1,0,3,2]", "quad_perm:[2,3,0,1]", "row_half_mirror", "row_mirror"):
                e("s_nop 1"); e(f"v_max_f32_dpp v205, v205, v205 {dpp} row_mask:0xf bank_mask:0xf")
            e("ds_swizzle_b32 v206, v205 offset:0x401F"); e("s_waitcnt lgkmcnt(0)"); e("v_max_f32 v205, v205, v206")
            e("s_lshl_b32 s53, s6, 2"); e(f"s_add_u32 s53, s53, {WS_KN}"); e("v_mov_b32 v206, 0")
            e("s_mov_b64 exec, 1"); e(f"buffer_store_dword v205, v206, s[24:27], s53 offen sc1"); e("s_mov_b64 exec, -1")
            e("s_branch A_kvpub")
        else:
            for i in range(8): e(f"v_cvt_pk_bf16_f32 v{PKK+i}, v{DK+2*i}, v{DK+2*i+1}")
            e("v_cmp_eq_u32 vcc, 18, v3"); e("v_mov_b32 v204, 0x3f803f80"); e("s_nop 0")
            for i in range(8): e(f"v_cndmask_b32 v{PKK+i}, v{PKK+i}, v204, vcc")
            e("v_cmp_eq_u32 vcc, 19, v3"); e("s_nop 1")
            for i in range(8): e(f"v_cndmask_b32 v{PKK+i}, v{PKK+i}, v207, vcc")
            e(f"v_mul_u32_u24 v205, {VP}, v3"); e("v_lshlrev_b32 v206, 4, v5"); e("v_add_u32 v205, v205, v206")
            e("s_lshl_b32 s53, s45, 6"); e("s_add_u32 s53, s53, s49"); e(f"s_add_u32 s53, s53, {KV_V}")
            e("v_cmp_gt_u32 vcc, 20, v3"); e("s_and_saveexec_b64 s[54:55], vcc")
            e(f"buffer_store_dwordx4 {vr(PKK,4)}, v205, s[24:27], s53 offen sc1")
            e(f"buffer_store_dwordx4 {vr(PKK+4,4)}, v205, s[24:27], s53 offen offset:32 sc1")
            e("s_mov_b64 exec, s[54:55]")
    e.label("A_kvpub")
    if not KVDMA:
        e("s_lshl_b32 s53, s5, 10")
        NST = 27
        for k in range(27):
            for x in wdma_unit(k): e(x)
        e("s_waitcnt vmcnt(27)"); e("s_barrier")
        e("s_cmp_lg_u32 s5, 0"); e("s_cbranch_scc1 A_nokv2")
        e("s_lshl_b32 s9, s4, 1"); e("s_add_u32 s9, s9, s3"); e("s_lshl_b32 s9, s9, 2"); e(f"s_add_u32 s9, s9, {WS_KVFLAG}")
        e("v_mbcnt_lo_u32_b32 v204, -1, 0"); e("v_lshlrev_b32 v204, 7, v204"); e(f"v_mov_b32 v205, s{gen_mlp4.TAGR}")
        e("s_mov_b64 exec, 0xff")
        e("buffer_store_dword v205, v204, s[24:27], s9 offen sc1")
        e("s_mov_b64 exec, -1")
        e("s_branch A_nokv2")
    e("s_waitcnt vmcnt(0)")
    if AP == 2: stamp(e, 5)
    e("s_barrier")
    e("s_cmp_lg_u32 s5, 0"); e("s_cbranch_scc1 A_nokv2")
    e("s_lshl_b32 s9, s4, 1"); e("s_add_u32 s9, s9, s3"); e("s_lshl_b32 s9, s9, 2"); e(f"s_add_u32 s9, s9, {WS_KVFLAG}")
    e("v_mbcnt_lo_u32_b32 v204, -1, 0"); e("v_lshlrev_b32 v204, 7, v204"); e(f"v_mov_b32 v205, s{gen_mlp4.TAGR}")
    e("s_mov_b64 exec, 0xff")
    e("buffer_store_dword v205, v204, s[24:27], s9 offen sc1")
    e("s_mov_b64 exec, -1")
    if AP == 2:
        e("s_waitcnt vmcnt(0)"); stamp(e, 6); stamp_rt(e, 7); stamp_flush(e, 0, 58)
    e.label("A_nokv2")
    AP = int(os.environ.get("APROF", "0"))
    e("s_waitcnt vmcnt(18)")
    if AP == 1: stamp(e, 3)
    if AP == 2: e("s_endpgm")
    e("s_barrier")
    OFS = [0, 32, 72, 104]
    def wrd(gk):
        s_, hh = gk // 4, gk % 4
        d = 144 + 4 * (gk % 8)
        a_ = 137 if s_ < 18 else 138
        o = (s_ % 18) * 3072 + OFS[hh]
        e(f"ds_read_b64_tr_b16 {ar(d,2)}, v{a_} offset:{o}"); e(f"ds_read_b64_tr_b16 {ar(d+2,2)}, v{a_} offset:{o+768}")
    for gk in range(6): wrd(gk)
    for gk in range(144):
        s_, hh = gk // 4, gk % 4
        if gk % 2 == 0: e(f"s_waitcnt lgkmcnt({2*max(0, min(143, gk+5) - (gk+1))})")
        c0 = "0" if s_ == 0 else vr(O(hh),16)
        e(f"v_mfma_f32_32x32x16_bf16 {vr(O(hh),16)}, {ar(144+4*(gk%8),4)}, {ar(4*s_,4)}, {c0}")
        if gk + 6 == 48: e("s_waitcnt vmcnt(9)"); e("s_barrier")
        if gk + 6 == 96: e("s_waitcnt vmcnt(0)"); e("s_barrier")
        if gk + 6 < 144: wrd(gk + 6)
        if gk == int(os.environ.get('A_POLL', '123')):
            if AP == 1: e("s_waitcnt lgkmcnt(0)"); stamp(e, 4)
            e("s_and_b32 s57, s2, 7"); e("s_lshl_b32 s57, s57, 7"); e(f"s_add_u32 s57, s57, {WS_KVFLAG}")
            gen_mlp4.poll_flags(e, "A_kv", 0xffffffff, 120)
            if AP == 1: stamp(e, 5)
            e("v_lshlrev_b32 v6, 2, v1"); e(f"s_mov_b32 s11, {WS_KN}")
            e("buffer_load_dword v7, v6, s[24:27], s11 offen")
            e("s_lshl_b32 s18, s5, 10")
            for k in range(10):
                e(f"s_add_u32 m0, s18, {3*QB + k*4096}"); e(f"s_add_u32 s7, s18, {WS_K1 + k*4096}")
                e("buffer_load_dwordx4 v2, s[24:27], s7 offen lds")
    e("s_nop 7"); e("s_nop 3")
    e("v_cmp_gt_u32 vcc, 32, v1"); e("s_nop 1"); e("s_mov_b64 s[12:13], vcc")
    e(f"s_mov_b32 s9, {hexf(QSCALE)}")
    for i in range(4):
        Dq = O(i); odd = i % 2
        nr = 12 if odd else 10
        for r in range(nr): e(f"v_mul_f32 v{Dq+r}, s9, v{Dq+r}")
        PKq = 112
        for k in range(nr // 2): e(f"v_cvt_pk_bf16_f32 v{PKq+k}, v{Dq+2*k}, v{Dq+2*k+1}")
        if not odd:
            for k in range(4): e(f"v_mov_b32 v{Q1(i)+k}, v{PKq+k}")
            e(f"v_mov_b32 v{Q2(i)}, v{PKq+4}")
        else:
            e(f"v_mov_b32 v{Q1(i)}, v{PKq+1}"); e(f"v_mov_b32 v{Q1(i)+2}, v{PKq+3}"); e(f"v_mov_b32 v{Q2(i)}, v{PKq+5}")
            for (src_a, src_b, dst) in ((0, 2, 1), (2, 4, 3)):
                e(f"v_mov_b32 v120, v{PKq+src_a}"); e(f"v_mov_b32 v121, v{PKq+src_b}"); e("s_nop 1")
                e("v_permlane32_swap_b32 v120, v121"); e("s_nop 1")
                e(f"v_cndmask_b32 v{Q1(i)+dst}, v120, v121, s[12:13]")
    if not AP: stamp(e, 3)
    e("s_barrier")
    n0 = 10
    def emit_stage(lst, name):
        e("s_lshl_b32 s18, s5, 10")
        for k in range(30):
            if k == 29: e("s_cmp_lg_u32 s5, 0"); e(f"s_cbranch_scc1 {name}_x")
            e(f"s_add_u32 m0, s18, {k*4096}"); e(f"s_add_u32 s7, s18, {WS_K1 + QB + k*4096}")
            e("buffer_load_dwordx4 v2, s[24:27], s7 offen lds")
        e.label(f"{name}_x")
    st1 = None
    DEFER = int(os.environ.get("A_DEFER", "1"))
    def wpf():
        e("s_lshl_b32 s16, s4, 3"); e("s_add_u32 s16, s16, s3"); e("s_lshl_b32 s16, s16, 2"); e("s_add_u32 s16, s16, s5")
        e("v_lshlrev_b32 v201, 7, v1")
        e("s_lshl_b32 s17, s16, 13")
        e(f"s_add_u32 s18, s17, {512*8192}")
        e("buffer_load_dword v204, v201, s[28:31], s17 offen")
        e("buffer_load_dword v205, v201, s[28:31], s18 offen")
        e("buffer_load_dword v206, v201, s[32:35], s17 offen")
        e("buffer_load_dword v207, v201, s[32:35], s18 offen")
        e("s_load_dwordx2 s[8:9], s[0:1], 32"); e("s_waitcnt lgkmcnt(0)")
        e("s_and_b32 s9, s9, 0xffff"); e("s_mov_b32 s10, 663552"); e("s_mov_b32 s11, 0x20000")
        e("buffer_load_dword v203, v201, s[8:11], s17 offen")
    if DEFER: n1 = 0; NPF = 0
    else:
        n1 = emit_stage(st1, "A_s1"); wpf(); NPF = 4
    for b in range(2):
        e(f"v_mov_b32 v{KV(b)+5}, 0x3f803f80"); e(f"v_mov_b32 v{KV(b)+6}, 0"); e(f"v_mov_b32 v{KV(b)+7}, 0")
    e(f"s_waitcnt vmcnt({n0 + n1 + NPF})")
    for dpp in ("quad_perm:[1,0,3,2]", "quad_perm:[2,3,0,1]", "row_half_mirror", "row_mirror"):
        e("s_nop 1"); e(f"v_max_f32_dpp v7, v7, v7 {dpp} row_mask:0xf bank_mask:0xf")
    e("ds_swizzle_b32 v8, v7 offset:0x401F"); e("s_waitcnt lgkmcnt(0)"); e("v_max_f32 v7, v7, v8")
    e("v_mov_b32 v8, v7"); e("s_nop 1"); e("v_permlane32_swap_b32 v7, v8"); e("s_nop 1"); e("v_max_f32 v7, v7, v8")
    e("v_cmp_gt_u32 vcc, 32, v1")
    e("s_mov_b64 s[12:13], vcc")
    for i in range(4):
        e(f"v_cndmask_b32 v{Q2(i)}, 0, v{Q2(i)}, s[12:13]")
        e("v_mov_b32 v8, 0")
        for k in range(4): e(f"v_dot2_f32_bf16 v8, v{Q1(i)+k}, v{Q1(i)+k}, v8")
        e(f"v_dot2_f32_bf16 v8, v{Q2(i)}, v{Q2(i)}, v8")
        e("s_nop 3"); e("v_mov_b32 v9, v8"); e("s_nop 1"); e("v_permlane32_swap_b32 v8, v9"); e("s_nop 1"); e("v_add_f32 v8, v8, v9")
        e("v_mul_f32 v8, v8, v7"); e("v_sqrt_f32 v8, v8"); e("s_nop 0")
        e(f"v_mul_f32 v8, {hexf(-1.001)}, v8")
        e(f"v_cvt_pk_bf16_f32 v9, v8, v8"); e("v_lshlrev_b32 v9, 16, v9"); e("v_sub_f32 v9, v8, v9")
        e(f"v_cvt_pk_bf16_f32 v9, v8, v9")
        e(f"v_cndmask_b32 v{Q2(i)+1}, 0, v9, s[12:13]")
        e(f"v_mov_b32 v{Q2(i)+2}, 0"); e(f"v_mov_b32 v{Q2(i)+3}, 0")
    e("s_mov_b32 s14, 0")
    e(f"s_waitcnt vmcnt({n1 + NPF}) lgkmcnt(0)")
    e("s_barrier")
    if AP == 1:
        stamp(e, 6); stamp_rt(e, 7); stamp_flush(e, 0, 58); e("s_endpgm")
    stamp(e, 4)
    inloop = [False]
    e.label("A_run")
    for i in range(4):
        for r in range(16): e(f"v_mov_b32 v{O(i)+r}, 0")
    for r in range(8): e(f"v_mov_b32 v{P+r}, 0")
    for r in range(4): e(f"v_mov_b32 v{KV(1)+12+r}, 0")
    e(f"v_add_u32 v{aK1}, {3*QB}, v2"); e(f"v_add_u32 v{aK2}, {3*QB + KV_K2}, v4")
    e(f"v_min_u32 v8, 19, v3"); e(f"v_mul_u32_u24 v8, {VP}, v8"); e("v_lshlrev_b32 v9, 4, v5"); e("v_add_u32 v8, v8, v9")
    e(f"v_add_u32 v{aV}, {3*QB + KV_V}, v8")
    A_NOLDS = int(os.environ.get("A_NOLDS", "0"))
    def ldK(b, joff):
        if A_NOLDS and inloop[0]: return
        e(f"ds_read_b128 {vr(KV(b),4)}, v{aK1} offset:{joff*1024}")
        e(f"ds_read_b32 v{KV(b)+4}, v{aK2} offset:{joff*128}")
    def ldV(b, joff):
        if A_NOLDS and inloop[0]: return
        e(f"ds_read_b128 {vr(KV(b)+8,4)}, v{aV} offset:{joff*64}")
        e(f"ds_read_b128 {vr(KV(b)+12,4)}, v{aV} offset:{joff*64+32}")
    def qk1(sb, b, i): return f"v_mfma_f32_32x32x16_bf16 {vr(S(sb),16)}, {vr(KV(b),4)}, {vr(Q1(i),4)}, 0"
    def qk2(sb, b, i): return f"v_mfma_f32_32x32x16_bf16 {vr(S(sb),16)}, {vr(KV(b)+4,4)}, {vr(Q2(i),4)}, {vr(S(sb),16)}"
    def pv(i, b, m): return f"v_mfma_f32_32x32x16_bf16 {vr(O(i),16)}, {vr(KV(b)+8+4*m,4)}, {vr(P+4*m,4)}, {vr(O(i),16)}"
    ldK(0, 0); ldV(0, 0)
    e("s_waitcnt lgkmcnt(0)")
    e(qk1(0, 0, 0)); e(qk2(0, 0, 0))
    e("s_nop 7"); e("s_nop 3")
    UN = int(os.environ.get("A_UN", "4"))
    NIT = 64 // UN
    e(f"s_mov_b32 s15, {NIT}")
    e("s_cmp_eq_u32 s14, 0"); e("s_cselect_b32 s20, -1, 0")
    e.label("A_loop")
    inloop[0] = True
    e("s_and_b32 s19, s15, s20")
    assert UN == 4
    e(f"s_mov_b32 s9, {QB}"); e("s_cmp_eq_u32 s15, 13"); e(f"s_cselect_b32 s9, {(-3*QB) & 0xffffffff}, s9")
    e(f"s_sub_u32 s21, s9, {12*1024}"); e(f"s_sub_u32 s22, s9, {12*128}"); e(f"s_sub_u32 s23, s9, {12*64}")
    e("s_and_b32 s9, s15, 3"); e("s_cmp_eq_u32 s9, 1")
    e("s_cselect_b32 s21, s21, 4096"); e("s_cselect_b32 s22, s22, 512"); e("s_cselect_b32 s23, s23, 256")
    for jj in range(UN):
        b = jj % 2
        for i in range(4):
            n = jj * 4 + i
            sb = n % 2
            i2 = (i + 1) % 4; b2 = b if i < 3 else 1 - b
            ip = (i - 1) % 4; bp = b if i > 0 else 1 - b
            def E(r): e(f"v_exp_f32 v{S(sb)+r}, v{S(sb)+r}")
            def C(k): e(f"v_cvt_pk_bf16_f32 v{P+k}, v{S(sb)+2*k}, v{S(sb)+2*k+1}")
            e(qk1(1 - sb, b2, i2))
            if i == 2:
                if jj == UN - 1: e(f"v_add_u32 v{aV}, s23, v{aV}"); ldV(1 - b, 0)
                else: ldV(1 - b, jj + 1)
            E(0); E(1); E(2); E(3)
            e(qk2(1 - sb, b2, i2))
            E(4); E(5); E(6); E(7); C(0); C(1)
            e(pv(ip, bp, 1))
            if i == 1 and jj == UN - 1:
                e(f"s_cmp_lg_u32 s19, {NIT - (16 // UN) + 1}"); e("s_cbranch_scc1 A_nost"); e("s_waitcnt vmcnt(0)"); e("s_barrier"); e.label("A_nost")
            if i == 1:
                if jj == UN - 1:
                    e(f"v_add_u32 v{aK1}, s21, v{aK1}"); e(f"v_add_u32 v{aK2}, s22, v{aK2}"); ldK(1 - b, 0)
                else: ldK(1 - b, jj + 1)
            if i == 0 and jj == 0 and DEFER:
                e(f"s_cmp_lg_u32 s19, {NIT}"); e("s_cbranch_scc1 A_nodef")
                emit_stage(st1, "A_s1"); wpf()
                e.label("A_nodef")
            E(8); E(9); E(10); E(11); C(2); C(3); E(12); E(13)
            e(pv(i, b, 0))
            E(14); E(15); C(4); C(5); C(6); C(7)
            if i == 2: e("s_waitcnt lgkmcnt(0)")
    e("s_sub_u32 s15, s15, 1"); e("s_cmp_lg_u32 s15, 0"); e("s_cbranch_scc1 A_loop")
    inloop[0] = False
    e("s_nop 1")
    e(pv(3, 1, 1))
    e("s_nop 7"); e("s_nop 3")
    e("s_cmp_lg_u32 s14, 0"); e("s_cbranch_scc1 A_fin")
    e(f"v_mov_b32 v10, {hexf(2.0**-40)}")
    e("s_mov_b64 s[16:17], 0")
    for i in range(4):
        e(f"v_cmp_nge_f32 vcc, v{O(i)+10}, v10"); e("s_nop 1"); e("s_or_b64 s[16:17], s[16:17], vcc")
    e("s_and_b32 s16, s16, -1")
    e("s_cbranch_scc0 A_fin")
    e("s_mov_b32 s14, 1")
    for i in range(4):
        e(f"v_mov_b32 v{Q2(i)+1}, 0"); e(f"v_mov_b32 v{O(i)}, 0xff800000")
    e("s_mov_b32 s15, 0")
    e.label("A_max")
    e("s_lshr_b32 s9, s15, 4"); e(f"s_mul_i32 s9, s9, {QB}"); e("s_and_b32 s10, s15, 15")
    e("s_lshl_b32 s11, s10, 10"); e("s_add_u32 s11, s11, s9"); e(f"v_add_u32 v{aK1}, s11, v2")
    e("s_lshl_b32 s11, s10, 7"); e("s_add_u32 s11, s11, s9"); e(f"s_add_u32 s11, s11, {KV_K2}"); e(f"v_add_u32 v{aK2}, s11, v4")
    ldK(0, 0); e("s_waitcnt lgkmcnt(0)")
    for i in range(4):
        e(qk1(0, 0, i)); e(qk2(0, 0, i)); e("s_nop 7"); e("s_nop 3")
        for r in range(0, 16, 2): e(f"v_max3_f32 v{O(i)}, v{S(0)+r}, v{S(0)+r+1}, v{O(i)}")
    e("s_add_u32 s15, s15, 1"); e("s_cmp_lg_u32 s15, 64"); e("s_cbranch_scc1 A_max")
    for i in range(4):
        e(f"v_mov_b32 v8, v{O(i)}"); e(f"v_mov_b32 v9, v{O(i)}"); e("s_nop 1"); e("v_permlane32_swap_b32 v8, v9"); e("s_nop 1")
        e("v_max_f32 v8, v8, v9"); e("v_sub_f32 v8, 0, v8")
        e(f"v_cvt_pk_bf16_f32 v9, v8, v8"); e("v_lshlrev_b32 v9, 16, v9"); e("v_sub_f32 v9, v8, v9")
        e(f"v_cvt_pk_bf16_f32 v9, v8, v9")
        e(f"v_cndmask_b32 v{Q2(i)+1}, 0, v9, s[12:13]")
    e("s_branch A_run")
    e.label("A_fin")
    stamp(e, 5)
    e("s_lshl_b32 s8, s6, 5"); e("s_lshl_b32 s9, s3, 2"); e("s_add_u32 s8, s8, s9"); e("s_lshl_b32 s8, s8, 10"); e(f"s_add_u32 s8, s8, {WS_O1}")
    e("s_lshl_b32 s9, s6, 12"); e("s_lshr_b32 s10, s3, 1"); e("s_lshl_b32 s10, s10, 10"); e("s_add_u32 s9, s9, s10")
    e("s_and_b32 s10, s3, 1"); e("s_lshl_b32 s10, s10, 9"); e("s_add_u32 s9, s9, s10"); e(f"s_add_u32 s9, s9, {WS_O2}")
    e("v_lshlrev_b32 v10, 4, v3")
    for i in range(4):
        e(f"v_mov_b32 v8, v{O(i)+10}"); e(f"v_mov_b32 v9, v{O(i)+10}"); e("s_nop 1"); e("v_permlane32_swap_b32 v8, v9"); e("s_nop 1")
        e("v_rcp_f32 v8, v8"); e("s_nop 0")
        for r in range(10): e(f"v_mul_f32 v{O(i)+r}, v8, v{O(i)+r}")
        for k in range(5): e(f"v_cvt_pk_bf16_f32 v{188+k}, v{O(i)+2*k}, v{O(i)+2*k+1}")
        e(f"buffer_store_dwordx4 {vr(188,4)}, v2, s[24:27], s8 offen offset:{i*1024}" + (" sc1" if gen_mlp4.TAIL else ""))
        e("s_mov_b32 exec_hi, 0")
        e(f"buffer_store_dword v192, v10, s[24:27], s9 offen offset:{i*4}" + (" sc1" if gen_mlp4.TAIL else ""))
        e("s_mov_b32 exec_hi, -1")
        e("s_nop 1")
    if gen_mlp4.TAIL:
        e("s_waitcnt vmcnt(0)"); e("s_barrier")
        e("s_cmp_lg_u32 s5, 0"); e("s_cbranch_scc1 A_nf")
        e("s_lshl_b32 s9, s4, 7"); e("s_lshl_b32 s10, s3, 2"); e("s_add_u32 s9, s9, s10"); e(f"s_add_u32 s9, s9, {WS_FLAG + 64}")
        gen_mlp4.set_flag(e, 9, 8)
        e.label("A_nf")
        gen_mlp4.arrive(e, 8)
    if PROF:
        e("s_waitcnt vmcnt(0)"); stamp(e, 6); stamp_rt(e, 7); stamp_flush(e, 0, 58)
    e("s_endpgm")


def gen_fusedK(e, roles):
    K = "main_kernel"
    kernel_head(e, K)
    e("s_cmp_ge_u32 s2, 256"); e("s_cbranch_scc1 MK_end")
    stamp_rt(e, 0); stamp(e, 1)
    if int(os.environ.get("CODEPF", "1")):
        e("s_getpc_b64 s[68:69]")
        e.label("MK_pc")
        e("v_lshrrev_b32 v126, 6, v0"); e("s_lshr_b32 s7, s2, 3"); e("s_lshl_b32 s7, s7, 2"); e("v_add_u32 v126, s7, v126")
        e("v_lshlrev_b32 v126, 3, v126"); e("v_and_b32 v127, 7, v0"); e("v_add_u32 v126, v126, v127"); e("v_lshlrev_b32 v126, 7, v126")
        e("v_and_b32 v127, 63, v0"); e("v_cmp_gt_u32 vcc, 8, v127"); e("s_nop 3"); e("s_mov_b64 s[8:9], vcc")
        e("s_mov_b32 s7, MK_codeend-MK_pc"); e("v_cmp_gt_u32 vcc, s7, v126"); e("s_nop 3"); e("s_and_b64 vcc, vcc, s[8:9]")
        e("s_and_saveexec_b64 s[8:9], vcc"); e("s_cbranch_execz MK_nopf")
        e("global_load_dword v128, v126, s[68:69]")
        e.label("MK_nopf")
        e("s_mov_b64 exec, s[8:9]")
    e("s_load_dwordx4 s[40:43], s[0:1], 0")
    e("s_load_dwordx4 s[56:59], s[0:1], 96")
    e("s_load_dwordx4 s[44:47], s[0:1], 16")
    e("s_load_dwordx4 s[52:55], s[0:1], 48")
    e("s_load_dwordx2 s[50:51], s[0:1], 64")
    e("s_load_dwordx2 s[48:49], s[0:1], 80")
    e("s_and_b32 s3, s2, 7"); e("s_lshr_b32 s4, s2, 3")
    e("v_lshrrev_b32 v2, 6, v0"); e("v_and_b32 v1, 63, v0"); e("s_nop 0"); e("v_readfirstlane_b32 s5, v2")
    e("s_cmp_ge_u32 s4, 16"); e("s_cbranch_scc1 MK_ida")
    e("s_lshr_b32 s6, s3, 1"); e("s_and_b32 s7, s3, 1"); e("s_and_b32 s8, s4, 3"); e("s_lshr_b32 s9, s4, 2")
    e("s_lshl_b32 s6, s6, 2"); e("s_add_u32 s4, s6, s8"); e("s_lshl_b32 s7, s7, 2"); e("s_add_u32 s3, s7, s9")
    e("s_branch MK_idd")
    e.label("MK_ida")
    e("s_sub_u32 s4, s4, 16")
    e("s_lshl_b32 s6, s3, 1"); e("s_and_b32 s7, s4, 1"); e("s_lshr_b32 s3, s4, 1"); e("s_add_u32 s4, s6, s7")
    e.label("MK_idd")
    e("s_lshl_b32 s6, s4, 2"); e("s_add_u32 s6, s6, s5")
    def common(e, attn):
        e("s_waitcnt lgkmcnt(0)")
        AP3 = int(os.environ.get("APROF", "0")) == 3
        if AP3: stamp(e, 2)
        srd(e, 64, 40, 2048 * 1152)
        if int(os.environ.get("COOPX", "1")):
            e("s_lshr_b32 s7, s2, 3"); e("s_lshl_b32 s7, s7, 2"); e("s_add_u32 s7, s7, s5")
            e("s_and_b32 s8, s2, 7"); e("s_lshr_b32 s9, s8, 1")
            e("v_lshlrev_b32 v118, 7, v1")
            e("s_mul_i32 s10, s7, 4608"); e("s_mul_i32 s11, s9, 589824"); e("s_add_u32 s10, s10, s11")
            e("s_mov_b32 exec_hi, 15")
            e("buffer_load_dword v119, v118, s[64:67], s10 offen")
            e("s_mov_b32 exec_hi, -1")
        e("s_mov_b64 s[94:95], s[42:43]")
        if int(os.environ.get("WQEARLY", "0")):
            srd(e, 12, 94, 576 * 1152)
            e("s_lshr_b32 s7, s2, 3"); e("s_lshl_b32 s7, s7, 2"); e("s_add_u32 s7, s7, s5"); e("s_mul_i32 s10, s7, 5248")
            e("v_lshlrev_b32 v117, 7, v1")
            e("s_mov_b32 exec_hi, 0x1ff")
            e("buffer_load_dword v129, v117, s[12:15], s10 offen")
            e("s_mov_b32 exec_hi, -1")
        if attn:
            e("s_cmp_eq_u32 s3, 0"); e("s_cselect_b32 s92, s44, s46"); e("s_cselect_b32 s93, s45, s47")
            srd(e, 16, 92, 576 * 36)
            e("s_cmp_ge_u32 s3, 2"); e("s_cbranch_scc1 A_nokv1")
            for k in range(6):
                e(f"s_mov_b32 s9, {k*4096}"); e(f"buffer_load_dwordx4 {vr(208+4*k,4)}, v150, s[16:19], s9 offen")
            e.label("A_nokv1")
        xdma(e, 112)
        if AP3:
            stamp(e, 3); e("s_waitcnt vmcnt(30)"); stamp(e, 4); e("s_waitcnt vmcnt(0)"); stamp(e, 5); stamp(e, 6); stamp_rt(e, 7); stamp_flush(e, 0, 58); e("s_endpgm")
        e(f"s_add_u32 s96, s58, {WS_EPOCH}"); e("s_addc_u32 s97, s59, 0")
        e("s_load_dword s98, s[96:97], 0")
        srd(e, 24, 58, WS_END); srd(e, 28, 52, 576 * 9216); srd(e, 32, 50, 4608 * 1152); srd(e, 36, 54, 9216); srd(e, 60, 56, 256)
        srd(e, 12, 94, 576 * 1152)
        if not attn: srd(e, 20, 48, 1152)
    e("s_lshr_b32 s7, s2, 3"); e("s_cmp_ge_u32 s7, 16")
    if roles == "attn": e("s_cbranch_scc0 MK_end"); e("s_branch A_start")
    elif roles == "mlp": e("s_cbranch_scc1 MK_end")
    else: e("s_cbranch_scc1 A_start")
    gen_mlp4.gen_mlp4(e, common, xfrag_addr, coop)
    gen_attn_f(e, common)
    e.label("MK_end"); e("s_endpgm")
    e.label("MK_codeend")
    return kernel_desc(K, 512, 100, 256)
def add(body, descs, launches, which):
    roles = "both"
    if which in ("attn", "mlp"): roles = which
    descs.append(gen_fusedK(body, roles)); launches.append(f"; @launch kernel=main_kernel grid=(256,1,1) block=(256,1,1) lds={LDS_MAIN}")
    if not gen_mlp4.TAIL:
        import gen_final
        gen_final.add(body, descs, launches)
```

```python
import os, math
from gen import *
X_NODMA = int(os.environ.get("X_NODMA", "0")); X_NOGELU = int(os.environ.get("X_NOGELU", "0"))
ST_SC1 = " sc1" if int(os.environ.get("ST_SC1", "1")) else ""
PRERED = int(os.environ.get('PRERED', '1'))
SLOT = [0, 36864, 73728, 110592]; BIAS = 147456

TAIL = int(os.environ.get('TAIL', '1'))
INRED = TAIL and int(os.environ.get('INRED', '0'))
RCL = []
OUTSC = os.environ.get('OUTSC', '')
WS_DUMMY = WS_FLAG - 0x1000
TAGR = 98

def poll_flags(e, name, lo_mask, vtmp, sreg=57, cmp=None, inv=True):
    e("s_cmp_lg_u32 s5, 0"); e(f"s_cbranch_scc1 {name}_w")
    e("v_mbcnt_lo_u32_b32 v{0}, -1, 0".format(vtmp)); e(f"v_lshlrev_b32 v{vtmp}, 2, v{vtmp}")
    e(f"s_mov_b32 exec_lo, {hex(lo_mask)}"); e("s_mov_b32 exec_hi, 0")
    e.label(f"{name}_p")
    e(f"buffer_load_dword v{vtmp+1}, v{vtmp}, s[24:27], s{sreg} offen sc1")
    e("s_waitcnt vmcnt(0)")
    e(f"v_cmp_ne_u32 vcc, s{cmp or TAGR}, v{vtmp+1}"); e("s_nop 7")
    e(f"s_cbranch_vccz {name}_d")
    e("s_sleep 4"); e(f"s_branch {name}_p")
    e.label(f"{name}_d")
    e("s_mov_b64 exec, -1")
    if inv: e("buffer_inv sc1"); e("s_waitcnt vmcnt(0)")
    e.label(f"{name}_w")
    e("s_barrier")
def set_flag(e, word_sreg_expr, vtmp):
    e("s_mov_b64 exec, 1"); e(f"v_mov_b32 v{vtmp}, 0"); e(f"v_mov_b32 v{vtmp+1}, s{TAGR}")
    e(f"buffer_store_dword v{vtmp+1}, v{vtmp}, s[24:27], s{word_sreg_expr} offen sc1")
    e("s_mov_b64 exec, -1")

def mktag(e):
    e(f"s_add_u32 s{TAGR}, s{TAGR}, 1")
def arrive(e, vt):
    e("s_mov_b64 s[94:95], exec")
    e("s_cmp_eq_u32 s5, 0"); e("s_cselect_b64 exec, 1, 0")
    e(f"v_mov_b32 v{vt}, 0"); e(f"v_mov_b32 v{vt+1}, 1")
    e("s_cbranch_execz L_arr%d" % len(ARR));
    e(f"buffer_atomic_add v{vt+1}, v{vt}, s[60:63], 0 offen offset:4")
    e.label("L_arr%d" % len(ARR)); ARR.append(1)
    e("s_mov_b64 exec, s[94:95]")
ARR = []
def gen_tail(e, vL16):
    e("s_lshl_b32 s57, s4, 7"); e(f"s_add_u32 s57, s57, {WS_FLAG}")
    e("s_load_dwordx2 s[42:43], s[0:1], 72"); e("s_load_dwordx2 s[92:93], s[0:1], 88")
    e("s_waitcnt vmcnt(0) lgkmcnt(0)"); e("s_barrier")
    srd(e, 20, 42, 1152)
    if not INRED:
        e(f"s_lshl_b32 s97, s{TAGR}, 4"); e("s_lshl_b32 s99, s3, 2"); e("s_add_u32 s99, s99, s57")
    e("s_add_u32 s96, s97, 9")
    e("s_cmp_lg_u32 s5, 0"); e("s_cbranch_scc1 T_nf1")
    e("s_mov_b64 exec, 1"); e("v_mov_b32 v13, 0"); e("v_mov_b32 v14, s96")
    e("buffer_store_dword v14, v13, s[24:27], s99 offen sc1")
    e("s_mov_b64 exec, -1")
    e.label("T_nf1")
    arrive(e, 13)
    e("v_mbcnt_lo_u32_b32 v1, -1, 0"); e("v_mbcnt_hi_u32_b32 v1, -1, v1")
    if INRED:
        e("v_mbcnt_lo_u32_b32 v15, -1, 0"); e("v_mbcnt_hi_u32_b32 v15, -1, v15"); e("v_lshlrev_b32 v15, 3, v15")
        def sum_store(srcs, soff):
            for sp in range(NSPLIT):
                for j in range(2):
                    c0 = "0" if sp == 0 else f"v{16+2*j}"; c1 = "0" if sp == 0 else f"v{17+2*j}"
                    e(f"v_dot2_f32_bf16 v{16+2*j}, v{srcs[sp]+j}, s64, {c0}"); e(f"v_dot2_f32_bf16 v{17+2*j}, v{srcs[sp]+j}, s65, {c1}")
            e("s_nop 3"); e("v_cvt_pk_bf16_f32 v20, v16, v17"); e("v_cvt_pk_bf16_f32 v21, v18, v19"); e("s_nop 1")
            e(f"buffer_store_dwordx2 v[20:21], v15, s[24:27], s{soff} offen sc1"); e("s_nop 1")
        for r in range(16): e(f"v_accvgpr_read_b32 v{32+r}, a{r}")
        sum_store([32 + 2 * sp for sp in range(NSPLIT)], 47)
        poll_flags(e, "T_pp", 0xff, 13, cmp=96, inv=False)
        for p in range(5, 9):
            for sp in range(NSPLIT):
                e(f"s_add_u32 s8, s45, {p*4096 + sp*64*18*2048}")
                e(f"buffer_load_dwordx2 {vr(128+16*(p-5)+2*sp,2)}, v15, s[24:27], s8 offen sc1")
        for p in range(5, 9):
            e(f"s_waitcnt vmcnt({8*(8-p) + (p-5)})")
            e(f"s_add_u32 s47, s45, {p*4096 + WS_B - WS_P}")
            sum_store([128 + 16 * (p - 5) + 2 * sp for sp in range(NSPLIT)], 47)
    if not INRED:
        poll_flags(e, "T_pp", 0xff, 13, cmp=96, inv=False)
        e("s_mul_i32 s11, s3, 18"); e("s_add_u32 s11, s11, s5")
        e(f"s_mul_i32 s12, s4, {4*18*2048}")
        e("s_lshl_b32 s13, s11, 10"); e("s_add_u32 s12, s12, s13")
        e(f"s_add_u32 s13, s12, {WS_P}"); e(f"s_add_u32 s14, s12, {WS_B}")
        e("s_mov_b32 s64, 0x3f80"); e("s_mov_b32 s65, 0x3f800000")
        for k in range(5):
            if k == 4: e("s_cmp_ge_u32 s5, 2"); e("s_cbranch_scc1 T_skip5a")
            for sp in range(NSPLIT):
                e(f"s_add_u32 s55, s13, {sp*64*18*2048 + k*4096}")
                e(f"buffer_load_dwordx4 {vr(96+32*k+4*sp,4)}, v{vL16}, s[24:27], s55 offen sc1")
            if k == 4: e.label("T_skip5a")
        for k in range(5):
            if k == 4: e("s_cmp_ge_u32 s5, 2"); e("s_cbranch_scc1 T_skip5b")
            if k == 0: e("s_waitcnt vmcnt(0)")
            for sp in range(NSPLIT):
                for j in range(4):
                    src = 96 + 32 * k + 4 * sp + j
                    c0 = "0" if sp == 0 else f"v{16+2*j}"; c1 = "0" if sp == 0 else f"v{17+2*j}"
                    e(f"v_dot2_f32_bf16 v{16+2*j}, v{src}, s64, {c0}"); e(f"v_dot2_f32_bf16 v{17+2*j}, v{src}, s65, {c1}")
            e("s_nop 3")
            for j in range(4): e(f"v_cvt_pk_bf16_f32 v{24+j+4*(k%2)}, v{16+2*j}, v{17+2*j}")
            e(f"s_add_u32 s55, s14, {k*4096}")
            e(f"buffer_store_dwordx4 {vr(24+4*(k%2),4)}, v{vL16}, s[24:27], s55 offen sc1")
            if k == 4: e.label("T_skip5b")
    e("s_waitcnt vmcnt(0)"); e("s_barrier")
    e("s_cmp_lg_u32 s5, 0"); e("s_cbranch_scc1 T_nf2")
    e("s_lshl_b32 s8, s3, 2"); e("s_add_u32 s8, s8, s57"); e("s_add_u32 s8, s8, 32"); set_flag(e, 8, 13)
    e.label("T_nf2")
    srd(e, 12, 92, 2048 * 1152)
    stamp(e, 5)
    e("v_lshrrev_b32 v2, 2, v1"); e("v_and_b32 v3, 3, v1"); e("v_lshlrev_b32 v3, 4, v3")
    e("v_mul_u32_u24 v4, 1152, v2"); e("v_add_u32 v4, v4, v3")
    e("s_lshl_b32 s52, s3, 7")
    e(f"s_mul_i32 s51, s5, {144*1152}"); e("s_add_u32 s51, s51, s52"); e("s_mul_i32 s53, s5, 9216")
    e("s_cmp_lg_u32 s3, 7"); e("s_cbranch_scc1 T_no2")
    for ii in range(9):
        e(f"s_add_u32 m0, s53, {3*36864 + ii*1024}"); e(f"s_add_u32 s54, s51, {ii*16*1152 + 192}")
        e("buffer_load_dwordx4 v4, s[16:19], s54 offen lds")
    e.label("T_no2")
    e("v_and_b32 v6, 31, v1"); e("v_lshrrev_b32 v7, 5, v1")
    tr_lane_addr(e, 8, 1, 2, 3, 4)
    e("v_bfe_u32 v2, v1, 3, 1"); e("v_lshlrev_b32 v3, 2, v7"); e("v_add_u32 v2, v2, v3"); e("v_mul_u32_u24 v2, 18, v2")
    e("v_bfe_u32 v3, v1, 2, 1"); e("v_add_u32 v2, v2, v3"); e("v_add_u32 v2, 16, v2"); e("v_lshlrev_b32 v9, 6, v2")
    e("v_bfe_u32 v2, v1, 4, 1"); e("v_lshlrev_b32 v2, 5, v2"); e("v_add_u32 v9, v9, v2")
    e("v_and_b32 v2, 3, v1"); e("v_lshlrev_b32 v2, 3, v2"); e("v_add_u32 v9, v9, v2")
    e("v_add_u32 v10, 36864, v8"); e("v_add_u32 v11, 36864, v9")
    e("v_lshlrev_b32 v3, 3, v7")
    for jb in range(2):
        for j in range(2):
            for q in range(4): e(f"buffer_load_dwordx2 {vr(96+16*jb+8*j+2*q,2)}, v3, s[20:23], s52 offen offset:{jb*128+j*64+q*16}")
    e("s_lshl_b32 s46, s6, 7"); e(f"s_add_u32 s46, s46, {WS_G}"); e("v_lshlrev_b32 v12, 2, v6".replace("v12", "v4"))
    e("s_mul_i32 s50, s6, 18"); e("s_lshl_b32 s54, s3, 1"); e("s_add_u32 s50, s50, s54"); e("s_lshl_b32 s50, s50, 11"); e(f"s_add_u32 s50, s50, {WS_B}")
    def b_loads():
        e("buffer_load_dword v5, v4, s[24:27], s46 offen sc1")
        for jb in range(2):
            for j in range(2):
                for hf in range(2):
                    e(f"s_add_u32 s54, s50, {jb*4096}")
                    e(f"buffer_load_dwordx4 {vr(128+16*jb+8*j+4*hf,4)}, v{vL16}, s[24:27], s54 offen offset:{j*2048+hf*1024} sc1")
    def ps_compute():
        for jb in range(2):
            for j in range(2):
                PS = 160 + 32 * jb + 16 * j
                for k in range(8):
                    src = 128 + 16 * jb + 8 * j + k
                    e(f"v_lshlrev_b32 v{PS+2*k}, 16, v{src}"); e(f"v_and_b32 v{PS+2*k+1}, 0xffff0000, v{src}")
                for r in range(16): e(f"v_mul_f32 v{PS+r}, {hexf(1/KAPPA)}, v{PS+r}")
                for k in range(8):
                    src = 96 + 16 * jb + 8 * j + k
                    e(f"v_dot2_f32_bf16 v{PS+2*k}, v{src}, s64, v{PS+2*k}"); e(f"v_dot2_f32_bf16 v{PS+2*k+1}, v{src}, s65, v{PS+2*k+1}")
    e("v_mul_u32_u24 v2, 1152, v6"); e("v_lshlrev_b32 v3, 4, v7"); e("v_add_u32 v2, v2, v3")
    e(f"s_mul_i32 s51, s6, {32*1152}"); e("s_add_u32 s51, s51, s52")
    e("s_lshl_b32 s55, s6, 15"); e(f"s_add_u32 s55, s55, {WS_O1}")
    e("s_lshl_b32 s56, s6, 12"); e(f"s_add_u32 s56, s56, {WS_O2}")
    ACC = [16, 32]
    MB = 159744
    def rdk(k, img, slot):
        d = 144 + 4 * slot
        am, ae = (8, 9) if img == 0 else (10, 11)
        if k < 32: a_, o1, o2 = am, k * 1152, k * 1152 + 512
        else: a_, o1, o2 = ae, (k - 32) * 8 * 1152, (k - 32) * 8 * 1152 + 2 * 1152
        e(f"ds_read_b64_tr_b16 {ar(d,2)}, v{a_} offset:{o1}"); e(f"ds_read_b64_tr_b16 {ar(d+2,2)}, v{a_} offset:{o2}")
    def mm_block(ks):
        fr = [(k, img) for k in ks for img in range(2)]
        for i, (k, img) in enumerate(fr): rdk(k, img, i)
        for i, (k, img) in enumerate(fr):
            e(f"s_waitcnt lgkmcnt({min(15, 2*(len(fr)-1-i))})")
            e(f"v_mfma_f32_32x32x16_bf16 {vr(ACC[img],16)}, {ar(144+4*i,4)}, {ar(4*k,4)}, {vr(ACC[img],16)}")
    for r in range(32): e(f"v_mov_b32 v{16+r}, 0")
    e("s_waitcnt vmcnt(0)"); e("s_barrier")
    e(f"v_mov_b32 v14, {MB}"); e("v_mov_b32 v13, 0")
    e("s_cmp_lg_u32 s5, 0"); e("s_cbranch_scc1 T_mbi"); e("ds_write_b32 v14, v13"); e.label("T_mbi")
    e("s_waitcnt lgkmcnt(0)"); e("s_barrier")
    e("s_mov_b32 s8, 0"); e("s_mov_b32 s9, 0")
    e("v_mbcnt_lo_u32_b32 v15, -1, 0"); e("v_lshlrev_b32 v15, 2, v15")
    e.label("T_round")
    e("s_cmp_lg_u32 s5, 0"); e("s_cbranch_scc1 T_rd_mb")
    e("s_mov_b32 exec_lo, 0xffff00"); e("s_mov_b32 exec_hi, 0")
    e("buffer_load_dword v13, v15, s[24:27], s57 offen sc1")
    e("s_waitcnt vmcnt(0)")
    e(f"v_cmp_eq_u32 vcc, s{TAGR}, v13"); e("s_mov_b64 exec, -1"); e("s_nop 4")
    e("s_lshr_b32 s10, vcc_lo, 8")
    e("s_and_b32 s7, s10, 0xff"); e("s_lshr_b32 s10, s10, 8"); e("s_cmp_eq_u32 s7, 0xff"); e("s_cselect_b32 s7, 0x1000, 0"); e("s_or_b32 s10, s10, s7")
    e("v_mov_b32 v13, s10"); e("ds_write_b32 v14, v13")
    e("s_branch T_have")
    e.label("T_rd_mb")
    e("ds_read_b32 v13, v14"); e("s_waitcnt vmcnt(0) lgkmcnt(0)"); e("v_readfirstlane_b32 s10, v13"); e("s_nop 3")
    e.label("T_have")
    e("s_andn2_b32 s11, s8, s9"); e("s_or_b32 s9, s9, s11")
    for g in range(8):
        e(f"s_bitcmp1_b32 s11, {g}"); e(f"s_cbranch_scc0 T_nc{g}")
        mm_block([4 * g + i for i in range(4)])
        e.label(f"T_nc{g}")
    for x in range(4):
        e(f"s_bitcmp1_b32 s11, {8+x}"); e(f"s_cbranch_scc0 T_ncx{x}")
        mm_block([32 + x])
        e.label(f"T_ncx{x}")
    e("s_bitcmp1_b32 s11, 12"); e("s_cbranch_scc0 T_ncb")
    ps_compute()
    e.label("T_ncb")
    e("s_cmp_eq_u32 s9, 0x1fff"); e("s_cbranch_scc1 T_alld")
    e("s_lshr_b32 s11, s10, 1"); e("s_and_b32 s11, s11, s10")
    for x in range(4):
        e(f"s_bitcmp1_b32 s11, {2*x}"); e(f"s_cselect_b32 s7, {1 << (8+x)}, 0"); e("s_or_b32 s10, s10, s7")
    e("s_andn2_b32 s11, s10, s8"); e("s_or_b32 s8, s8, s11")
    e("s_cmp_eq_u32 s11, 0"); e("s_cbranch_scc1 T_idle")
    for g in range(8):
        e(f"s_bitcmp1_b32 s11, {g}"); e(f"s_cbranch_scc0 T_nl{g}")
        e(f"s_add_u32 s54, s55, {g*4096}")
        for i in range(4): e(f"buffer_load_dwordx4 {ar(16*g+4*i,4)}, v{vL16}, s[24:27], s54 offen offset:{i*1024} sc1")
        e.label(f"T_nl{g}")
    for x in range(4):
        e(f"s_bitcmp1_b32 s11, {8+x}"); e(f"s_cbranch_scc0 T_nlx{x}")
        e(f"buffer_load_dwordx4 {ar(128+4*x,4)}, v{vL16}, s[24:27], s56 offen offset:{x*1024} sc1")
        e.label(f"T_nlx{x}")
    e("s_bitcmp1_b32 s11, 12"); e("s_cbranch_scc0 T_nlb")
    b_loads()
    e.label("T_nlb")
    e("s_branch T_round")
    e.label("T_idle")
    e("s_sleep 3"); e("s_branch T_round")
    e.label("T_alld")
    stamp(e, 4)
    def rd(k, img):
        d = 144 + 4 * ((2 * k + img) % 8)
        am, ae = (8, 9) if img == 0 else (10, 11)
        if k < 32: a_, o1, o2 = am, k * 1152, k * 1152 + 512
        else: a_, o1, o2 = ae, (k - 32) * 8 * 1152, (k - 32) * 8 * 1152 + 2 * 1152
        e(f"ds_read_b64_tr_b16 {ar(d,2)}, v{a_} offset:{o1}"); e(f"ds_read_b64_tr_b16 {ar(d+2,2)}, v{a_} offset:{o2}")
    for jb in range(2):
        if jb == 1:
            e("s_cmp_lg_u32 s3, 7"); e("s_cbranch_scc1 T_done")
            for r in (8, 9, 10, 11): e(f"v_add_u32 v{r}, 73728, v{r}")
            for k in range(3): rd(k, 0); rd(k, 1)
            for k in range(36):
                nout = 4 * (min(35, k + 2) - k)
                e(f"s_waitcnt lgkmcnt({nout})")
                for img in range(2):
                    c = "0" if k == 0 else vr(ACC[img], 16)
                    e(f"v_mfma_f32_32x32x16_bf16 {vr(ACC[img],16)}, {ar(144+4*((2*k+img)%8),4)}, {ar(4*k,4)}, {c}")
                    if k + 3 < 36: rd(k + 3, img)
        e("s_nop 7"); e("s_nop 3")
        for j in range(2):
            PS = 160 + 32 * jb + 16 * j
            A = ACC[j]
            for r in range(16):
                e(f"v_sub_f32 v{A+r}, v{A+r}, v{PS+r}"); e(f"v_fma_f32 v{A+r}, v5, v{A+r}, v{PS+r}")
            pk = 80 + 8 * j
            for k in range(8): e(f"v_cvt_pk_bf16_f32 v{pk+k}, v{A+2*k}, v{A+2*k+1}")
            e("s_nop 1")
            for base in (pk, pk + 4):
                e(f"v_permlane32_swap_b32 v{base}, v{base+2}"); e(f"v_permlane32_swap_b32 v{base+1}, v{base+3}")
            e("s_nop 1")
            e(f"buffer_store_dwordx4 {vr(pk,4)}, v2, s[12:15], s51 offen offset:{jb*128+j*64}" + OUTSC)
            e(f"buffer_store_dwordx4 {vr(pk+4,4)}, v2, s[12:15], s51 offen offset:{jb*128+j*64+32}" + OUTSC)
    e.label("T_done")
    e("s_or_b32 s8, s3, s4"); e("s_or_b32 s8, s8, s5"); e("s_cmp_lg_u32 s8, 0"); e("s_cbranch_scc1 T_end")
    e("s_mov_b64 exec, 1"); e("v_mov_b32 v13, 0")
    e.label("T_ep")
    e("buffer_load_dword v14, v13, s[60:63], 0 offen offset:4 sc1")
    e("s_waitcnt vmcnt(0)")
    e("v_readfirstlane_b32 s8, v14"); e("s_nop 3")
    e("s_cmp_ge_u32 s8, 256"); e("s_cbranch_scc1 T_epd")
    e("s_sleep 2"); e("s_branch T_ep")
    e.label("T_epd")
    e(f"v_mov_b32 v14, s{TAGR}"); e(f"s_mov_b32 s8, {WS_EPOCH}")
    e("buffer_store_dword v14, v13, s[24:27], s8 offen")
    e("s_mov_b64 exec, -1")
    e.label("T_end")

GWL = BIAS + 2304
def gen_mlp4(e, common, xfrag_addr, coop):
    YF = lambda s: ar(4 * s, 4)
    NR = 8
    RING = lambda k: 144 + 4 * (k % NR)
    SB = lambda b, u: 16 + 32 * b + 16 * u
    PR = lambda c: 112 + 8 * c
    PK = 80
    T = [96, 97, 98, 99, 100, 101]
    aX = [104, 105, 106, 107]; aY = [108, 109, 110, 111]
    dW1 = [2, 3, 4, 5]; dW2 = [6, 7, 8, 9]; aB, cC0, vL16 = 10, 11, 12
    D = 6
    e.label("M_start")
    e(f"v_lshlrev_b32 v{vL16}, 4, v1")
    e("v_lshlrev_b32 v13, 3, v0"); e("v_lshlrev_b32 v14, 4, v0")
    e("v_and_b32 v74, 31, v1"); e("v_lshrrev_b32 v75, 5, v1")
    e("v_and_b32 v15, 3, v1"); e("v_lshlrev_b32 v15, 4, v15")
    e("v_lshrrev_b32 v16, 5, v1"); e("v_lshlrev_b32 v16, 6, v16"); e("v_add_u32 v15, v15, v16")
    e("v_bfe_u32 v16, v1, 2, 3")
    e(f"v_mul_u32_u24 v{dW1[0]}, 9216, v16"); e(f"v_add_u32 v{dW1[0]}, v{dW1[0]}, v15")
    e(f"v_mul_u32_u24 v{dW2[0]}, 1152, v16"); e(f"v_add_u32 v{dW2[0]}, v{dW2[0]}, v15")
    S1, S2 = 8 * 9216, 8 * 1152
    for q in range(1, 4):
        e(f"v_add_u32 v{dW1[q]}, {q*(S1-1024)}, v{dW1[0]}"); e(f"v_add_u32 v{dW2[q]}, {q*(S2-1024)}, v{dW2[0]}")
    e("v_lshrrev_b32 v15, 5, v1")
    e("v_bfe_u32 v16, v1, 2, 2"); e("v_lshlrev_b32 v16, 6, v16")
    e("v_bfe_u32 v17, v1, 4, 1"); e("v_lshlrev_b32 v17, 5, v17"); e("v_add_u32 v16, v16, v17")
    e("v_and_b32 v17, 3, v1"); e("v_lshlrev_b32 v17, 3, v17"); e("v_add_u32 v16, v16, v17")
    e("v_lshlrev_b32 v17, 10, v15"); e("v_add_u32 v17, v17, v16")
    e("v_lshlrev_b32 v18, 8, v15"); e("v_add_u32 v18, v18, v16")
    for k in range(4):
        e(f"v_add_u32 v{aX[k]}, {SLOT[k]}, v17"); e(f"v_add_u32 v{aY[k]}, {SLOT[k]}, v18")
    e("v_lshlrev_b32 v15, 4, v15"); e(f"v_add_u32 v{aB}, {BIAS}, v15")
    e(f"v_mov_b32 v{cC0}, {hexf(GC0)}")
    xfrag_addr(e, 68, 72)
    common(e, False)
    e("v_cmp_gt_u32 vcc, 144, v0"); e("s_nop 1"); e("s_mov_b64 s[46:47], vcc")
    e(f"s_mul_i32 s40, s5, {72*9216}"); e("s_mul_i32 s42, s3, 1152"); e("s_add_u32 s40, s40, s42")
    e(f"s_mul_i32 s41, s3, {576*1152}"); e(f"s_mul_i32 s42, s5, {72*1152}"); e("s_add_u32 s41, s41, s42")
    e("s_mul_i32 s43, s5, 9216")
    vq = []
    def vm_issue(tag, ins):
        for x in ins: e(x)
        vq.append(tag)
    def vm_need(tag):
        idx = max((i for i, t in enumerate(vq) if t == tag), default=None)
        if idx is None: return None
        n = len(vq) - 1 - idx
        del vq[:idx + 1]
        return n
    REC = {"mode": None, "log": [], "over": None, "i": 0}
    def vm_wait(tag):
        n = vm_need(tag)
        if REC["mode"] == "rec": REC["log"].append(n)
        if REC["mode"] == "use":
            n = REC["over"][REC["i"]]; REC["i"] += 1
        if n is not None: e(f"s_waitcnt vmcnt({n})")
    def dma_groups(phi, ybase=None, solo=False):
        slot = SLOT[phi % 4]; out = []
        t, hh = phi // 2, phi % 2
        for ii in range(9):
            q = 0 if solo else ii % 4; g = []
            if phi < 18:
                if q == 0: g += [f"s_add_u32 m0, s43, {slot + ii*1024}", f"s_add_u32 s44, s40, {hh*288*9216 + ii*S1 + t*128}"]
                g.append(f"buffer_load_dwordx4 v{dW1[q]}, s[28:31], s44 offen offset:{q*1024} lds")
            else:
                np_ = (t - 9) if ybase is None else (t - ybase)
                if q == 0: g += [f"s_add_u32 m0, s43, {slot + ii*1024}", f"s_add_u32 s44, s41, {hh*288*1152 + ii*S2 + np_*128}"]
                g.append(f"buffer_load_dwordx4 v{dW2[q]}, s[32:35], s44 offen offset:{q*1024} lds")
            out.append(g)
        return out
    class LT:
        def __init__(self): self.q = []
        def issue(self, tag, ins):
            for x in ins: e(x); self.q.append(tag)
        def wait(self, tag):
            idx = max((i for i, t in enumerate(self.q) if t == tag), default=None)
            if idx is None: return
            n = len(self.q) - 1 - idx
            e(f"s_waitcnt lgkmcnt({min(n, 15)})")
            self.q = self.q[idx + 1:] if n <= 15 else self.q[len(self.q) - 15:]
    lt = LT()
    def frag_rd(phi, i):
        s, u = i // 2, i % 2
        d = RING(phi * 36 + i)
        if phi < 18:
            a = aX[phi % 4]; o1 = s * 2048 + u * 512; o2 = o1 + 256
        else:
            a = aY[phi % 4]; o1 = s * 2048 + u * 512; o2 = o1 + 1024
        return [f"ds_read_b64_tr_b16 {ar(d,2)}, v{a} offset:{o1}", f"ds_read_b64_tr_b16 {ar(d+2,2)}, v{a} offset:{o2}"]
    def mfma(phi, i):
        t, hh = phi // 2, phi % 2
        s, u = i // 2, i % 2
        ks = 18 * hh + s
        A = ar(RING(phi * 36 + i), 4); Dst = vr(SB(t % 2, u), 16)
        if phi < 18: return f"v_mfma_f32_32x32x16_bf16 {Dst}, {A}, {YF(ks)}, {Dst}"
        B = vr(PR(ks // 2) + 4 * (ks % 2), 4)
        C = "0" if ks == 0 else Dst
        return f"v_mfma_f32_32x32x16_bf16 {Dst}, {A}, {B}, {C}"
    def gelu(x, t):
        return [f"v_fma_f32 v{t}, v{x}, v{x}, v{cC0}", f"v_mul_f32 v{t}, v{x}, v{t}", f"v_exp_f32 v{t}, -v{t}",
                f"v_add_f32 v{t}, 1.0, v{t}", f"v_rcp_f32 v{t}, v{t}", f"v_mul_f32 v{x}, v{x}, v{t}"]
    def gelu_tile(b, u, c):
        out = []
        base = SB(b, u)
        for g0 in (0, 3, 6, 9, 12, 14):
            grp = list(range(g0, g0 + 3)) if g0 < 12 else [g0, g0 + 1]
            seqs = [gelu(base + r, T[(i + (3 if (g0 // 3) % 2 else 0)) % 6]) for i, r in enumerate(grp)]
            for op in range(6):
                for sq in seqs: out.append(sq[op])
        for k in range(8): out.append(f"v_cvt_pk_bf16_f32 v{PR(c)+k}, v{base+2*k}, v{base+2*k+1}")
        return out
    def bias_rd(b, u, c): return [f"ds_read_b128 {vr(SB(b,u)+4*q,4)}, v{aB} offset:{c*128+q*32}" for q in range(4)]
    def cost(x): return 8 if x.startswith(("v_exp", "v_rcp")) else 4
    WP = 2
    def need(gk):
        if gk % WP == 0:
            for kk in range(gk + WP - 1, gk - 1, -1):
                if ("f", kk) in lt.q:
                    lt.wait(("f", kk)); return
    def spread(items, n):
        tot = sum(cost(x) for x in items if isinstance(x, str)) or 1
        out = [[] for _ in range(n)]; acc = 0; g = 0
        for x in items:
            while g < n - 1 and acc >= tot * (g + 1) / n: g += 1
            out[g].append(x); acc += cost(x) if isinstance(x, str) else 4
        return out
    def phase(phi, fills, dma, next_phi, extra=None, ybase=None, pend=None):
        dma = list(dma)
        for i in range(36):
            gk = phi * 36 + i
            e(mfma(phi, i))
            nxt = i + D
            if nxt == 36 and next_phi is not None:
                vm_wait(("d", next_phi))
                e("s_barrier")
            if nxt < 36: lt.issue(("f", gk + D), frag_rd(phi, nxt))
            elif next_phi is not None: lt.issue(("f", gk + D), frag_rd(next_phi, nxt - 36))
            if extra and i in extra: extra[i]()
            if dma and i % 4 == 1:
                g = dma.pop(0)
                if not X_NODMA: vm_issue(("d", phi + 3), g)
            if pend:
                pend(i)
            if not X_NOGELU:
                for x in fills[i]:
                    if isinstance(x, tuple): vm_issue(x[0], [x[1]])
                    else: e(x)
            need(gk + 1)
        assert not dma
    XR = 112
    vq.extend([("x", 0)] * 36)
    e("s_mul_i32 s42, s3, 1152")
    e("s_mov_b64 s[50:51], exec"); e("s_mov_b64 exec, s[46:47]")
    vm_issue("bias", ["buffer_load_dwordx2 v[60:61], v13, s[36:39], s42 offen"])
    e("s_mov_b64 exec, s[50:51]")
    e("v_cmp_gt_u32 vcc, 72, v0"); e("s_nop 1"); e("s_mov_b64 s[54:55], vcc"); e("s_mov_b64 exec, s[54:55]")
    vm_issue("gw", ["buffer_load_dwordx4 v[64:67], v14, s[20:23], 0 offen"])
    e("s_mov_b64 exec, s[50:51]")
    coop(e, 48); vq.extend(["pf"] if int(os.environ.get("WQEARLY", "0")) else ["pf", "pf"])
    n = vm_need(("x", 0)); e(f"s_waitcnt vmcnt({n})")
    for s_ in range(36): e(f"ds_read_b128 {vr(XR+4*s_,4)}, v{68+s_%4} offset:{(s_//4)*128}")
    n = vm_need("gw"); e(f"s_waitcnt vmcnt({n}) lgkmcnt(0)"); stamp(e, 2); e("s_barrier")
    mktag(e)
    pend = [(("d", ph), g) for ph in range(3) for g in dma_groups(ph, solo=True)]
    e("s_mov_b64 exec, s[46:47]")
    e("v_and_b32 v63, 0xffff0000, v61"); e("v_lshlrev_b32 v62, 16, v61"); e("v_and_b32 v61, 0xffff0000, v60"); e("v_lshlrev_b32 v60, 16, v60")
    for r in range(60, 64): e(f"v_mul_f32 v{r}, {hexf(KAPPA)}, v{r}")
    e(f"v_add_u32 v76, {BIAS}, v14"); e("ds_write_b128 v76, v[60:63]")
    e("s_mov_b64 exec, s[54:55]"); e(f"v_add_u32 v76, {GWL}, v14"); e("ds_write_b128 v76, v[64:67]")
    e("s_mov_b64 exec, s[50:51]")
    A0, A1, A2 = 78, 79, 80
    e("s_mov_b32 s56, 0x3f803f80")
    e(f"v_mov_b32 v{A0}, 0"); e(f"v_mov_b32 v{A1}, 0"); e(f"v_mov_b32 v81, 0"); e(f"v_mov_b32 v82, 0")
    for i in range(144):
        e(f"v_dot2_f32_bf16 v{A0 if i%2==0 else 81}, v{XR+i}, s56, v{A0 if i%2==0 else 81}")
        e(f"v_dot2_f32_bf16 v{A1 if i%2==0 else 82}, v{XR+i}, v{XR+i}, v{A1 if i%2==0 else 82}")
        if i % 5 == 0 and pend:
            tag, g = pend.pop(0); vm_issue(tag, g)
    assert not pend
    e("s_nop 3")
    e(f"v_add_f32 v{A0}, v{A0}, v81"); e(f"v_add_f32 v{A1}, v{A1}, v82")
    for r in (A0, A1):
        e(f"v_mov_b32 v83, v{r}"); e("s_nop 1"); e(f"v_permlane32_swap_b32 v{r}, v83"); e("s_nop 1"); e(f"v_add_f32 v{r}, v{r}, v83")
    e(f"v_mul_f32 v{A0}, {hexf(1/576)}, v{A0}"); e(f"v_mul_f32 v{A1}, {hexf(1/576)}, v{A1}")
    e(f"v_fma_f32 v{A1}, -v{A0}, v{A0}, v{A1}"); e(f"v_max_f32 v{A1}, 0, v{A1}"); e(f"v_add_f32 v{A1}, {hexf(1e-5)}, v{A1}")
    e(f"v_rsq_f32 v{A1}, v{A1}"); e("s_nop 0"); e(f"v_mul_f32 v{A1}, {hexf(KAPPA)}, v{A1}")
    e(f"v_mul_f32 v{A0}, v{A0}, v{A1}")
    e("s_waitcnt lgkmcnt(0)"); e("s_barrier")
    e("s_cmp_lg_u32 s3, 2"); e("s_cbranch_scc1 M_nogate")
    e("v_lshlrev_b32 v83, 4, v75"); e(f"v_add_u32 v83, {GWL}, v83"); e(f"v_mov_b32 v{A2}, 0")
    for g0 in range(0, 36, 4):
        for k in range(4): e(f"ds_read_b128 {vr(84+4*k,4)}, v83 offset:{(g0+k)*32}")
        e("s_waitcnt lgkmcnt(0)")
        for k in range(4):
            for j in range(4): e(f"v_dot2_f32_bf16 v{A2}, v{XR+4*(g0+k)+j}, v{84+4*k+j}, v{A2}")
    e("s_nop 3"); e(f"v_mov_b32 v83, v{A2}"); e("s_nop 1"); e(f"v_permlane32_swap_b32 v{A2}, v83"); e("s_nop 1"); e(f"v_add_f32 v{A2}, v{A2}, v83")
    e(f"v_mul_f32 v{A2}, {hexf(-math.log2(math.e))}, v{A2}"); e(f"v_exp_f32 v{A2}, v{A2}"); e("s_nop 0")
    e(f"v_add_f32 v{A2}, 1.0, v{A2}"); e(f"v_rcp_f32 v{A2}, v{A2}")
    e("s_lshl_b32 s53, s6, 7"); e(f"s_add_u32 s53, s53, {WS_G}"); e("v_lshlrev_b32 v83, 2, v74")
    e("s_mov_b32 exec_hi, 0"); e(f"buffer_store_dword v{A2}, v83, s[24:27], s53 offen sc1"); e("s_mov_b32 exec_hi, -1")
    e("s_waitcnt vmcnt(0)")
    e.label("M_nogate")
    e(f"v_mov_b32 v84, v{A1}"); e(f"v_mov_b32 v85, v{A1}"); e(f"v_sub_f32 v86, 0, v{A0}"); e(f"v_sub_f32 v87, 0, v{A0}")
    for i in range(144):
        t0 = 16 + 2 * (i % 4)
        e(f"v_lshlrev_b32 v{t0}, 16, v{XR+i}"); e(f"v_and_b32 v{t0+1}, 0xffff0000, v{XR+i}")
        e(f"v_pk_fma_f32 v[{t0}:{t0+1}], v[{t0}:{t0+1}], v[84:85], v[86:87]")
        if i > 0:
            p0 = 16 + 2 * ((i - 1) % 4)
            e(f"v_cvt_pk_bf16_f32 v{p0}, v{p0}, v{p0+1}"); e(f"v_accvgpr_write_b32 a{i-1}, v{p0}")
    p0 = 16 + 2 * (143 % 4)
    e(f"v_cvt_pk_bf16_f32 v{p0}, v{p0}, v{p0+1}"); e(f"v_accvgpr_write_b32 a143, v{p0}")
    if int(os.environ.get("DBG_Y", "0")):
        e("s_mul_i32 s53, s6, 36864")
        for s_ in range(36):
            e(f"s_add_u32 s44, s53, {s_*1024}"); e("s_nop 4")
            e(f"buffer_store_dwordx4 {ar(4*s_,4)}, v{vL16}, s[24:27], s44 offen")
        e("s_waitcnt vmcnt(0)")
    n = vm_need(("d", 0)); e(f"s_waitcnt vmcnt({n})")
    stamp(e, 3)
    e("s_barrier")
    lt.issue("b", bias_rd(0, 0, 0) + bias_rd(0, 1, 1))
    for k in range(D): lt.issue(("f", k), frag_rd(0, k))
    lt.wait("b")
    need(0)
    def pend_fn(phi): return None
    for t in range(9):
        fl = []
        if t > 0:
            fl = gelu_tile(1 - t % 2, 0, 2 * (t - 1)) + gelu_tile(1 - t % 2, 1, 2 * (t - 1) + 1)
        buckets = [[] for _ in range(72)]
        if fl:
            sp = spread(fl, 62)
            for i in range(62): buckets[3 + i] = sp[i]
        for hh in range(2):
            phi = 2 * t + hh
            extra = {}
            if hh == 1 and t < 8:
                extra[30] = (lambda tt=t: lt.issue("b", bias_rd((tt + 1) % 2, 0, 2 * (tt + 1)) + bias_rd((tt + 1) % 2, 1, 2 * (tt + 1) + 1)))
            dm = dma_groups(phi + 3)
            phase(phi, buckets[36 * hh: 36 * hh + 36], dm, phi + 1, extra)
        if t == 0:
            stamp(e, 4)
    def epi(b, np_imm):
        out = []
        for u in range(2):
            base = SB(b, u)
            for k in range(8): out.append(f"v_cvt_pk_bf16_f32 v{PK+8*u+k}, v{base+2*k}, v{base+2*k+1}")
            out.append((("s", 0), f"buffer_store_dwordx4 {vr(PK+8*u,4)}, v{vL16}, s[24:27], s52 offen offset:{u*2048}{ST_SC1}"))
            out.append((("s", 0), f"buffer_store_dwordx4 {vr(PK+8*u+4,4)}, v{vL16}, s[24:27], s52 offen offset:{u*2048+1024}{ST_SC1}"))
        return out
    e("s_lshl_b32 s52, s3, 6"); e("s_add_u32 s52, s52, s6"); e(f"s_mul_i32 s52, s52, {18*2048}"); e(f"s_add_u32 s52, s52, {WS_P}")
    RL = 4
    SPL = 64 * 18 * 2048
    def red_compute():
        out = []
        for sp in range(NSPLIT):
            t0 = 96 + 2 * (sp % 2)
            out += [f"v_accvgpr_read_b32 v{t0}, a{2*sp}", f"v_accvgpr_read_b32 v{t0+1}, a{2*sp+1}"]
            for j in range(2):
                c0 = "0" if sp == 0 else f"v{100+2*j}"; c1 = "0" if sp == 0 else f"v{101+2*j}"
                out += [f"v_dot2_f32_bf16 v{100+2*j}, v{t0+j}, s64, {c0}", f"v_dot2_f32_bf16 v{101+2*j}, v{t0+j}, s65, {c1}"]
        out += ["s_nop 2", "v_cvt_pk_bf16_f32 v96, v100, v101", "v_cvt_pk_bf16_f32 v97, v102, v103", "s_nop 0"]
        out.append((("rs", 0), "buffer_store_dwordx2 v[96:97], v1, s[24:27], s47 offen sc1"))
        return out
    def wo_groups(img):
        return [[f"s_add_u32 m0, s43, {SLOT[img] + ii*1024}", f"s_add_u32 s44, s53, {ii*16*1152 + img*64}",
                 "buffer_load_dwordx4 v13, s[16:19], s44 offen lds"] for ii in range(9)]
    def ystep(t, first=False, ybase=9, last=False):
        extra = [{}, {}]
        if first:
            fl = gelu_tile(1 - t % 2, 0, 16) + gelu_tile(1 - t % 2, 1, 17)
            sp = spread(fl, 56); buckets = [[] for _ in range(72)]
            for i in range(56): buckets[3 + i] = sp[i]
        else:
            fl = epi(1 - t % 2, 0)
            buckets = [[] for _ in range(72)]
            pos = 3
            for x in fl:
                while pos % 4 == 1: pos += 1
                buckets[pos].append(x)
                if len(buckets[pos]) >= 2 or isinstance(x, tuple): pos += 1
            buckets[pos + 1].append("s_add_u32 s52, s52, 4096")
        if INRED and not first:
            if True:
                extra[0][23] = lambda: vm_wait(("r", 7))
                rc = red_compute(); pos = 24
                for x in rc:
                    while pos % 4 == 1 or pos == 31: pos += 1
                    buckets[pos].append(x)
                    if len(buckets[pos]) >= 3 or isinstance(x, tuple): pos += 1
                assert pos < 36 + 22, pos
            buckets[31] += ["s_add_u32 s46, s46, 1", "s_max_i32 s8, s46, 0", "s_add_u32 s8, s8, s97", "v_mov_b32 v14, s8", "s_mov_b64 exec, 1",
                            (("fl", 0), "buffer_store_dword v14, v15, s[24:27], s99 offen sc1"), "s_mov_b64 exec, -1"]
            def chk():
                vm_wait(("fload", 0))
                e("s_add_u32 s9, s48, 1"); e("s_max_i32 s9, s9, 0"); e("s_add_u32 s10, s97, s9"); e("s_sub_u32 s11, 9, s9")
                lab = f"M_rc{len(RCL)}"; RCL.append(1)
                e("s_cmp_lt_i32 s48, 0"); e(f"s_cbranch_scc1 {lab}b")
                e.label(lab + "a")
                e("v_subrev_u32 v14, s10, v13"); e("s_mov_b64 exec, 0xff"); e("v_cmp_lt_u32 vcc, s11, v14"); e("s_mov_b64 exec, -1"); e("s_nop 4")
                e(f"s_cbranch_vccz {lab}b")
                e("s_sleep 2"); e("s_mov_b64 exec, 0xff"); e("buffer_load_dword v13, v0, s[24:27], s57 offen sc1"); e("s_mov_b64 exec, -1"); e("s_waitcnt vmcnt(0)"); e(f"s_branch {lab}a")
                e.label(lab + "b")
                e("s_max_i32 s9, s48, 0"); e("s_lshl_b32 s9, s9, 12"); e("s_add_u32 s49, s45, s9")
                e(f"s_add_u32 s47, s49, {WS_B - WS_P}"); e(f"s_add_u32 s9, s45, {8*4096 + WS_B - WS_P}"); e("s_cmp_lt_i32 s48, 0"); e("s_cselect_b32 s47, s9, s47")
                e("s_add_u32 s48, s48, 1")
            extra[1][23] = chk
            pos = 36 + 24
            for sp in range(NSPLIT):
                while pos % 4 == 1: pos += 1
                buckets[pos] += [f"s_add_u32 s8, s49, {sp*SPL}", (("r", sp), f"buffer_load_dwordx2 {ar(2*sp,2)}, v1, s[24:27], s8 offen sc1")]
                pos += 1
            buckets[4] = ["s_mov_b64 exec, 0xff", (("fload", 0), "buffer_load_dword v13, v0, s[24:27], s57 offen sc1"), "s_mov_b64 exec, -1"] + buckets[4]
        for hh in range(2):
            phi = 2 * t + hh
            nphi = phi + 1
            if last and phi + 3 >= 36: dm = wo_groups(phi - 33) if TAIL else []
            else: dm = dma_groups(phi + 3, ybase)
            phase(phi, buckets[36 * hh: 36 * hh + 36], dm, None if phi == 35 else nphi, extra[hh])
    if INRED:
        e("s_lshl_b32 s57, s4, 7"); e(f"s_add_u32 s57, s57, {WS_FLAG}")
        e("s_lshl_b32 s99, s3, 2"); e("s_add_u32 s99, s99, s57")
        e(f"s_lshl_b32 s97, s{TAGR}, 4")
        e("s_mov_b32 s46, -1")
        e(f"s_mov_b32 s48, {1 - RL}")
        e("s_lshr_b32 s8, s3, 1"); e("s_lshl_b32 s9, s4, 2"); e("s_add_u32 s8, s8, s9"); e("s_mul_i32 s8, s8, 18")
        e("s_and_b32 s9, s3, 1"); e("s_add_u32 s8, s8, s9"); e("s_lshl_b32 s45, s8, 11")
        e("s_and_b32 s9, s5, 1"); e("s_lshl_b32 s9, s9, 10"); e("s_add_u32 s45, s45, s9"); e("s_lshr_b32 s9, s5, 1"); e("s_lshl_b32 s9, s9, 9"); e("s_add_u32 s45, s45, s9")
        e(f"s_add_u32 s45, s45, {WS_P}")
        e(f"s_add_u32 s47, s45, {8*4096 + WS_B - WS_P}")
        e("s_mov_b32 s64, 0x3f80"); e("s_mov_b32 s65, 0x3f800000")
        e("v_lshlrev_b32 v0, 2, v1"); e("v_lshlrev_b32 v1, 3, v1"); e("v_mov_b32 v15, 0")
    ystep(9, first=True)
    e("s_mov_b32 s15, 3")
    def retag(dphi):
        for i, tg in enumerate(vq):
            if isinstance(tg, tuple) and tg[0] == "d": vq[i] = ("d", tg[1] + dphi)
        lt.q[:] = [(tg[0], tg[1] + dphi * 36) if isinstance(tg, tuple) else tg for tg in lt.q]
    vq0, lq0, keep = list(vq), list(lt.q), e.l
    logs = []
    for rep in range(3):
        e.l = []; REC["mode"] = "rec"; REC["log"] = []; nl = len(RCL)
        ystep(10); ystep(11)
        del RCL[nl:]
        logs.append(REC["log"]); retag(-4)
    vq_steady, lq_steady = list(vq), list(lt.q)
    assert lq_steady == lq0, (lq_steady, lq0)
    over = []
    for vals in zip(*logs):
        v = [x for x in vals if x is not None]
        over.append(min(v) if v else None)
    e.l = keep; vq[:] = vq0; lt.q[:] = lq0
    REC["mode"] = "use"; REC["over"] = over; REC["i"] = 0
    e.label("M_loop")
    ystep(10); ystep(11)
    REC["mode"] = None
    e("s_add_u32 s41, s41, 256")
    e("s_sub_u32 s15, s15, 1"); e("s_cmp_lg_u32 s15, 0"); e("s_cbranch_scc1 M_loop")
    vq[:] = vq_steady; lt.q[:] = lq_steady
    retag(12)
    if TAIL:
        e("s_load_dwordx2 s[92:93], s[0:1], 32"); e("s_waitcnt lgkmcnt(0)"); lt.q[:] = []
        srd(e, 16, 92, 576 * 1152)
        e("v_mbcnt_lo_u32_b32 v14, -1, 0"); e("v_mbcnt_hi_u32_b32 v14, -1, v14")
        e("v_lshrrev_b32 v13, 2, v14"); e("v_mul_u32_u24 v13, 1152, v13"); e("v_and_b32 v14, 3, v14"); e("v_lshlrev_b32 v14, 4, v14"); e("v_add_u32 v13, v13, v14")
        e(f"s_mul_i32 s53, s5, {144*1152}"); e("s_lshl_b32 s8, s3, 7"); e("s_add_u32 s53, s53, s8")
    ystep(16, ybase=15, last=True); ystep(17, ybase=15, last=True)
    e("s_nop 7"); e("s_nop 3")
    stamp(e, 5)
    for x in epi(1, 0):
        if isinstance(x, tuple): e("s_nop 0"); e(x[1])
        else: e(x)
    if PRERED and not TAIL:
            e("s_waitcnt vmcnt(0)"); e("s_barrier")
            e("s_lshl_b32 s9, s4, 3"); e("s_add_u32 s9, s9, 64")
            e("v_mov_b32 v13, 0"); e("v_mov_b32 v14, 1")
            e("s_cmp_lg_u32 s5, 0"); e("s_cbranch_scc1 M_nosig")
            e("s_mov_b64 exec, 1")
            e("buffer_atomic_add v14, v13, s[60:63], s9 offen")
            e.label("M_poll")
            e("buffer_load_dword v15, v13, s[60:63], s9 offen sc1")
            e("s_waitcnt vmcnt(0)")
            e("v_readfirstlane_b32 s10, v15"); e("s_nop 3")
            e("s_cmp_ge_u32 s10, 8"); e("s_cbranch_scc1 M_polled")
            e("s_sleep 1"); e("s_branch M_poll")
            e.label("M_polled")
            e("s_mov_b64 exec, -1")
            e.label("M_nosig")
            e("s_barrier")
            e("s_mul_i32 s11, s3, 18"); e("s_add_u32 s11, s11, s5")
            e(f"s_mul_i32 s12, s4, {4*18*2048}")
            e("s_lshl_b32 s13, s11, 10"); e("s_add_u32 s12, s12, s13")
            e(f"s_add_u32 s13, s12, {WS_P}"); e(f"s_add_u32 s14, s12, {WS_B}")
            e("s_mov_b32 s16, 0x3f80"); e("s_mov_b32 s17, 0x3f800000")
            for k in range(5):
                if k == 4: e("s_cmp_ge_u32 s5, 2"); e("s_cbranch_scc1 M_skip5a")
                for sp in range(NSPLIT):
                    e(f"s_add_u32 s18, s13, {sp*64*18*2048 + k*4096}")
                    e(f"buffer_load_dwordx4 {vr(96+32*k+4*sp,4)}, v{vL16}, s[24:27], s18 offen sc1")
                if k == 4: e.label("M_skip5a")
            for k in range(5):
                if k == 4: e("s_cmp_ge_u32 s5, 2"); e("s_cbranch_scc1 M_skip5b")
                if k == 0: e("s_waitcnt vmcnt(0)")
                for sp in range(NSPLIT):
                    for j in range(4):
                        src = 96 + 32 * k + 4 * sp + j
                        c0 = "0" if sp == 0 else f"v{16+2*j}"; c1 = "0" if sp == 0 else f"v{17+2*j}"
                        e(f"v_dot2_f32_bf16 v{16+2*j}, v{src}, s16, {c0}"); e(f"v_dot2_f32_bf16 v{17+2*j}, v{src}, s17, {c1}")
                e("s_nop 3")
                for j in range(4): e(f"v_cvt_pk_bf16_f32 v{24+j+4*(k%2)}, v{16+2*j}, v{17+2*j}")
                e(f"s_add_u32 s18, s14, {k*4096}")
                e(f"buffer_store_dwordx4 {vr(24+4*(k%2),4)}, v{vL16}, s[24:27], s18 offen")
                if k == 4: e.label("M_skip5b")
    if TAIL:
        gen_tail(e, vL16)
    if PROF:
        e("s_waitcnt vmcnt(0)"); stamp(e, 6); stamp_rt(e, 7); stamp_flush(e, 0, 58)
    e("s_endpgm")
LOOPCHK = []
```

```python
import math, sys, os
from gen import *
import gen_mlp4
LDS_MAIN = 4 * QB + 1024

XD = [0]
def xdma(e, base):
    e("s_mov_b32 s42, 911"); e("s_mul_i32 s44, s6, 36864"); e(f"s_add_u32 s99, s44, {16*1152}"); e("s_mul_i32 s45, s5, 36864")
    t0, t1, t2, p, d = base, base + 1, base + 2, base + 3, base + 4
    e(f"v_mov_b32 v{p}, v1"); e("s_mov_b32 s43, 18")
    L = f"XD_{XD[0]}"; XD[0] += 1
    e.label(L)
    e(f"v_mul_lo_u32 v{t1}, v{p}, s42"); e(f"v_lshrrev_b32 v{t1}, 16, v{t1}")
    e(f"v_mul_u32_u24 v{t2}, 72, v{t1}"); e(f"v_sub_u32 v{t0}, v{p}, v{t2}")
    e(f"v_bfe_u32 v{t2}, v{t1}, 1, 3"); e(f"v_xor_b32 v{t0}, v{t0}, v{t2}"); e(f"v_lshlrev_b32 v{t0}, 4, v{t0}")
    e(f"v_mul_u32_u24 v{t1}, 1152, v{t1}"); e("s_mov_b32 m0, s45"); e(f"v_add_u32 v{d}, v{t0}, v{t1}")
    e(f"buffer_load_dwordx4 v{d}, s[64:67], s44 offen lds")
    e("s_add_u32 m0, s45, 18432"); e(f"v_add_u32 v{p}, 64, v{p}")
    e(f"buffer_load_dwordx4 v{d}, s[64:67], s99 offen lds")
    e("s_add_u32 s45, s45, 1024"); e("s_sub_u32 s43, s43, 1"); e("s_cmp_lg_u32 s43, 0"); e(f"s_cbranch_scc1 {L}")
def coop(e, base):
    e("s_lshr_b32 s44, s2, 3"); e("s_lshl_b32 s44, s44, 2"); e("s_add_u32 s44, s44, s5")
    e("s_and_b32 s45, s2, 1")
    e(f"v_lshlrev_b32 v{base}, 7, v1")
    e("s_mul_i32 s49, s44, 5248")
    if not int(os.environ.get("WQEARLY", "0")): e(f"buffer_load_dword v{base+1}, v{base}, s[12:15], s49 offen")
    e("s_mul_i32 s49, s44, 36"); e(f"v_add_u32 v{base+2}, s49, v1")
    e(f"v_lshrrev_b32 v{base+3}, 3, v{base+2}"); e(f"v_mul_u32_u24 v{base+3}, 9216, v{base+3}")
    e(f"v_bfe_u32 v{base}, v{base+2}, 1, 2"); e(f"v_mul_u32_u24 v{base}, 1152, v{base}"); e(f"v_add_u32 v{base+3}, v{base+3}, v{base}")
    e(f"v_and_b32 v{base}, 1, v{base+2}"); e(f"v_lshlrev_b32 v{base}, 7, v{base}"); e(f"v_add_u32 v{base+3}, v{base+3}, v{base}")
    e("s_mul_i32 s49, s45, 4608")
    e(f"buffer_load_dword v{base+4}, v{base+3}, s[28:31], s49 offen")

def xfrag_addr(e, dst, tmp):
    e(f"v_and_b32 v{tmp}, 31, v1"); e(f"v_bfe_u32 v{tmp+1}, v{tmp}, 1, 3"); e(f"v_mul_u32_u24 v{tmp}, 1152, v{tmp}")
    e("s_mul_i32 s11, s5, 36864"); e(f"v_add_u32 v{tmp}, s11, v{tmp}")
    for j in range(4):
        e(f"v_lshrrev_b32 v{dst+j}, 5, v1"); e(f"v_add_u32 v{dst+j}, {2*j}, v{dst+j}"); e(f"v_xor_b32 v{dst+j}, v{dst+j}, v{tmp+1}")
        e(f"v_lshlrev_b32 v{dst+j}, 4, v{dst+j}"); e(f"v_add_u32 v{dst+j}, v{tmp}, v{dst+j}")

def gen_attn_f(e, common):
    Q1 = lambda i: 16 + 8 * i
    Q2 = lambda i: 20 + 8 * i
    O = lambda i: 48 + 16 * i
    S = lambda b: 112 + 16 * b
    P = 144
    KV = lambda b: 152 + 16 * b
    aK1, aK2, aV = 184, 185, 186
    e.label("A_start")
    e("v_lshlrev_b32 v2, 4, v1")
    e("v_and_b32 v3, 31, v1"); e("v_lshlrev_b32 v4, 2, v3")
    e("v_lshrrev_b32 v5, 5, v1")
    e("s_mov_b32 s9, 5462")
    for j in range(3):
        e(f"v_add_u32 v131, {64*j}, v1"); e("v_mul_lo_u32 v132, v131, s9"); e("v_lshrrev_b32 v132, 16, v132")
        e("v_mul_u32_u24 v133, 12, v132"); e("v_sub_u32 v131, v131, v133"); e("v_lshlrev_b32 v131, 4, v131")
        e("v_mul_u32_u24 v132, 1152, v132"); e(f"v_add_u32 v{134+j}, v131, v132")
    xfrag_addr(e, 146, 131)
    e("v_lshlrev_b32 v131, 3, v5"); e("v_bfe_u32 v132, v1, 2, 2"); e("v_add_u32 v131, v131, v132"); e("v_mul_u32_u24 v137, 192, v131")
    e("v_bfe_u32 v131, v1, 4, 1"); e("v_lshlrev_b32 v131, 5, v131"); e("v_add_u32 v137, v137, v131")
    e("v_and_b32 v131, 3, v1"); e("v_lshlrev_b32 v131, 3, v131"); e("v_add_u32 v137, v137, v131")
    e(f"v_add_u32 v138, {288*192}, v137")
    KVL = 110592
    KVDMA = int(os.environ.get('KVDMA', '1'))
    e("v_lshlrev_b32 v150, 4, v0")
    e("s_cmp_ge_u32 s3, 2"); e("s_cbranch_scc1 A_nokv0")
    e("s_mov_b32 s9, 58255")
    for k in range(6):
        e(f"v_lshlrev_b32 v151, 2, v0"); e(f"v_add_u32 v151, {k*1024}, v151")
        e("v_mul_lo_u32 v152, v151, s9"); e("v_lshrrev_b32 v152, 19, v152")
        e("v_mul_u32_u24 v153, 9, v152"); e("v_sub_u32 v151, v151, v153")
        e("v_lshlrev_b32 v152, 6, v152"); e(f"v_add_u32 v152, {KVL}, v152")
        for j in range(4):
            e(f"v_add_u32 v153, {j}, v151"); e("v_cmp_lt_u32 vcc, 8, v153"); e("v_lshlrev_b32 v153, 2, v153")
            e(f"v_add_u32 v{232+4*k+j}, v152, v153"); e(f"v_add_u32 v153, 28, v{232+4*k+j}")
            e(f"v_cndmask_b32 v{232+4*k+j}, v{232+4*k+j}, v153, vcc")
    tr_lane_addr(e, 154, 1, 152, 153, 8); e(f"v_add_u32 v154, {KVL}, v154")
    e.label("A_nokv0")
    for c in range(3):
        e(f"s_add_u32 s9, s5, {4*c}"); e("s_mul_i32 s10, s9, 43691"); e("s_lshr_b32 s10, s10, 17")
        e("s_mul_i32 s11, s10, 3"); e("s_sub_u32 s11, s9, s11")
        e("s_cmp_eq_u32 s11, 1"); e("s_cselect_b64 vcc, -1, 0"); e(f"v_cndmask_b32 v{140+c}, v134, v135, vcc")
        e("s_cmp_eq_u32 s11, 2"); e("s_cselect_b64 vcc, -1, 0"); e(f"v_cndmask_b32 v{140+c}, v{140+c}, v136, vcc")
    common(e, True)
    e("s_mul_i32 s7, s3, 144")
    for c in range(3):
        e(f"s_add_u32 s9, s5, {4*c}"); e("s_mul_i32 s10, s9, 43691"); e("s_lshr_b32 s10, s10, 17")
        e(f"s_mul_i32 s10, s10, {16*1152}"); e(f"s_add_u32 s{50+c}, s10, s7")
    e("s_lshl_b32 s53, s5, 10")
    coop(e, 120)
    def wdma_unit(k):
        return [f"s_add_u32 m0, s53, {k*4096}", f"s_add_u32 s10, s{50+k%3}, {(k//3)*4*16*1152}", f"buffer_load_dwordx4 v{140+k%3}, s[12:15], s10 offen lds"]
    e("s_waitcnt vmcnt(%d)" % (1 if int(os.environ.get("WQEARLY", "0")) else 2))
    for s_ in range(36): e(f"ds_read_b128 {ar(4*s_,4)}, v{146+s_%4} offset:{(s_//4)*128}")
    e("s_waitcnt lgkmcnt(0)"); stamp(e, 2); e("s_barrier")
    gen_mlp4.mktag(e)
    e("s_cmp_lt_u32 s3, 2"); e("s_cbranch_scc1 A_kvjob")
    for k in range(27):
        for x in wdma_unit(k): e(x)
    e("s_branch A_nokv2")
    e.label("A_kvjob")
    for k in range(6):
        if k == 5:
            e("s_cmp_lg_u32 s5, 0"); e("s_cbranch_scc1 A_kvw5"); e("s_mov_b64 exec, 0xffff")
        for j in range(4): e(f"ds_write_b32 v{232+4*k+j}, v{208+4*k+j}")
        if k == 5:
            e("s_mov_b64 exec, -1"); e.label("A_kvw5")
    e("s_waitcnt lgkmcnt(0)"); e("s_barrier")
    AP = int(os.environ.get("APROF", "0"))
    if AP == 2: stamp(e, 3)
    RSK = [156, 160, 164, 168, 172, 176]
    def rdk(s_):
        d = RSK[s_ % 6]
        e(f"ds_read_b64_tr_b16 {vr(d,2)}, v154 offset:{s_*1024}"); e(f"ds_read_b64_tr_b16 {vr(d+2,2)}, v154 offset:{s_*1024+256}")
    DK = 180; PKK = 196
    e("v_mov_b32 v207, 0")
    e("s_lshr_b32 s49, s6, 4"); e(f"s_mul_i32 s49, s49, {QB}"); e(f"s_add_u32 s49, s49, {WS_K1}"); e("s_and_b32 s45, s6, 15")
    e("s_cmp_eq_u32 s3, 1"); e("s_cbranch_scc1 A_V")
    for variant in ("K", "V"):
        if variant == "V": e.label("A_V")
        for s_ in range(5): rdk(s_)
        for s_ in range(36):
            e(f"s_waitcnt lgkmcnt({2*(min(35, s_+4)-s_)})")
            c0 = "0" if s_ == 0 else vr(DK,16)
            w_ = vr(RSK[s_%6],4); xx = ar(4*s_,4)
            e(f"v_mfma_f32_32x32x16_bf16 {vr(DK,16)}, {w_ if variant=='K' else xx}, {xx if variant=='K' else w_}, {c0}")
            if s_ + 5 < 36: rdk(s_ + 5)
            if s_ < 27 and KVDMA:
                for x in wdma_unit(s_): e(x)
        e("s_nop 7"); e("s_nop 3")
        if AP == 2: stamp(e, 4)
        if variant == "K":
            for i in range(5): e(f"v_cvt_pk_bf16_f32 v{PKK+i}, v{DK+2*i}, v{DK+2*i+1}")
            e("s_lshl_b32 s53, s45, 10"); e("s_add_u32 s53, s53, s49")
            e(f"buffer_store_dwordx4 {vr(PKK,4)}, v2, s[24:27], s53 offen sc1")
            e("s_lshl_b32 s53, s45, 7"); e("s_add_u32 s53, s53, s49"); e(f"s_add_u32 s53, s53, {KV_K2}")
            e("s_mov_b32 exec_hi, 0"); e(f"buffer_store_dword v{PKK+4}, v4, s[24:27], s53 offen sc1"); e("s_mov_b32 exec_hi, -1")
            e("v_cmp_gt_u32 vcc, 32, v1"); e("s_nop 1")
            e(f"v_cndmask_b32 v204, 0, v{PKK+4}, vcc"); e("v_mov_b32 v205, 0")
            for i in range(4): e(f"v_dot2_f32_bf16 v205, v{PKK+i}, v{PKK+i}, v205")
            e("v_dot2_f32_bf16 v205, v204, v204, v205")
            e("s_nop 3"); e("v_mov_b32 v206, v205"); e("s_nop 1"); e("v_permlane32_swap_b32 v205, v206"); e("s_nop 1"); e("v_add_f32 v205, v205, v206")
            for dpp in ("quad_perm:[1,0,3,2]", "quad_perm:[2,3,0,1]", "row_half_mirror", "row_mirror"):
                e("s_nop 1"); e(f"v_max_f32_dpp v205, v205, v205 {dpp} row_mask:0xf bank_mask:0xf")
            e("ds_swizzle_b32 v206, v205 offset:0x401F"); e("s_waitcnt lgkmcnt(0)"); e("v_max_f32 v205, v205, v206")
            e("s_lshl_b32 s53, s6, 2"); e(f"s_add_u32 s53, s53, {WS_KN}"); e("v_mov_b32 v206, 0")
            e("s_mov_b64 exec, 1"); e(f"buffer_store_dword v205, v206, s[24:27], s53 offen sc1"); e("s_mov_b64 exec, -1")
            e("s_branch A_kvpub")
        else:
            for i in range(8): e(f"v_cvt_pk_bf16_f32 v{PKK+i}, v{DK+2*i}, v{DK+2*i+1}")
            e("v_cmp_eq_u32 vcc, 18, v3"); e("v_mov_b32 v204, 0x3f803f80"); e("s_nop 0")
            for i in range(8): e(f"v_cndmask_b32 v{PKK+i}, v{PKK+i}, v204, vcc")
            e("v_cmp_eq_u32 vcc, 19, v3"); e("s_nop 1")
            for i in range(8): e(f"v_cndmask_b32 v{PKK+i}, v{PKK+i}, v207, vcc")
            e(f"v_mul_u32_u24 v205, {VP}, v3"); e("v_lshlrev_b32 v206, 4, v5"); e("v_add_u32 v205, v205, v206")
            e("s_lshl_b32 s53, s45, 6"); e("s_add_u32 s53, s53, s49"); e(f"s_add_u32 s53, s53, {KV_V}")
            e("v_cmp_gt_u32 vcc, 20, v3"); e("s_and_saveexec_b64 s[54:55], vcc")
            e(f"buffer_store_dwordx4 {vr(PKK,4)}, v205, s[24:27], s53 offen sc1")
            e(f"buffer_store_dwordx4 {vr(PKK+4,4)}, v205, s[24:27], s53 offen offset:32 sc1")
            e("s_mov_b64 exec, s[54:55]")
    e.label("A_kvpub")
    if not KVDMA:
        e("s_lshl_b32 s53, s5, 10")
        NST = 27
        for k in range(27):
            for x in wdma_unit(k): e(x)
        e("s_waitcnt vmcnt(27)"); e("s_barrier")
        e("s_cmp_lg_u32 s5, 0"); e("s_cbranch_scc1 A_nokv2")
        e("s_lshl_b32 s9, s4, 1"); e("s_add_u32 s9, s9, s3"); e("s_lshl_b32 s9, s9, 2"); e(f"s_add_u32 s9, s9, {WS_KVFLAG}")
        e("v_mbcnt_lo_u32_b32 v204, -1, 0"); e("v_lshlrev_b32 v204, 7, v204"); e(f"v_mov_b32 v205, s{gen_mlp4.TAGR}")
        e("s_mov_b64 exec, 0xff")
        e("buffer_store_dword v205, v204, s[24:27], s9 offen sc1")
        e("s_mov_b64 exec, -1")
        e("s_branch A_nokv2")
    e("s_waitcnt vmcnt(0)")
    if AP == 2: stamp(e, 5)
    e("s_barrier")
    e("s_cmp_lg_u32 s5, 0"); e("s_cbranch_scc1 A_nokv2")
    e("s_lshl_b32 s9, s4, 1"); e("s_add_u32 s9, s9, s3"); e("s_lshl_b32 s9, s9, 2"); e(f"s_add_u32 s9, s9, {WS_KVFLAG}")
    e("v_mbcnt_lo_u32_b32 v204, -1, 0"); e("v_lshlrev_b32 v204, 7, v204"); e(f"v_mov_b32 v205, s{gen_mlp4.TAGR}")
    e("s_mov_b64 exec, 0xff")
    e("buffer_store_dword v205, v204, s[24:27], s9 offen sc1")
    e("s_mov_b64 exec, -1")
    if AP == 2:
        e("s_waitcnt vmcnt(0)"); stamp(e, 6); stamp_rt(e, 7); stamp_flush(e, 0, 58)
    e.label("A_nokv2")
    AP = int(os.environ.get("APROF", "0"))
    e("s_waitcnt vmcnt(18)")
    if AP == 1: stamp(e, 3)
    if AP == 2: e("s_endpgm")
    e("s_barrier")
    OFS = [0, 32, 72, 104]
    def wrd(gk):
        s_, hh = gk // 4, gk % 4
        d = 144 + 4 * (gk % 8)
        a_ = 137 if s_ < 18 else 138
        o = (s_ % 18) * 3072 + OFS[hh]
        e(f"ds_read_b64_tr_b16 {ar(d,2)}, v{a_} offset:{o}"); e(f"ds_read_b64_tr_b16 {ar(d+2,2)}, v{a_} offset:{o+768}")
    for gk in range(6): wrd(gk)
    for gk in range(144):
        s_, hh = gk // 4, gk % 4
        if gk % 2 == 0: e(f"s_waitcnt lgkmcnt({2*max(0, min(143, gk+5) - (gk+1))})")
        c0 = "0" if s_ == 0 else vr(O(hh),16)
        e(f"v_mfma_f32_32x32x16_bf16 {vr(O(hh),16)}, {ar(144+4*(gk%8),4)}, {ar(4*s_,4)}, {c0}")
        if gk + 6 == 48: e("s_waitcnt vmcnt(9)"); e("s_barrier")
        if gk + 6 == 96: e("s_waitcnt vmcnt(0)"); e("s_barrier")
        if gk + 6 < 144: wrd(gk + 6)
        if gk == int(os.environ.get('A_POLL', '123')):
            if AP == 1: e("s_waitcnt lgkmcnt(0)"); stamp(e, 4)
            e("s_and_b32 s57, s2, 7"); e("s_lshl_b32 s57, s57, 7"); e(f"s_add_u32 s57, s57, {WS_KVFLAG}")
            gen_mlp4.poll_flags(e, "A_kv", 0xffffffff, 120)
            if AP == 1: stamp(e, 5)
            e("v_lshlrev_b32 v6, 2, v1"); e(f"s_mov_b32 s11, {WS_KN}")
            e("buffer_load_dword v7, v6, s[24:27], s11 offen")
            e("s_lshl_b32 s18, s5, 10")
            for k in range(10):
                e(f"s_add_u32 m0, s18, {3*QB + k*4096}"); e(f"s_add_u32 s7, s18, {WS_K1 + k*4096}")
                e("buffer_load_dwordx4 v2, s[24:27], s7 offen lds")
    e("s_nop 7"); e("s_nop 3")
    e("v_cmp_gt_u32 vcc, 32, v1"); e("s_nop 1"); e("s_mov_b64 s[12:13], vcc")
    e(f"s_mov_b32 s9, {hexf(QSCALE)}")
    for i in range(4):
        Dq = O(i); odd = i % 2
        nr = 12 if odd else 10
        for r in range(nr): e(f"v_mul_f32 v{Dq+r}, s9, v{Dq+r}")
        PKq = 112
        for k in range(nr // 2): e(f"v_cvt_pk_bf16_f32 v{PKq+k}, v{Dq+2*k}, v{Dq+2*k+1}")
        if not odd:
            for k in range(4): e(f"v_mov_b32 v{Q1(i)+k}, v{PKq+k}")
            e(f"v_mov_b32 v{Q2(i)}, v{PKq+4}")
        else:
            e(f"v_mov_b32 v{Q1(i)}, v{PKq+1}"); e(f"v_mov_b32 v{Q1(i)+2}, v{PKq+3}"); e(f"v_mov_b32 v{Q2(i)}, v{PKq+5}")
            for (src_a, src_b, dst) in ((0, 2, 1), (2, 4, 3)):
                e(f"v_mov_b32 v120, v{PKq+src_a}"); e(f"v_mov_b32 v121, v{PKq+src_b}"); e("s_nop 1")
                e("v_permlane32_swap_b32 v120, v121"); e("s_nop 1")
                e(f"v_cndmask_b32 v{Q1(i)+dst}, v120, v121, s[12:13]")
    if not AP: stamp(e, 3)
    e("s_barrier")
    n0 = 10
    def emit_stage(lst, name):
        e("s_lshl_b32 s18, s5, 10")
        for k in range(30):
            if k == 29: e("s_cmp_lg_u32 s5, 0"); e(f"s_cbranch_scc1 {name}_x")
            e(f"s_add_u32 m0, s18, {k*4096}"); e(f"s_add_u32 s7, s18, {WS_K1 + QB + k*4096}")
            e("buffer_load_dwordx4 v2, s[24:27], s7 offen lds")
        e.label(f"{name}_x")
    st1 = None
    DEFER = int(os.environ.get("A_DEFER", "1"))
    def wpf():
        e("s_lshl_b32 s16, s4, 3"); e("s_add_u32 s16, s16, s3"); e("s_lshl_b32 s16, s16, 2"); e("s_add_u32 s16, s16, s5")
        e("v_lshlrev_b32 v201, 7, v1")
        e("s_lshl_b32 s17, s16, 13")
        e(f"s_add_u32 s18, s17, {512*8192}")
        e("buffer_load_dword v204, v201, s[28:31], s17 offen")
        e("buffer_load_dword v205, v201, s[28:31], s18 offen")
        e("buffer_load_dword v206, v201, s[32:35], s17 offen")
        e("buffer_load_dword v207, v201, s[32:35], s18 offen")
        e("s_load_dwordx2 s[8:9], s[0:1], 32"); e("s_waitcnt lgkmcnt(0)")
        e("s_and_b32 s9, s9, 0xffff"); e("s_mov_b32 s10, 663552"); e("s_mov_b32 s11, 0x20000")
        e("buffer_load_dword v203, v201, s[8:11], s17 offen")
    if DEFER: n1 = 0; NPF = 0
    else:
        n1 = emit_stage(st1, "A_s1"); wpf(); NPF = 4
    for b in range(2):
        e(f"v_mov_b32 v{KV(b)+5}, 0x3f803f80"); e(f"v_mov_b32 v{KV(b)+6}, 0"); e(f"v_mov_b32 v{KV(b)+7}, 0")
    e(f"s_waitcnt vmcnt({n0 + n1 + NPF})")
    for dpp in ("quad_perm:[1,0,3,2]", "quad_perm:[2,3,0,1]", "row_half_mirror", "row_mirror"):
        e("s_nop 1"); e(f"v_max_f32_dpp v7, v7, v7 {dpp} row_mask:0xf bank_mask:0xf")
    e("ds_swizzle_b32 v8, v7 offset:0x401F"); e("s_waitcnt lgkmcnt(0)"); e("v_max_f32 v7, v7, v8")
    e("v_mov_b32 v8, v7"); e("s_nop 1"); e("v_permlane32_swap_b32 v7, v8"); e("s_nop 1"); e("v_max_f32 v7, v7, v8")
    e("v_cmp_gt_u32 vcc, 32, v1")
    e("s_mov_b64 s[12:13], vcc")
    for i in range(4):
        e(f"v_cndmask_b32 v{Q2(i)}, 0, v{Q2(i)}, s[12:13]")
        e("v_mov_b32 v8, 0")
        for k in range(4): e(f"v_dot2_f32_bf16 v8, v{Q1(i)+k}, v{Q1(i)+k}, v8")
        e(f"v_dot2_f32_bf16 v8, v{Q2(i)}, v{Q2(i)}, v8")
        e("s_nop 3"); e("v_mov_b32 v9, v8"); e("s_nop 1"); e("v_permlane32_swap_b32 v8, v9"); e("s_nop 1"); e("v_add_f32 v8, v8, v9")
        e("v_mul_f32 v8, v8, v7"); e("v_sqrt_f32 v8, v8"); e("s_nop 0")
        e(f"v_mul_f32 v8, {hexf(-1.001)}, v8")
        e(f"v_cvt_pk_bf16_f32 v9, v8, v8"); e("v_lshlrev_b32 v9, 16, v9"); e("v_sub_f32 v9, v8, v9")
        e(f"v_cvt_pk_bf16_f32 v9, v8, v9")
        e(f"v_cndmask_b32 v{Q2(i)+1}, 0, v9, s[12:13]")
        e(f"v_mov_b32 v{Q2(i)+2}, 0"); e(f"v_mov_b32 v{Q2(i)+3}, 0")
    e("s_mov_b32 s14, 0")
    e(f"s_waitcnt vmcnt({n1 + NPF}) lgkmcnt(0)")
    e("s_barrier")
    if AP == 1:
        stamp(e, 6); stamp_rt(e, 7); stamp_flush(e, 0, 58); e("s_endpgm")
    stamp(e, 4)
    inloop = [False]
    e.label("A_run")
    for i in range(4):
        for r in range(16): e(f"v_mov_b32 v{O(i)+r}, 0")
    for r in range(8): e(f"v_mov_b32 v{P+r}, 0")
    for r in range(4): e(f"v_mov_b32 v{KV(1)+12+r}, 0")
    e(f"v_add_u32 v{aK1}, {3*QB}, v2"); e(f"v_add_u32 v{aK2}, {3*QB + KV_K2}, v4")
    e(f"v_min_u32 v8, 19, v3"); e(f"v_mul_u32_u24 v8, {VP}, v8"); e("v_lshlrev_b32 v9, 4, v5"); e("v_add_u32 v8, v8, v9")
    e(f"v_add_u32 v{aV}, {3*QB + KV_V}, v8")
    A_NOLDS = int(os.environ.get("A_NOLDS", "0"))
    def ldK(b, joff):
        if A_NOLDS and inloop[0]: return
        e(f"ds_read_b128 {vr(KV(b),4)}, v{aK1} offset:{joff*1024}")
        e(f"ds_read_b32 v{KV(b)+4}, v{aK2} offset:{joff*128}")
    def ldV(b, joff):
        if A_NOLDS and inloop[0]: return
        e(f"ds_read_b128 {vr(KV(b)+8,4)}, v{aV} offset:{joff*64}")
        e(f"ds_read_b128 {vr(KV(b)+12,4)}, v{aV} offset:{joff*64+32}")
    def qk1(sb, b, i): return f"v_mfma_f32_32x32x16_bf16 {vr(S(sb),16)}, {vr(KV(b),4)}, {vr(Q1(i),4)}, 0"
    def qk2(sb, b, i): return f"v_mfma_f32_32x32x16_bf16 {vr(S(sb),16)}, {vr(KV(b)+4,4)}, {vr(Q2(i),4)}, {vr(S(sb),16)}"
    def pv(i, b, m): return f"v_mfma_f32_32x32x16_bf16 {vr(O(i),16)}, {vr(KV(b)+8+4*m,4)}, {vr(P+4*m,4)}, {vr(O(i),16)}"
    ldK(0, 0); ldV(0, 0)
    e("s_waitcnt lgkmcnt(0)")
    e(qk1(0, 0, 0)); e(qk2(0, 0, 0))
    e("s_nop 7"); e("s_nop 3")
    UN = 4
    NIT = 64 // UN
    e(f"s_mov_b32 s15, {NIT}")
    e("s_cmp_eq_u32 s14, 0"); e("s_cselect_b32 s20, -1, 0")
    if DEFER:
        e("s_cmp_lg_u32 s14, 0"); e("s_cbranch_scc1 A_nodef")
        emit_stage(st1, "A_s1"); wpf()
        e.label("A_nodef")
    e.label("A_loop")
    inloop[0] = True
    side = {}
    def put(slot, *ins): side.setdefault(slot, []).extend(ins)
    sc = ["s_and_b32 s19, s15, s20", f"s_mov_b32 s9, {QB}", "s_cmp_eq_u32 s15, 13", f"s_cselect_b32 s9, {(-3*QB) & 0xffffffff}, s9",
          f"s_sub_u32 s21, s9, {12*1024}", f"s_sub_u32 s22, s9, {12*128}", f"s_sub_u32 s23, s9, {12*64}", "s_and_b32 s9, s15, 3", "s_cmp_eq_u32 s9, 1",
          "s_cselect_b32 s21, s21, 4096", "s_cselect_b32 s22, s22, 512", "s_cselect_b32 s23, s23, 256"]
    free = [sl for sl in range(0, 48) if (sl // 4) % 4 in (0, 3) and not ((sl // 4) % 4 == 0 and sl % 4 == 2)]
    for k, x in enumerate(sc): put(free[k], x)
    for jj in range(UN):
        b = jj % 2; last = jj == UN - 1
        joff = 0 if last else jj + 1
        s1 = 4 * (4 * jj + 1); s2 = 4 * (4 * jj + 2)
        if last:
            put(s1 + 0, f"s_cmp_lg_u32 s19, {NIT - (16 // UN) + 1}")
            put(s1 + 1, "s_cbranch_scc1 A_nost", "s_waitcnt vmcnt(0)", "s_barrier", "A_nost:", f"v_add_u32 v{aK1}, s21, v{aK1}", f"v_add_u32 v{aK2}, s22, v{aK2}")
        put(s1 + 2, f"ds_read_b128 {vr(KV(1-b),4)}, v{aK1} offset:{joff*1024}")
        put(s1 + 3, f"ds_read_b32 v{KV(1-b)+4}, v{aK2} offset:{joff*128}")
        if last: put(s2 + 0, f"v_add_u32 v{aV}, s23, v{aV}")
        put(s2 + 0, f"ds_read_b128 {vr(KV(1-b)+8,4)}, v{aV} offset:{joff*64}")
        put(s2 + 1, f"ds_read_b128 {vr(KV(1-b)+12,4)}, v{aV} offset:{joff*64+32}")
        put(s2 + 3, "s_waitcnt lgkmcnt(2)")
        put(4 * (4 * jj + 3) + 3, "s_waitcnt lgkmcnt(0)")
    put(61, "s_sub_u32 s15, s15, 1"); put(62, "s_cmp_lg_u32 s15, 0")
    def S_(slot):
        for x in side.get(slot, []):
            if x.endswith(":"): e.label(x[:-1])
            else: e(x)
    for jj in range(UN):
        b = jj % 2
        for i in range(4):
            n = jj * 4 + i
            sb = n % 2
            i2 = (i + 1) % 4; b2 = b if i < 3 else 1 - b
            ip = (i - 1) % 4; bp = b if i > 0 else 1 - b
            def E(r): e(f"v_exp_f32 v{S(sb)+r}, v{S(sb)+r}")
            def C(k): e(f"v_cvt_pk_bf16_f32 v{P+k}, v{S(sb)+2*k}, v{S(sb)+2*k+1}")
            e(qk1(1 - sb, b2, i2)); S_(4 * n + 0)
            E(0); E(1); E(2); E(3)
            e(qk2(1 - sb, b2, i2)); S_(4 * n + 1)
            E(4); E(5); E(6); E(7); C(0); C(1)
            e(pv(ip, bp, 1)); S_(4 * n + 2)
            E(8); E(9); E(10); E(11); C(2); C(3); E(12); E(13)
            e(pv(i, b, 0)); S_(4 * n + 3)
            E(14); E(15); C(4); C(5); C(6); C(7)
    e("s_cbranch_scc1 A_loop")
    inloop[0] = False
    e("s_nop 1")
    e(pv(3, 1, 1))
    e("s_nop 7"); e("s_nop 3")
    e("s_cmp_lg_u32 s14, 0"); e("s_cbranch_scc1 A_fin")
    e(f"v_mov_b32 v10, {hexf(2.0**-40)}")
    e("s_mov_b64 s[16:17], 0")
    for i in range(4):
        e(f"v_cmp_nge_f32 vcc, v{O(i)+10}, v10"); e("s_nop 1"); e("s_or_b64 s[16:17], s[16:17], vcc")
    e("s_and_b32 s16, s16, -1")
    e("s_cbranch_scc0 A_fin")
    e("s_mov_b32 s14, 1")
    for i in range(4):
        e(f"v_mov_b32 v{Q2(i)+1}, 0"); e(f"v_mov_b32 v{O(i)}, 0xff800000")
    e("s_mov_b32 s15, 0")
    e.label("A_max")
    e("s_lshr_b32 s9, s15, 4"); e(f"s_mul_i32 s9, s9, {QB}"); e("s_and_b32 s10, s15, 15")
    e("s_lshl_b32 s11, s10, 10"); e("s_add_u32 s11, s11, s9"); e(f"v_add_u32 v{aK1}, s11, v2")
    e("s_lshl_b32 s11, s10, 7"); e("s_add_u32 s11, s11, s9"); e(f"s_add_u32 s11, s11, {KV_K2}"); e(f"v_add_u32 v{aK2}, s11, v4")
    ldK(0, 0); e("s_waitcnt lgkmcnt(0)")
    for i in range(4):
        e(qk1(0, 0, i)); e(qk2(0, 0, i)); e("s_nop 7"); e("s_nop 3")
        for r in range(0, 16, 2): e(f"v_max3_f32 v{O(i)}, v{S(0)+r}, v{S(0)+r+1}, v{O(i)}")
    e("s_add_u32 s15, s15, 1"); e("s_cmp_lg_u32 s15, 64"); e("s_cbranch_scc1 A_max")
    for i in range(4):
        e(f"v_mov_b32 v8, v{O(i)}"); e(f"v_mov_b32 v9, v{O(i)}"); e("s_nop 1"); e("v_permlane32_swap_b32 v8, v9"); e("s_nop 1")
        e("v_max_f32 v8, v8, v9"); e("v_sub_f32 v8, 0, v8")
        e(f"v_cvt_pk_bf16_f32 v9, v8, v8"); e("v_lshlrev_b32 v9, 16, v9"); e("v_sub_f32 v9, v8, v9")
        e(f"v_cvt_pk_bf16_f32 v9, v8, v9")
        e(f"v_cndmask_b32 v{Q2(i)+1}, 0, v9, s[12:13]")
    e("s_branch A_run")
    e.label("A_fin")
    stamp(e, 5)
    e("s_lshl_b32 s8, s6, 5"); e("s_lshl_b32 s9, s3, 2"); e("s_add_u32 s8, s8, s9"); e("s_lshl_b32 s8, s8, 10"); e(f"s_add_u32 s8, s8, {WS_O1}")
    e("s_lshl_b32 s9, s6, 12"); e("s_lshr_b32 s10, s3, 1"); e("s_lshl_b32 s10, s10, 10"); e("s_add_u32 s9, s9, s10")
    e("s_and_b32 s10, s3, 1"); e("s_lshl_b32 s10, s10, 9"); e("s_add_u32 s9, s9, s10"); e(f"s_add_u32 s9, s9, {WS_O2}")
    e("v_lshlrev_b32 v10, 4, v3")
    for i in range(4):
        e(f"v_mov_b32 v8, v{O(i)+10}"); e(f"v_mov_b32 v9, v{O(i)+10}"); e("s_nop 1"); e("v_permlane32_swap_b32 v8, v9"); e("s_nop 1")
        e("v_rcp_f32 v8, v8"); e("s_nop 0")
        for r in range(10): e(f"v_mul_f32 v{O(i)+r}, v8, v{O(i)+r}")
        for k in range(5): e(f"v_cvt_pk_bf16_f32 v{188+k}, v{O(i)+2*k}, v{O(i)+2*k+1}")
        e(f"buffer_store_dwordx4 {vr(188,4)}, v2, s[24:27], s8 offen offset:{i*1024}" + (" sc1" if gen_mlp4.TAIL else ""))
        e("s_mov_b32 exec_hi, 0")
        e(f"buffer_store_dword v192, v10, s[24:27], s9 offen offset:{i*4}" + (" sc1" if gen_mlp4.TAIL else ""))
        e("s_mov_b32 exec_hi, -1")
        e("s_nop 1")
    if gen_mlp4.TAIL:
        e("s_waitcnt vmcnt(0)"); e("s_barrier")
        e("s_cmp_lg_u32 s5, 0"); e("s_cbranch_scc1 A_nf")
        e("s_lshl_b32 s9, s4, 7"); e("s_lshl_b32 s10, s3, 2"); e("s_add_u32 s9, s9, s10"); e(f"s_add_u32 s9, s9, {WS_FLAG + 64}")
        gen_mlp4.set_flag(e, 9, 8)
        e.label("A_nf")
        gen_mlp4.arrive(e, 8)
    if PROF:
        e("s_waitcnt vmcnt(0)"); stamp(e, 6); stamp_rt(e, 7); stamp_flush(e, 0, 58)
    e("s_endpgm")


def gen_fusedK(e, roles):
    K = "main_kernel"
    kernel_head(e, K)
    e("s_cmp_ge_u32 s2, 256"); e("s_cbranch_scc1 MK_end")
    stamp_rt(e, 0); stamp(e, 1)
    if int(os.environ.get("CODEPF", "1")):
        e("s_getpc_b64 s[68:69]")
        e.label("MK_pc")
        e("v_lshrrev_b32 v126, 6, v0"); e("s_lshr_b32 s7, s2, 3"); e("s_lshl_b32 s7, s7, 2"); e("v_add_u32 v126, s7, v126")
        e("v_lshlrev_b32 v126, 3, v126"); e("v_and_b32 v127, 7, v0"); e("v_add_u32 v126, v126, v127"); e("v_lshlrev_b32 v126, 7, v126")
        e("v_and_b32 v127, 63, v0"); e("v_cmp_gt_u32 vcc, 8, v127"); e("s_nop 3"); e("s_mov_b64 s[8:9], vcc")
        e("s_mov_b32 s7, MK_codeend-MK_pc"); e("v_cmp_gt_u32 vcc, s7, v126"); e("s_nop 3"); e("s_and_b64 vcc, vcc, s[8:9]")
        e("s_and_saveexec_b64 s[8:9], vcc"); e("s_cbranch_execz MK_nopf")
        e("global_load_dword v128, v126, s[68:69]")
        e.label("MK_nopf")
        e("s_mov_b64 exec, s[8:9]")
    e("s_load_dwordx4 s[40:43], s[0:1], 0")
    e("s_load_dwordx4 s[56:59], s[0:1], 96")
    e("s_load_dwordx4 s[44:47], s[0:1], 16")
    e("s_load_dwordx4 s[52:55], s[0:1], 48")
    e("s_load_dwordx2 s[50:51], s[0:1], 64")
    e("s_load_dwordx2 s[48:49], s[0:1], 80")
    e("s_and_b32 s3, s2, 7"); e("s_lshr_b32 s4, s2, 3")
    e("v_lshrrev_b32 v2, 6, v0"); e("v_and_b32 v1, 63, v0"); e("s_nop 0"); e("v_readfirstlane_b32 s5, v2")
    e("s_cmp_ge_u32 s4, 16"); e("s_cbranch_scc1 MK_ida")
    e("s_lshr_b32 s6, s3, 1"); e("s_and_b32 s7, s3, 1"); e("s_and_b32 s8, s4, 3"); e("s_lshr_b32 s9, s4, 2")
    e("s_lshl_b32 s6, s6, 2"); e("s_add_u32 s4, s6, s8"); e("s_lshl_b32 s7, s7, 2"); e("s_add_u32 s3, s7, s9")
    e("s_branch MK_idd")
    e.label("MK_ida")
    e("s_sub_u32 s4, s4, 16")
    e("s_lshl_b32 s6, s3, 1"); e("s_and_b32 s7, s4, 1"); e("s_lshr_b32 s3, s4, 1"); e("s_add_u32 s4, s6, s7")
    e.label("MK_idd")
    e("s_lshl_b32 s6, s4, 2"); e("s_add_u32 s6, s6, s5")
    def common(e, attn):
        e("s_waitcnt lgkmcnt(0)")
        AP3 = int(os.environ.get("APROF", "0")) == 3
        if AP3: stamp(e, 2)
        srd(e, 64, 40, 2048 * 1152)
        if int(os.environ.get("COOPX", "1")):
            e("s_lshr_b32 s7, s2, 3"); e("s_lshl_b32 s7, s7, 2"); e("s_add_u32 s7, s7, s5")
            e("s_and_b32 s8, s2, 7"); e("s_lshr_b32 s9, s8, 1")
            e("v_lshlrev_b32 v118, 7, v1")
            e("s_mul_i32 s10, s7, 4608"); e("s_mul_i32 s11, s9, 589824"); e("s_add_u32 s10, s10, s11")
            e("s_mov_b32 exec_hi, 15")
            e("buffer_load_dword v119, v118, s[64:67], s10 offen")
            e("s_mov_b32 exec_hi, -1")
        e("s_mov_b64 s[94:95], s[42:43]")
        if int(os.environ.get("WQEARLY", "0")):
            srd(e, 12, 94, 576 * 1152)
            e("s_lshr_b32 s7, s2, 3"); e("s_lshl_b32 s7, s7, 2"); e("s_add_u32 s7, s7, s5"); e("s_mul_i32 s10, s7, 5248")
            e("v_lshlrev_b32 v117, 7, v1")
            e("s_mov_b32 exec_hi, 0x1ff")
            e("buffer_load_dword v129, v117, s[12:15], s10 offen")
            e("s_mov_b32 exec_hi, -1")
        if attn:
            e("s_cmp_eq_u32 s3, 0"); e("s_cselect_b32 s92, s44, s46"); e("s_cselect_b32 s93, s45, s47")
            srd(e, 16, 92, 576 * 36)
            e("s_cmp_ge_u32 s3, 2"); e("s_cbranch_scc1 A_nokv1")
            for k in range(6):
                e(f"s_mov_b32 s9, {k*4096}"); e(f"buffer_load_dwordx4 {vr(208+4*k,4)}, v150, s[16:19], s9 offen")
            e.label("A_nokv1")
        xdma(e, 112)
        if AP3:
            stamp(e, 3); e("s_waitcnt vmcnt(30)"); stamp(e, 4); e("s_waitcnt vmcnt(0)"); stamp(e, 5); stamp(e, 6); stamp_rt(e, 7); stamp_flush(e, 0, 58); e("s_endpgm")
        e(f"s_add_u32 s96, s58, {WS_EPOCH}"); e("s_addc_u32 s97, s59, 0")
        e("s_load_dword s98, s[96:97], 0")
        srd(e, 24, 58, WS_END); srd(e, 28, 52, 576 * 9216); srd(e, 32, 50, 4608 * 1152); srd(e, 36, 54, 9216); srd(e, 60, 56, 256)
        srd(e, 12, 94, 576 * 1152)
        if not attn: srd(e, 20, 48, 1152)
    e("s_lshr_b32 s7, s2, 3"); e("s_cmp_ge_u32 s7, 16")
    if roles == "attn": e("s_cbranch_scc0 MK_end"); e("s_branch A_start")
    elif roles == "mlp": e("s_cbranch_scc1 MK_end")
    else: e("s_cbranch_scc1 A_start")
    gen_mlp4.gen_mlp4(e, common, xfrag_addr, coop)
    gen_attn_f(e, common)
    e.label("MK_end"); e("s_endpgm")
    e.label("MK_codeend")
    return kernel_desc(K, 512, 100, 256)
def add(body, descs, launches, which):
    roles = "both"
    if which in ("attn", "mlp"): roles = which
    descs.append(gen_fusedK(body, roles)); launches.append(f"; @launch kernel=main_kernel grid=(256,1,1) block=(256,1,1) lds={LDS_MAIN}")
    if not gen_mlp4.TAIL:
        import gen_final
        gen_final.add(body, descs, launches)
```

```python
import os, math
from gen import *
X_NODMA = int(os.environ.get("X_NODMA", "0")); X_NOGELU = int(os.environ.get("X_NOGELU", "0"))
ST_SC1 = " sc1" if int(os.environ.get("ST_SC1", "1")) else ""
PRERED = int(os.environ.get('PRERED', '1'))
SLOT = [0, 36864, 73728, 110592]; BIAS = 147456

TAIL = int(os.environ.get('TAIL', '1'))
INMODE = 3 if TAIL else 0
INRED = False
INPUB = bool(TAIL)
RCL = []
NEXTRA = [0]
MP2 = int(os.environ.get('MPROF2', '0'))
OUTSC = os.environ.get('OUTSC', '')
WS_DUMMY = WS_FLAG - 0x1000
TAGR = 98

def poll_flags(e, name, lo_mask, vtmp, sreg=57, cmp=None, inv=True):
    e("s_cmp_lg_u32 s5, 0"); e(f"s_cbranch_scc1 {name}_w")
    e("v_mbcnt_lo_u32_b32 v{0}, -1, 0".format(vtmp)); e(f"v_lshlrev_b32 v{vtmp}, 2, v{vtmp}")
    e(f"s_mov_b32 exec_lo, {hex(lo_mask)}"); e("s_mov_b32 exec_hi, 0")
    e.label(f"{name}_p")
    e(f"buffer_load_dword v{vtmp+1}, v{vtmp}, s[24:27], s{sreg} offen sc1")
    e("s_waitcnt vmcnt(0)")
    e(f"v_cmp_ne_u32 vcc, s{cmp or TAGR}, v{vtmp+1}"); e("s_nop 7")
    e(f"s_cbranch_vccz {name}_d")
    e("s_sleep 4"); e(f"s_branch {name}_p")
    e.label(f"{name}_d")
    e("s_mov_b64 exec, -1")
    if inv: e("buffer_inv sc1"); e("s_waitcnt vmcnt(0)")
    e.label(f"{name}_w")
    e("s_barrier")
def set_flag(e, word_sreg_expr, vtmp):
    e("s_mov_b64 exec, 1"); e(f"v_mov_b32 v{vtmp}, 0"); e(f"v_mov_b32 v{vtmp+1}, s{TAGR}")
    e(f"buffer_store_dword v{vtmp+1}, v{vtmp}, s[24:27], s{word_sreg_expr} offen sc1")
    e("s_mov_b64 exec, -1")

def mktag(e):
    e(f"s_add_u32 s{TAGR}, s{TAGR}, 1")
def arrive(e, vt):
    e("s_mov_b64 s[94:95], exec")
    e("s_cmp_eq_u32 s5, 0"); e("s_cselect_b64 exec, 1, 0")
    e(f"v_mov_b32 v{vt}, 0"); e(f"v_mov_b32 v{vt+1}, 1")
    e("s_cbranch_execz L_arr%d" % len(ARR));
    e(f"buffer_atomic_add v{vt+1}, v{vt}, s[60:63], 0 offen offset:4")
    e.label("L_arr%d" % len(ARR)); ARR.append(1)
    e("s_mov_b64 exec, s[94:95]")
ARR = []
def gen_tail(e, vL16):
    SPL = 64 * 18 * 2048
    e("s_load_dwordx2 s[42:43], s[0:1], 72"); e("s_load_dwordx2 s[92:93], s[0:1], 88")
    e("s_waitcnt vmcnt(0) lgkmcnt(0)"); e("s_barrier")
    srd(e, 20, 42, 1152); srd(e, 12, 92, 2048 * 1152)
    e("s_add_u32 s96, s97, 9")
    e("s_cmp_lg_u32 s5, 0"); e("s_cbranch_scc1 T_nf1")
    e("s_mov_b64 exec, 1"); e("v_mov_b32 v13, 0"); e("v_mov_b32 v14, s96")
    e("buffer_store_dword v14, v13, s[24:27], s99 offen sc1")
    e("s_mov_b64 exec, -1")
    e.label("T_nf1")
    arrive(e, 13)
    e("v_mbcnt_lo_u32_b32 v1, -1, 0"); e("v_mbcnt_hi_u32_b32 v1, -1, v1")
    e("s_lshl_b32 s52, s3, 7")
    e("v_and_b32 v6, 31, v1"); e("v_lshrrev_b32 v7, 5, v1")
    tr_lane_addr(e, 8, 1, 2, 3, 4)
    e("v_bfe_u32 v2, v1, 3, 1"); e("v_lshlrev_b32 v3, 2, v7"); e("v_add_u32 v2, v2, v3"); e("v_mul_u32_u24 v2, 18, v2")
    e("v_bfe_u32 v3, v1, 2, 1"); e("v_add_u32 v2, v2, v3"); e("v_add_u32 v2, 16, v2"); e("v_lshlrev_b32 v9, 6, v2")
    e("v_bfe_u32 v2, v1, 4, 1"); e("v_lshlrev_b32 v2, 5, v2"); e("v_add_u32 v9, v9, v2")
    e("v_and_b32 v2, 3, v1"); e("v_lshlrev_b32 v2, 3, v2"); e("v_add_u32 v9, v9, v2")
    e("v_add_u32 v10, 36864, v8"); e("v_add_u32 v11, 36864, v9")
    e("s_add_u32 s8, s3, 1"); e("s_cmp_eq_u32 s3, 7"); e("s_cselect_b32 s8, 9, s8")
    e("s_add_u32 s10, s97, s8"); e("s_sub_u32 s11, 9, s8")
    e("s_cmp_lg_u32 s5, 0"); e("s_cbranch_scc1 T_pp_w")
    e("v_lshlrev_b32 v13, 2, v1")
    e.label("T_pp_p")
    e("s_mov_b64 exec, 0xff"); e("buffer_load_dword v14, v13, s[24:27], s57 offen sc1"); e("s_waitcnt vmcnt(0)")
    e("v_subrev_u32 v14, s10, v14"); e("v_cmp_lt_u32 vcc, s11, v14"); e("s_mov_b64 exec, -1"); e("s_nop 4")
    e("s_cbranch_vccz T_pp_w"); e("s_sleep 2"); e("s_branch T_pp_p")
    e.label("T_pp_w")
    e("s_barrier")
    e("s_mul_i32 s50, s6, 18"); e("s_lshl_b32 s54, s3, 1"); e("s_add_u32 s50, s50, s54"); e("s_lshl_b32 s50, s50, 11"); e(f"s_add_u32 s50, s50, {WS_P}")
    e("s_lshl_b32 s46, s6, 7"); e(f"s_add_u32 s46, s46, {WS_G}"); e("v_lshlrev_b32 v4, 2, v6"); e("v_lshlrev_b32 v3, 3, v7")
    e("buffer_load_dword v5, v4, s[24:27], s46 offen sc1")
    PSB = [48, 224]
    def ps_sum(PS, ntiles, lbase, b2reg):
        for sp in range(NSPLIT):
            e(f"s_waitcnt vmcnt({2*ntiles*(NSPLIT-1-sp)})")
            for j in range(ntiles):
                for k in range(8):
                    src = lbase + 8 * ntiles * sp + 8 * j + k
                    c0 = "0" if sp == 0 else f"v{PS+16*j+2*k}"; c1 = "0" if sp == 0 else f"v{PS+16*j+2*k+1}"
                    e(f"v_dot2_f32_bf16 v{PS+16*j+2*k}, v{src}, s64, {c0}"); e(f"v_dot2_f32_bf16 v{PS+16*j+2*k+1}, v{src}, s65, {c1}")
        e("s_nop 3")
        for j in range(ntiles):
            for r in range(16): e(f"v_mul_f32 v{PS+16*j+r}, {hexf(1/KAPPA)}, v{PS+16*j+r}")
            for k in range(8):
                e(f"v_dot2_f32_bf16 v{PS+16*j+2*k}, v{b2reg+8*j+k}, s64, v{PS+16*j+2*k}"); e(f"v_dot2_f32_bf16 v{PS+16*j+2*k+1}, v{b2reg+8*j+k}, s65, v{PS+16*j+2*k+1}")
        e("s_nop 3")
    for j in range(2):
        for q in range(4): e(f"buffer_load_dwordx2 {vr(80+8*j+2*q,2)}, v3, s[20:23], s52 offen offset:{j*64+q*16}")
    for sp in range(NSPLIT):
        e(f"s_add_u32 s54, s50, {sp*SPL}")
        for u in range(4): e(f"buffer_load_dwordx4 {vr(96+16*sp+4*u,4)}, v{vL16}, s[24:27], s54 offen offset:{u*1024} sc1")
    ps_sum(48, 2, 96, 80)
    e("s_mov_b32 s10, s96"); e("s_mov_b32 s11, 0")
    e("s_cmp_lg_u32 s5, 0"); e("s_cbranch_scc1 T_p9_w")
    e.label("T_p9_p")
    e("s_mov_b64 exec, 0xff"); e("buffer_load_dword v14, v13, s[24:27], s57 offen sc1"); e("s_waitcnt vmcnt(0)")
    e("v_cmp_ne_u32 vcc, s96, v14"); e("s_mov_b64 exec, -1"); e("s_nop 4")
    e("s_cbranch_vccz T_p9_w"); e("s_sleep 2"); e("s_branch T_p9_p")
    e.label("T_p9_w")
    e("s_barrier")
    e("s_lshr_b32 s47, s3, 1")
    e("s_cmp_lg_u32 s5, s47"); e("s_cbranch_scc1 T_psd")
    e("s_and_b32 s8, s3, 1"); e("s_lshl_b32 s48, s8, 6"); e("s_add_u32 s48, s48, 1024")
    e("s_mul_i32 s9, s6, 18"); e("s_add_u32 s9, s9, s8"); e("s_add_u32 s9, s9, 16"); e("s_lshl_b32 s9, s9, 11"); e(f"s_add_u32 s9, s9, {WS_P}")
    for q in range(4): e(f"buffer_load_dwordx2 {vr(80+2*q,2)}, v3, s[20:23], s48 offen offset:{q*16}")
    for sp in range(NSPLIT):
        e(f"s_add_u32 s54, s9, {sp*SPL}")
        for u in range(2): e(f"buffer_load_dwordx4 {vr(96+8*sp+4*u,4)}, v{vL16}, s[24:27], s54 offen offset:{u*1024} sc1")
    ps_sum(224, 1, 96, 80)
    e.label("T_psd")
    if not MP2: stamp(e, 5)
    e("v_mul_u32_u24 v2, 1152, v6"); e("v_lshlrev_b32 v3, 4, v7"); e("v_add_u32 v2, v2, v3")
    e(f"s_mul_i32 s51, s6, {32*1152}"); e("s_add_u32 s51, s51, s52")
    e("s_lshl_b32 s55, s6, 15"); e(f"s_add_u32 s55, s55, {WS_O1}")
    e("s_lshl_b32 s56, s6, 12"); e(f"s_add_u32 s56, s56, {WS_O2}")
    ACC = [16, 32]
    MB = 159744
    def rdk(k, img, slot):
        d = 144 + 4 * slot
        am, ae = (8, 9) if img == 0 else (10, 11)
        if k < 32: a_, o1, o2 = am, k * 1152, k * 1152 + 512
        else: a_, o1, o2 = ae, (k - 32) * 8 * 1152, (k - 32) * 8 * 1152 + 2 * 1152
        e(f"ds_read_b64_tr_b16 {ar(d,2)}, v{a_} offset:{o1}"); e(f"ds_read_b64_tr_b16 {ar(d+2,2)}, v{a_} offset:{o2}")
    def mm_block(ks):
        fr = [(k, img) for k in ks for img in range(2)]
        for i, (k, img) in enumerate(fr): rdk(k, img, i)
        for i, (k, img) in enumerate(fr):
            e(f"s_waitcnt lgkmcnt({min(15, 2*(len(fr)-1-i))})")
            e(f"v_mfma_f32_32x32x16_bf16 {vr(ACC[img],16)}, {ar(144+4*i,4)}, {ar(4*k,4)}, {vr(ACC[img],16)}")
    for r in range(32): e(f"v_mov_b32 v{16+r}, 0")
    e("s_waitcnt vmcnt(0)"); e("s_barrier")
    e(f"v_mov_b32 v14, {MB}"); e("v_mov_b32 v13, 0")
    e("s_cmp_lg_u32 s5, 0"); e("s_cbranch_scc1 T_mbi"); e("ds_write_b32 v14, v13"); e.label("T_mbi")
    e("s_waitcnt lgkmcnt(0)"); e("s_barrier")
    e("s_mov_b32 s8, 0"); e("s_mov_b32 s9, 0")
    e("v_mbcnt_lo_u32_b32 v15, -1, 0"); e("v_lshlrev_b32 v15, 2, v15")
    e.label("T_round")
    e("s_cmp_lg_u32 s5, 0"); e("s_cbranch_scc1 T_rd_mb")
    e("s_mov_b32 exec_lo, 0xff0000"); e("s_mov_b32 exec_hi, 0")
    e("buffer_load_dword v13, v15, s[24:27], s57 offen sc1")
    e("s_waitcnt vmcnt(0)")
    e(f"v_cmp_eq_u32 vcc, s{TAGR}, v13"); e("s_mov_b64 exec, -1"); e("s_nop 4")
    e("s_lshr_b32 s10, vcc_lo, 16")
    e("v_mov_b32 v13, s10"); e("ds_write_b32 v14, v13")
    e("s_branch T_have")
    e.label("T_rd_mb")
    e("ds_read_b32 v13, v14"); e("s_waitcnt vmcnt(0) lgkmcnt(0)"); e("v_readfirstlane_b32 s10, v13"); e("s_nop 3")
    e.label("T_have")
    e("s_andn2_b32 s11, s8, s9"); e("s_or_b32 s9, s9, s11")
    for g in range(8):
        e(f"s_bitcmp1_b32 s11, {g}"); e(f"s_cbranch_scc0 T_nc{g}")
        mm_block([4 * g + i for i in range(4)])
        e.label(f"T_nc{g}")
    for x in range(4):
        e(f"s_bitcmp1_b32 s11, {8+x}"); e(f"s_cbranch_scc0 T_ncx{x}")
        mm_block([32 + x])
        e.label(f"T_ncx{x}")
    e("s_cmp_eq_u32 s9, 0xfff"); e("s_cbranch_scc1 T_alld")
    e("s_lshr_b32 s11, s10, 1"); e("s_and_b32 s11, s11, s10")
    for x in range(4):
        e(f"s_bitcmp1_b32 s11, {2*x}"); e(f"s_cselect_b32 s7, {1 << (8+x)}, 0"); e("s_or_b32 s10, s10, s7")
    e("s_andn2_b32 s11, s10, s8"); e("s_or_b32 s8, s8, s11")
    e("s_cmp_eq_u32 s11, 0"); e("s_cbranch_scc1 T_idle")
    for g in range(8):
        e(f"s_bitcmp1_b32 s11, {g}"); e(f"s_cbranch_scc0 T_nl{g}")
        e(f"s_add_u32 s54, s55, {g*4096}")
        for i in range(4): e(f"buffer_load_dwordx4 {ar(16*g+4*i,4)}, v{vL16}, s[24:27], s54 offen offset:{i*1024} sc1")
        e.label(f"T_nl{g}")
    for x in range(4):
        e(f"s_bitcmp1_b32 s11, {8+x}"); e(f"s_cbranch_scc0 T_nlx{x}")
        e(f"buffer_load_dwordx4 {ar(128+4*x,4)}, v{vL16}, s[24:27], s56 offen offset:{x*1024} sc1")
        e.label(f"T_nlx{x}")
    e("s_branch T_round")
    e.label("T_idle")
    e("s_sleep 3"); e("s_branch T_round")
    e.label("T_alld")
    if not MP2: stamp(e, 4)
    def out_tile(A, PS, pk, soff, off):
        for r in range(16):
            e(f"v_sub_f32 v{A+r}, v{A+r}, v{PS+r}"); e(f"v_fma_f32 v{A+r}, v5, v{A+r}, v{PS+r}")
        for k in range(8): e(f"v_cvt_pk_bf16_f32 v{pk+k}, v{A+2*k}, v{A+2*k+1}")
        e("s_nop 1")
        for base in (pk, pk + 4):
            e(f"v_permlane32_swap_b32 v{base}, v{base+2}"); e(f"v_permlane32_swap_b32 v{base+1}, v{base+3}")
        e("s_nop 1")
        e(f"buffer_store_dwordx4 {vr(pk,4)}, v2, s[12:15], s{soff} offen offset:{off}" + OUTSC)
        e(f"buffer_store_dwordx4 {vr(pk+4,4)}, v2, s[12:15], s{soff} offen offset:{off+32}" + OUTSC)
    e("s_cmp_lg_u32 s5, s47"); e("s_cbranch_scc1 T_noE0")
    e("v_add_u32 v8, 73728, v8"); e("v_add_u32 v9, 73728, v9")
    def rdE(k):
        d = 144 + 4 * (k % 8)
        if k < 32: a_, o1, o2 = 8, k * 1152, k * 1152 + 512
        else: a_, o1, o2 = 9, (k - 32) * 8 * 1152, (k - 32) * 8 * 1152 + 2 * 1152
        e(f"ds_read_b64_tr_b16 {ar(d,2)}, v{a_} offset:{o1}"); e(f"ds_read_b64_tr_b16 {ar(d+2,2)}, v{a_} offset:{o2}")
    for k in range(6): rdE(k)
    for k in range(36):
        e(f"s_waitcnt lgkmcnt({2*(min(35, k+5)-k)})")
        c = "0" if k == 0 else vr(96, 16)
        e(f"v_mfma_f32_32x32x16_bf16 {vr(96,16)}, {ar(144+4*(k%8),4)}, {ar(4*k,4)}, {c}")
        if k + 6 < 36: rdE(k + 6)
    e.label("T_noE0")
    e("s_nop 7"); e("s_nop 3")
    for j in range(2): out_tile(ACC[j], 48 + 16 * j, 80 + 8 * j, 51, j * 64)
    e("s_cmp_lg_u32 s5, s47"); e("s_cbranch_scc1 T_done")
    e(f"s_mul_i32 s8, s6, {32*1152}"); e("s_add_u32 s8, s8, s48")
    out_tile(96, 224, 112, 8, 0)
    e.label("T_done")
    e("s_or_b32 s8, s3, s4"); e("s_or_b32 s8, s8, s5"); e("s_cmp_lg_u32 s8, 0"); e("s_cbranch_scc1 T_end")
    e("s_mov_b64 exec, 1"); e("v_mov_b32 v13, 0")
    e.label("T_ep")
    e("buffer_load_dword v14, v13, s[60:63], 0 offen offset:4 sc1")
    e("s_waitcnt vmcnt(0)")
    e("v_readfirstlane_b32 s8, v14"); e("s_nop 3")
    e("s_cmp_ge_u32 s8, 256"); e("s_cbranch_scc1 T_epd")
    e("s_sleep 2"); e("s_branch T_ep")
    e.label("T_epd")
    e(f"v_mov_b32 v14, s{TAGR}"); e(f"s_mov_b32 s8, {WS_EPOCH}")
    e("buffer_store_dword v14, v13, s[24:27], s8 offen")
    e("s_mov_b64 exec, -1")
    e.label("T_end")

GWL = BIAS + 2304
def gen_mlp4(e, common, xfrag_addr, coop):
    YF = lambda s: ar(4 * s, 4)
    NR = 8
    RING = lambda k: 144 + 4 * (k % NR)
    SB = lambda b, u: 16 + 32 * b + 16 * u
    PR = lambda c: 112 + 8 * c
    PK = 80
    T = [96, 97, 98, 99, 100, 101]
    aX = [104, 105, 106, 107]; aY = [108, 109, 110, 111]
    dW1 = [2, 3, 4, 5]; dW2 = [6, 7, 8, 9]; aB, cC0, vL16 = 10, 11, 12
    D = 6
    e.label("M_start")
    e(f"v_lshlrev_b32 v{vL16}, 4, v1")
    e("v_lshlrev_b32 v13, 3, v0"); e("v_lshlrev_b32 v14, 4, v0")
    e("v_and_b32 v74, 31, v1"); e("v_lshrrev_b32 v75, 5, v1")
    e("v_and_b32 v15, 3, v1"); e("v_lshlrev_b32 v15, 4, v15")
    e("v_lshrrev_b32 v16, 5, v1"); e("v_lshlrev_b32 v16, 6, v16"); e("v_add_u32 v15, v15, v16")
    e("v_bfe_u32 v16, v1, 2, 3")
    e(f"v_mul_u32_u24 v{dW1[0]}, 9216, v16"); e(f"v_add_u32 v{dW1[0]}, v{dW1[0]}, v15")
    e(f"v_mul_u32_u24 v{dW2[0]}, 1152, v16"); e(f"v_add_u32 v{dW2[0]}, v{dW2[0]}, v15")
    S1, S2 = 8 * 9216, 8 * 1152
    for q in range(1, 4):
        e(f"v_add_u32 v{dW1[q]}, {q*(S1-1024)}, v{dW1[0]}"); e(f"v_add_u32 v{dW2[q]}, {q*(S2-1024)}, v{dW2[0]}")
    e("v_lshrrev_b32 v15, 5, v1")
    e("v_bfe_u32 v16, v1, 2, 2"); e("v_lshlrev_b32 v16, 6, v16")
    e("v_bfe_u32 v17, v1, 4, 1"); e("v_lshlrev_b32 v17, 5, v17"); e("v_add_u32 v16, v16, v17")
    e("v_and_b32 v17, 3, v1"); e("v_lshlrev_b32 v17, 3, v17"); e("v_add_u32 v16, v16, v17")
    e("v_lshlrev_b32 v17, 10, v15"); e("v_add_u32 v17, v17, v16")
    e("v_lshlrev_b32 v18, 8, v15"); e("v_add_u32 v18, v18, v16")
    for k in range(4):
        e(f"v_add_u32 v{aX[k]}, {SLOT[k]}, v17"); e(f"v_add_u32 v{aY[k]}, {SLOT[k]}, v18")
    e("v_lshlrev_b32 v15, 4, v15"); e(f"v_add_u32 v{aB}, {BIAS}, v15")
    e(f"v_mov_b32 v{cC0}, {hexf(GC0)}")
    xfrag_addr(e, 68, 72)
    common(e, False)
    e("v_cmp_gt_u32 vcc, 144, v0"); e("s_nop 1"); e("s_mov_b64 s[46:47], vcc")
    e(f"s_mul_i32 s40, s5, {72*9216}"); e("s_mul_i32 s42, s3, 1152"); e("s_add_u32 s40, s40, s42")
    e(f"s_mul_i32 s41, s3, {576*1152}"); e(f"s_mul_i32 s42, s5, {72*1152}"); e("s_add_u32 s41, s41, s42")
    e("s_mul_i32 s43, s5, 9216")
    vq = []
    def vm_issue(tag, ins):
        for x in ins: e(x)
        vq.append(tag)
    def vm_need(tag):
        idx = max((i for i, t in enumerate(vq) if t == tag), default=None)
        if idx is None: return None
        n = len(vq) - 1 - idx
        del vq[:idx + 1]
        return n
    REC = {"mode": None, "log": [], "over": None, "i": 0}
    def vm_wait(tag):
        n = vm_need(tag)
        if REC["mode"] == "rec": REC["log"].append(n)
        if REC["mode"] == "use":
            n = REC["over"][REC["i"]]; REC["i"] += 1
        if n is not None: e(f"s_waitcnt vmcnt({n})")
    def dma_groups(phi, ybase=None, solo=False):
        slot = SLOT[phi % 4]; out = []
        t, hh = phi // 2, phi % 2
        for ii in range(9):
            q = 0 if solo else ii % 4; g = []
            if phi < 18:
                if q == 0: g += [f"s_add_u32 m0, s43, {slot + ii*1024}", f"s_add_u32 s44, s40, {hh*288*9216 + ii*S1 + t*128}"]
                g.append(f"buffer_load_dwordx4 v{dW1[q]}, s[28:31], s44 offen offset:{q*1024} lds")
            else:
                np_ = (t - 9) if ybase is None else (t - ybase)
                if q == 0: g += [f"s_add_u32 m0, s43, {slot + ii*1024}", f"s_add_u32 s44, s41, {hh*288*1152 + ii*S2 + np_*128}"]
                g.append(f"buffer_load_dwordx4 v{dW2[q]}, s[32:35], s44 offen offset:{q*1024} lds")
            out.append(g)
        return out
    class LT:
        def __init__(self): self.q = []
        def issue(self, tag, ins):
            for x in ins: e(x); self.q.append(tag)
        def wait(self, tag):
            idx = max((i for i, t in enumerate(self.q) if t == tag), default=None)
            if idx is None: return
            n = len(self.q) - 1 - idx
            e(f"s_waitcnt lgkmcnt({min(n, 15)})")
            self.q = self.q[idx + 1:] if n <= 15 else self.q[len(self.q) - 15:]
    lt = LT()
    def frag_rd(phi, i):
        s, u = i // 2, i % 2
        d = RING(phi * 36 + i)
        if phi < 18:
            a = aX[phi % 4]; o1 = s * 2048 + u * 512; o2 = o1 + 256
        else:
            a = aY[phi % 4]; o1 = s * 2048 + u * 512; o2 = o1 + 1024
        return [f"ds_read_b64_tr_b16 {ar(d,2)}, v{a} offset:{o1}", f"ds_read_b64_tr_b16 {ar(d+2,2)}, v{a} offset:{o2}"]
    def mfma(phi, i):
        t, hh = phi // 2, phi % 2
        s, u = i // 2, i % 2
        ks = 18 * hh + s
        A = ar(RING(phi * 36 + i), 4); Dst = vr(SB(t % 2, u), 16)
        if phi < 18: return f"v_mfma_f32_32x32x16_bf16 {Dst}, {A}, {YF(ks)}, {Dst}"
        B = vr(PR(ks // 2) + 4 * (ks % 2), 4)
        C = "0" if ks == 0 else Dst
        return f"v_mfma_f32_32x32x16_bf16 {Dst}, {A}, {B}, {C}"
    def gelu(x, t):
        return [f"v_fma_f32 v{t}, v{x}, v{x}, v{cC0}", f"v_mul_f32 v{t}, v{x}, v{t}", f"v_exp_f32 v{t}, -v{t}",
                f"v_add_f32 v{t}, 1.0, v{t}", f"v_rcp_f32 v{t}, v{t}", f"v_mul_f32 v{x}, v{x}, v{t}"]
    def gelu_tile(b, u, c):
        out = []
        base = SB(b, u)
        for g0 in (0, 3, 6, 9, 12, 14):
            grp = list(range(g0, g0 + 3)) if g0 < 12 else [g0, g0 + 1]
            seqs = [gelu(base + r, T[(i + (3 if (g0 // 3) % 2 else 0)) % 6]) for i, r in enumerate(grp)]
            for op in range(6):
                for sq in seqs: out.append(sq[op])
        for k in range(8): out.append(f"v_cvt_pk_bf16_f32 v{PR(c)+k}, v{base+2*k}, v{base+2*k+1}")
        return out
    def bias_rd(b, u, c): return [f"ds_read_b128 {vr(SB(b,u)+4*q,4)}, v{aB} offset:{c*128+q*32}" for q in range(4)]
    def cost(x): return 8 if x.startswith(("v_exp", "v_rcp")) else 4
    WP = 2
    def need(gk):
        if gk % WP == 0:
            for kk in range(gk + WP - 1, gk - 1, -1):
                if ("f", kk) in lt.q:
                    lt.wait(("f", kk)); return
    def spread(items, n):
        tot = sum(cost(x) for x in items if isinstance(x, str)) or 1
        out = [[] for _ in range(n)]; acc = 0; g = 0
        for x in items:
            while g < n - 1 and acc >= tot * (g + 1) / n: g += 1
            out[g].append(x); acc += cost(x) if isinstance(x, str) else 4
        return out
    def phase(phi, fills, dma, next_phi, extra=None, ybase=None, pend=None):
        dma = list(dma)
        for i in range(36):
            gk = phi * 36 + i
            e(mfma(phi, i))
            nxt = i + D
            if nxt == 36 and next_phi is not None:
                vm_wait(("d", next_phi))
                e("s_barrier")
            if nxt < 36: lt.issue(("f", gk + D), frag_rd(phi, nxt))
            elif next_phi is not None: lt.issue(("f", gk + D), frag_rd(next_phi, nxt - 36))
            if extra and i in extra: extra[i]()
            if dma and i % 4 == 1:
                g = dma.pop(0)
                if not X_NODMA: vm_issue(("d", phi + 3), g)
            if pend:
                pend(i)
            if not X_NOGELU:
                for x in fills[i]:
                    if isinstance(x, tuple): vm_issue(x[0], [x[1]])
                    else: e(x)
            need(gk + 1)
        assert not dma
    XR = 112
    vq.extend([("x", 0)] * 36)
    e("s_mul_i32 s42, s3, 1152")
    e("s_mov_b64 s[50:51], exec"); e("s_mov_b64 exec, s[46:47]")
    vm_issue("bias", ["buffer_load_dwordx2 v[60:61], v13, s[36:39], s42 offen"])
    e("s_mov_b64 exec, s[50:51]")
    e("v_cmp_gt_u32 vcc, 72, v0"); e("s_nop 1"); e("s_mov_b64 s[54:55], vcc"); e("s_mov_b64 exec, s[54:55]")
    vm_issue("gw", ["buffer_load_dwordx4 v[64:67], v14, s[20:23], 0 offen"])
    e("s_mov_b64 exec, s[50:51]")
    coop(e, 48); vq.extend(["pf"] if int(os.environ.get("WQEARLY", "0")) else ["pf", "pf"])
    n = vm_need(("x", 0)); e(f"s_waitcnt vmcnt({n})")
    for s_ in range(36): e(f"ds_read_b128 {vr(XR+4*s_,4)}, v{68+s_%4} offset:{(s_//4)*128}")
    n = vm_need("gw"); e(f"s_waitcnt vmcnt({n}) lgkmcnt(0)"); stamp(e, 2); e("s_barrier")
    mktag(e)
    pend = [(("d", ph), g) for ph in range(3) for g in dma_groups(ph, solo=True)]
    e("s_mov_b64 exec, s[46:47]")
    e("v_and_b32 v63, 0xffff0000, v61"); e("v_lshlrev_b32 v62, 16, v61"); e("v_and_b32 v61, 0xffff0000, v60"); e("v_lshlrev_b32 v60, 16, v60")
    for r in range(60, 64): e(f"v_mul_f32 v{r}, {hexf(KAPPA)}, v{r}")
    e(f"v_add_u32 v76, {BIAS}, v14"); e("ds_write_b128 v76, v[60:63]")
    e("s_mov_b64 exec, s[54:55]"); e(f"v_add_u32 v76, {GWL}, v14"); e("ds_write_b128 v76, v[64:67]")
    e("s_mov_b64 exec, s[50:51]")
    A0, A1, A2 = 78, 79, 80
    e("s_mov_b32 s56, 0x3f803f80")
    e(f"v_mov_b32 v{A0}, 0"); e(f"v_mov_b32 v{A1}, 0"); e(f"v_mov_b32 v81, 0"); e(f"v_mov_b32 v82, 0")
    for i in range(144):
        e(f"v_dot2_f32_bf16 v{A0 if i%2==0 else 81}, v{XR+i}, s56, v{A0 if i%2==0 else 81}")
        e(f"v_dot2_f32_bf16 v{A1 if i%2==0 else 82}, v{XR+i}, v{XR+i}, v{A1 if i%2==0 else 82}")
        if i % 5 == 0 and pend:
            tag, g = pend.pop(0); vm_issue(tag, g)
    assert not pend
    e("s_nop 3")
    e(f"v_add_f32 v{A0}, v{A0}, v81"); e(f"v_add_f32 v{A1}, v{A1}, v82")
    for r in (A0, A1):
        e(f"v_mov_b32 v83, v{r}"); e("s_nop 1"); e(f"v_permlane32_swap_b32 v{r}, v83"); e("s_nop 1"); e(f"v_add_f32 v{r}, v{r}, v83")
    e(f"v_mul_f32 v{A0}, {hexf(1/576)}, v{A0}"); e(f"v_mul_f32 v{A1}, {hexf(1/576)}, v{A1}")
    e(f"v_fma_f32 v{A1}, -v{A0}, v{A0}, v{A1}"); e(f"v_max_f32 v{A1}, 0, v{A1}"); e(f"v_add_f32 v{A1}, {hexf(1e-5)}, v{A1}")
    e(f"v_rsq_f32 v{A1}, v{A1}"); e("s_nop 0"); e(f"v_mul_f32 v{A1}, {hexf(KAPPA)}, v{A1}")
    e(f"v_mul_f32 v{A0}, v{A0}, v{A1}")
    e("s_waitcnt lgkmcnt(0)"); e("s_barrier")
    e("s_cmp_lg_u32 s3, 2"); e("s_cbranch_scc1 M_nogate")
    e("v_lshlrev_b32 v83, 4, v75"); e(f"v_add_u32 v83, {GWL}, v83"); e(f"v_mov_b32 v{A2}, 0")
    for g0 in range(0, 36, 4):
        for k in range(4): e(f"ds_read_b128 {vr(84+4*k,4)}, v83 offset:{(g0+k)*32}")
        e("s_waitcnt lgkmcnt(0)")
        for k in range(4):
            for j in range(4): e(f"v_dot2_f32_bf16 v{A2}, v{XR+4*(g0+k)+j}, v{84+4*k+j}, v{A2}")
    e("s_nop 3"); e(f"v_mov_b32 v83, v{A2}"); e("s_nop 1"); e(f"v_permlane32_swap_b32 v{A2}, v83"); e("s_nop 1"); e(f"v_add_f32 v{A2}, v{A2}, v83")
    e(f"v_mul_f32 v{A2}, {hexf(-math.log2(math.e))}, v{A2}"); e(f"v_exp_f32 v{A2}, v{A2}"); e("s_nop 0")
    e(f"v_add_f32 v{A2}, 1.0, v{A2}"); e(f"v_rcp_f32 v{A2}, v{A2}")
    e("s_lshl_b32 s53, s6, 7"); e(f"s_add_u32 s53, s53, {WS_G}"); e("v_lshlrev_b32 v83, 2, v74")
    e("s_mov_b32 exec_hi, 0"); e(f"buffer_store_dword v{A2}, v83, s[24:27], s53 offen sc1"); e("s_mov_b32 exec_hi, -1")
    e("s_waitcnt vmcnt(0)")
    e.label("M_nogate")
    e(f"v_mov_b32 v84, v{A1}"); e(f"v_mov_b32 v85, v{A1}"); e(f"v_sub_f32 v86, 0, v{A0}"); e(f"v_sub_f32 v87, 0, v{A0}")
    for i in range(144):
        t0 = 16 + 2 * (i % 4)
        e(f"v_lshlrev_b32 v{t0}, 16, v{XR+i}"); e(f"v_and_b32 v{t0+1}, 0xffff0000, v{XR+i}")
        e(f"v_pk_fma_f32 v[{t0}:{t0+1}], v[{t0}:{t0+1}], v[84:85], v[86:87]")
        if i > 0:
            p0 = 16 + 2 * ((i - 1) % 4)
            e(f"v_cvt_pk_bf16_f32 v{p0}, v{p0}, v{p0+1}"); e(f"v_accvgpr_write_b32 a{i-1}, v{p0}")
    p0 = 16 + 2 * (143 % 4)
    e(f"v_cvt_pk_bf16_f32 v{p0}, v{p0}, v{p0+1}"); e(f"v_accvgpr_write_b32 a143, v{p0}")
    if int(os.environ.get("DBG_Y", "0")):
        e("s_mul_i32 s53, s6, 36864")
        for s_ in range(36):
            e(f"s_add_u32 s44, s53, {s_*1024}"); e("s_nop 4")
            e(f"buffer_store_dwordx4 {ar(4*s_,4)}, v{vL16}, s[24:27], s44 offen")
        e("s_waitcnt vmcnt(0)")
    n = vm_need(("d", 0)); e(f"s_waitcnt vmcnt({n})")
    stamp(e, 3)
    e("s_barrier")
    lt.issue("b", bias_rd(0, 0, 0) + bias_rd(0, 1, 1))
    for k in range(D): lt.issue(("f", k), frag_rd(0, k))
    lt.wait("b")
    need(0)
    def pend_fn(phi): return None
    for t in range(9):
        fl = []
        if t > 0:
            fl = gelu_tile(1 - t % 2, 0, 2 * (t - 1)) + gelu_tile(1 - t % 2, 1, 2 * (t - 1) + 1)
        buckets = [[] for _ in range(72)]
        if fl:
            sp = spread(fl, 62)
            for i in range(62): buckets[3 + i] = sp[i]
        for hh in range(2):
            phi = 2 * t + hh
            extra = {}
            if hh == 1 and t < 8:
                extra[30] = (lambda tt=t: lt.issue("b", bias_rd((tt + 1) % 2, 0, 2 * (tt + 1)) + bias_rd((tt + 1) % 2, 1, 2 * (tt + 1) + 1)))
            dm = dma_groups(phi + 3)
            phase(phi, buckets[36 * hh: 36 * hh + 36], dm, phi + 1, extra)
        if t == 0 and not MP2:
            stamp(e, 4)
        if t == 8 and MP2: stamp(e, 4)
    def epi(b, np_imm):
        out = []
        for u in range(2):
            base = SB(b, u)
            for k in range(8): out.append(f"v_cvt_pk_bf16_f32 v{PK+8*u+k}, v{base+2*k}, v{base+2*k+1}")
            out.append((("s", 0), f"buffer_store_dwordx4 {vr(PK+8*u,4)}, v{vL16}, s[24:27], s52 offen offset:{u*2048}{ST_SC1}"))
            out.append((("s", 0), f"buffer_store_dwordx4 {vr(PK+8*u+4,4)}, v{vL16}, s[24:27], s52 offen offset:{u*2048+1024}{ST_SC1}"))
        return out
    e("s_lshl_b32 s52, s3, 6"); e("s_add_u32 s52, s52, s6"); e(f"s_mul_i32 s52, s52, {18*2048}"); e(f"s_add_u32 s52, s52, {WS_P}")
    RL = 4
    SPL = 64 * 18 * 2048
    def red_compute():
        out = []
        for sp in range(NSPLIT):
            t0 = 96 + 2 * (sp % 2)
            out += [f"v_accvgpr_read_b32 v{t0}, a{2*sp}", f"v_accvgpr_read_b32 v{t0+1}, a{2*sp+1}"]
            for j in range(2):
                c0 = "0" if sp == 0 else f"v{100+2*j}"; c1 = "0" if sp == 0 else f"v{101+2*j}"
                out += [f"v_dot2_f32_bf16 v{100+2*j}, v{t0+j}, s64, {c0}", f"v_dot2_f32_bf16 v{101+2*j}, v{t0+j}, s65, {c1}"]
        out += ["s_nop 2", "v_cvt_pk_bf16_f32 v96, v100, v101", "v_cvt_pk_bf16_f32 v97, v102, v103", "s_nop 0"]
        out.append((("rs", 0), "buffer_store_dwordx2 v[96:97], v1, s[24:27], s47 offen sc1"))
        return out
    def wo_groups(img):
        base = "s53" if img < 2 else "s54"
        return [[f"s_add_u32 m0, s43, {SLOT[img] + ii*1024}", f"s_add_u32 s44, {base}, {ii*16*1152 + (img*64 if img < 2 else 0)}",
                 "buffer_load_dwordx4 v13, s[16:19], s44 offen lds"] for ii in range(9)]
    def ystep(t, first=False, ybase=9, last=False):
        extra = [{}, {}]
        if first:
            fl = gelu_tile(1 - t % 2, 0, 16) + gelu_tile(1 - t % 2, 1, 17)
            sp = spread(fl, 56); buckets = [[] for _ in range(72)]
            for i in range(56): buckets[3 + i] = sp[i]
        else:
            fl = epi(1 - t % 2, 0)
            buckets = [[] for _ in range(72)]
            pos = 3
            for x in fl:
                while pos % 4 == 1: pos += 1
                buckets[pos].append(x)
                if len(buckets[pos]) >= 2 or isinstance(x, tuple): pos += 1
            buckets[pos + 1].append("s_add_u32 s52, s52, 4096")
        if INPUB and not first:
            buckets[31] += ["s_add_u32 s46, s46, 1", "s_max_i32 s8, s46, 0", "s_add_u32 s8, s8, s97", "v_mov_b32 v14, s8", "s_mov_b64 exec, 1",
                            (("fl", 0), "buffer_store_dword v14, v15, s[24:27], s99 offen sc1"), "s_mov_b64 exec, -1"]
        if INRED and not first:
            if True:
                extra[0][23] = lambda: vm_wait(("r", 7))
                rc = red_compute(); pos = 24
                for x in rc:
                    while pos % 4 == 1 or pos == 31: pos += 1
                    buckets[pos].append(x)
                    if len(buckets[pos]) >= 3 or isinstance(x, tuple): pos += 1
                assert pos < 36 + 22, pos
            def chk():
                vm_wait(("fload", 0))
                e("s_add_u32 s9, s48, 1"); e("s_max_i32 s9, s9, 0"); e("s_add_u32 s10, s97, s9"); e("s_sub_u32 s11, 9, s9")
                lab = f"M_rc{len(RCL)}"; RCL.append(1)
                e("s_cmp_lt_i32 s48, 0"); e(f"s_cbranch_scc1 {lab}b")
                e.label(lab + "a")
                e("v_subrev_u32 v14, s10, v13"); e("s_mov_b64 exec, 0xff"); e("v_cmp_lt_u32 vcc, s11, v14"); e("s_mov_b64 exec, -1"); e("s_nop 4")
                e(f"s_cbranch_vccz {lab}b")
                e("s_sleep 2"); e("s_mov_b64 exec, 0xff"); e("buffer_load_dword v13, v0, s[24:27], s57 offen sc1"); e("s_mov_b64 exec, -1"); e("s_waitcnt vmcnt(0)"); e(f"s_branch {lab}a")
                e.label(lab + "b")
                e("s_max_i32 s9, s48, 0"); e("s_lshl_b32 s9, s9, 12"); e("s_add_u32 s49, s45, s9")
                e(f"s_add_u32 s47, s49, {WS_B - WS_P}"); e(f"s_add_u32 s9, s45, {8*4096 + WS_B - WS_P}"); e("s_cmp_lt_i32 s48, 0"); e("s_cselect_b32 s47, s9, s47")
                e("s_add_u32 s48, s48, 1")
            extra[1][23] = chk
            pos = 36 + 24
            for sp in range(NSPLIT):
                while pos % 4 == 1: pos += 1
                buckets[pos] += [f"s_add_u32 s8, s49, {sp*SPL}", (("r", sp), f"buffer_load_dwordx2 {ar(2*sp,2)}, v1, s[24:27], s8 offen sc1")]
                pos += 1
            buckets[4] = ["s_mov_b64 exec, 0xff", (("fload", 0), "buffer_load_dword v13, v0, s[24:27], s57 offen sc1"), "s_mov_b64 exec, -1"] + buckets[4]
        for hh in range(2):
            phi = 2 * t + hh
            nphi = phi + 1
            if last and phi + 3 >= 36: dm = wo_groups(phi - 33) if TAIL else []
            else: dm = dma_groups(phi + 3, ybase)
            phase(phi, buckets[36 * hh: 36 * hh + 36], dm, None if phi == 35 else nphi, extra[hh])
    if INPUB:
        e("s_lshl_b32 s57, s4, 7"); e(f"s_add_u32 s57, s57, {WS_FLAG}")
        e("s_lshl_b32 s99, s3, 2"); e("s_add_u32 s99, s99, s57")
        e(f"s_lshl_b32 s97, s{TAGR}, 4")
        e("s_mov_b32 s46, -1")
        e(f"s_mov_b32 s48, {1 - RL}")
        e("s_lshr_b32 s8, s3, 1"); e("s_lshl_b32 s9, s4, 2"); e("s_add_u32 s8, s8, s9"); e("s_mul_i32 s8, s8, 18")
        e("s_and_b32 s9, s3, 1"); e("s_add_u32 s8, s8, s9"); e("s_lshl_b32 s45, s8, 11")
        e("s_and_b32 s9, s5, 1"); e("s_lshl_b32 s9, s9, 10"); e("s_add_u32 s45, s45, s9"); e("s_lshr_b32 s9, s5, 1"); e("s_lshl_b32 s9, s9, 9"); e("s_add_u32 s45, s45, s9")
        e(f"s_add_u32 s45, s45, {WS_P}")
        e(f"s_add_u32 s47, s45, {8*4096 + WS_B - WS_P}")
        e("s_mov_b32 s64, 0x3f80"); e("s_mov_b32 s65, 0x3f800000")
        e("v_lshlrev_b32 v0, 2, v1"); e("v_lshlrev_b32 v1, 3, v1"); e("v_mov_b32 v15, 0")
    ystep(9, first=True)
    e("s_mov_b32 s15, 3")
    def retag(dphi):
        for i, tg in enumerate(vq):
            if isinstance(tg, tuple) and tg[0] == "d": vq[i] = ("d", tg[1] + dphi)
        lt.q[:] = [(tg[0], tg[1] + dphi * 36) if isinstance(tg, tuple) else tg for tg in lt.q]
    vq0, lq0, keep = list(vq), list(lt.q), e.l
    logs = []
    for rep in range(3):
        e.l = []; REC["mode"] = "rec"; REC["log"] = []; nl = len(RCL)
        ystep(10); ystep(11)
        del RCL[nl:]
        logs.append(REC["log"]); retag(-4)
    vq_steady, lq_steady = list(vq), list(lt.q)
    assert lq_steady == lq0, (lq_steady, lq0)
    over = []
    for vals in zip(*logs):
        v = [x for x in vals if x is not None]
        over.append(min(v) if v else None)
    e.l = keep; vq[:] = vq0; lt.q[:] = lq0
    REC["mode"] = "use"; REC["over"] = over; REC["i"] = 0
    e.label("M_loop")
    ystep(10); ystep(11)
    REC["mode"] = None
    e("s_add_u32 s41, s41, 256")
    e("s_sub_u32 s15, s15, 1"); e("s_cmp_lg_u32 s15, 0"); e("s_cbranch_scc1 M_loop")
    vq[:] = vq_steady; lt.q[:] = lq_steady
    retag(12)
    if TAIL:
        e("s_load_dwordx2 s[92:93], s[0:1], 32"); e("s_waitcnt lgkmcnt(0)"); lt.q[:] = []
        srd(e, 16, 92, 576 * 1152)
        e("v_mbcnt_lo_u32_b32 v14, -1, 0"); e("v_mbcnt_hi_u32_b32 v14, -1, v14")
        e("v_lshrrev_b32 v13, 2, v14"); e("v_mul_u32_u24 v13, 1152, v13"); e("v_and_b32 v14, 3, v14"); e("v_lshlrev_b32 v14, 4, v14"); e("v_add_u32 v13, v13, v14")
        e(f"s_mul_i32 s53, s5, {144*1152}"); e("s_and_b32 s8, s3, 1"); e("s_lshl_b32 s8, s8, 6"); e("s_add_u32 s54, s53, s8"); e("s_add_u32 s54, s54, 1024")
        e("s_lshl_b32 s8, s3, 7"); e("s_add_u32 s53, s53, s8")
    ystep(16, ybase=15, last=True); ystep(17, ybase=15, last=True)
    e("s_nop 7"); e("s_nop 3")
    stamp(e, 5)
    for x in epi(1, 0):
        if isinstance(x, tuple): e("s_nop 0"); e(x[1])
        else: e(x)
    if PRERED and not TAIL:
            e("s_waitcnt vmcnt(0)"); e("s_barrier")
            e("s_lshl_b32 s9, s4, 3"); e("s_add_u32 s9, s9, 64")
            e("v_mov_b32 v13, 0"); e("v_mov_b32 v14, 1")
            e("s_cmp_lg_u32 s5, 0"); e("s_cbranch_scc1 M_nosig")
            e("s_mov_b64 exec, 1")
            e("buffer_atomic_add v14, v13, s[60:63], s9 offen")
            e.label("M_poll")
            e("buffer_load_dword v15, v13, s[60:63], s9 offen sc1")
            e("s_waitcnt vmcnt(0)")
            e("v_readfirstlane_b32 s10, v15"); e("s_nop 3")
            e("s_cmp_ge_u32 s10, 8"); e("s_cbranch_scc1 M_polled")
            e("s_sleep 1"); e("s_branch M_poll")
            e.label("M_polled")
            e("s_mov_b64 exec, -1")
            e.label("M_nosig")
            e("s_barrier")
            e("s_mul_i32 s11, s3, 18"); e("s_add_u32 s11, s11, s5")
            e(f"s_mul_i32 s12, s4, {4*18*2048}")
            e("s_lshl_b32 s13, s11, 10"); e("s_add_u32 s12, s12, s13")
            e(f"s_add_u32 s13, s12, {WS_P}"); e(f"s_add_u32 s14, s12, {WS_B}")
            e("s_mov_b32 s16, 0x3f80"); e("s_mov_b32 s17, 0x3f800000")
            for k in range(5):
                if k == 4: e("s_cmp_ge_u32 s5, 2"); e("s_cbranch_scc1 M_skip5a")
                for sp in range(NSPLIT):
                    e(f"s_add_u32 s18, s13, {sp*64*18*2048 + k*4096}")
                    e(f"buffer_load_dwordx4 {vr(96+32*k+4*sp,4)}, v{vL16}, s[24:27], s18 offen sc1")
                if k == 4: e.label("M_skip5a")
            for k in range(5):
                if k == 4: e("s_cmp_ge_u32 s5, 2"); e("s_cbranch_scc1 M_skip5b")
                if k == 0: e("s_waitcnt vmcnt(0)")
                for sp in range(NSPLIT):
                    for j in range(4):
                        src = 96 + 32 * k + 4 * sp + j
                        c0 = "0" if sp == 0 else f"v{16+2*j}"; c1 = "0" if sp == 0 else f"v{17+2*j}"
                        e(f"v_dot2_f32_bf16 v{16+2*j}, v{src}, s16, {c0}"); e(f"v_dot2_f32_bf16 v{17+2*j}, v{src}, s17, {c1}")
                e("s_nop 3")
                for j in range(4): e(f"v_cvt_pk_bf16_f32 v{24+j+4*(k%2)}, v{16+2*j}, v{17+2*j}")
                e(f"s_add_u32 s18, s14, {k*4096}")
                e(f"buffer_store_dwordx4 {vr(24+4*(k%2),4)}, v{vL16}, s[24:27], s18 offen")
                if k == 4: e.label("M_skip5b")
    if TAIL:
        gen_tail(e, vL16)
    if PROF:
        e("s_waitcnt vmcnt(0)"); stamp(e, 6); stamp_rt(e, 7); stamp_flush(e, 0, 58)
    e("s_endpgm")
LOOPCHK = []
```

```python
import math, sys, os
from gen import *
import gen_mlp4
LDS_MAIN = 4 * QB + 1024

XD = [0]
def xdma(e, base):
    e("s_mov_b32 s42, 911"); e("s_mul_i32 s44, s6, 36864"); e(f"s_add_u32 s99, s44, {16*1152}"); e("s_mul_i32 s45, s5, 36864")
    t0, t1, t2, p, d = base, base + 1, base + 2, base + 3, base + 4
    e(f"v_mov_b32 v{p}, v1"); e("s_mov_b32 s43, 18")
    L = f"XD_{XD[0]}"; XD[0] += 1
    e.label(L)
    e(f"v_mul_lo_u32 v{t1}, v{p}, s42"); e(f"v_lshrrev_b32 v{t1}, 16, v{t1}")
    e(f"v_mul_u32_u24 v{t2}, 72, v{t1}"); e(f"v_sub_u32 v{t0}, v{p}, v{t2}")
    e(f"v_bfe_u32 v{t2}, v{t1}, 1, 3"); e(f"v_xor_b32 v{t0}, v{t0}, v{t2}"); e(f"v_lshlrev_b32 v{t0}, 4, v{t0}")
    e(f"v_mul_u32_u24 v{t1}, 1152, v{t1}"); e("s_mov_b32 m0, s45"); e(f"v_add_u32 v{d}, v{t0}, v{t1}")
    e(f"buffer_load_dwordx4 v{d}, s[64:67], s44 offen lds")
    e("s_add_u32 m0, s45, 18432"); e(f"v_add_u32 v{p}, 64, v{p}")
    e(f"buffer_load_dwordx4 v{d}, s[64:67], s99 offen lds")
    e("s_add_u32 s45, s45, 1024"); e("s_sub_u32 s43, s43, 1"); e("s_cmp_lg_u32 s43, 0"); e(f"s_cbranch_scc1 {L}")
def coop(e, base):
    e("s_lshr_b32 s44, s2, 3"); e("s_lshl_b32 s44, s44, 2"); e("s_add_u32 s44, s44, s5")
    e("s_and_b32 s45, s2, 1")
    e(f"v_lshlrev_b32 v{base}, 7, v1")
    e("s_mul_i32 s49, s44, 5248")
    if not int(os.environ.get("WQEARLY", "0")): e(f"buffer_load_dword v{base+1}, v{base}, s[12:15], s49 offen")
    e("s_mul_i32 s49, s44, 36"); e(f"v_add_u32 v{base+2}, s49, v1")
    e(f"v_lshrrev_b32 v{base+3}, 3, v{base+2}"); e(f"v_mul_u32_u24 v{base+3}, 9216, v{base+3}")
    e(f"v_bfe_u32 v{base}, v{base+2}, 1, 2"); e(f"v_mul_u32_u24 v{base}, 1152, v{base}"); e(f"v_add_u32 v{base+3}, v{base+3}, v{base}")
    e(f"v_and_b32 v{base}, 1, v{base+2}"); e(f"v_lshlrev_b32 v{base}, 7, v{base}"); e(f"v_add_u32 v{base+3}, v{base+3}, v{base}")
    e("s_mul_i32 s49, s45, 4608")
    e(f"buffer_load_dword v{base+4}, v{base+3}, s[28:31], s49 offen")

def xfrag_addr(e, dst, tmp):
    e(f"v_and_b32 v{tmp}, 31, v1"); e(f"v_bfe_u32 v{tmp+1}, v{tmp}, 1, 3"); e(f"v_mul_u32_u24 v{tmp}, 1152, v{tmp}")
    e("s_mul_i32 s11, s5, 36864"); e(f"v_add_u32 v{tmp}, s11, v{tmp}")
    for j in range(4):
        e(f"v_lshrrev_b32 v{dst+j}, 5, v1"); e(f"v_add_u32 v{dst+j}, {2*j}, v{dst+j}"); e(f"v_xor_b32 v{dst+j}, v{dst+j}, v{tmp+1}")
        e(f"v_lshlrev_b32 v{dst+j}, 4, v{dst+j}"); e(f"v_add_u32 v{dst+j}, v{tmp}, v{dst+j}")

def gen_attn_f(e, common):
    Q1 = lambda i: 16 + 8 * i
    Q2 = lambda i: 20 + 8 * i
    O = lambda i: 48 + 16 * i
    S = lambda b: 112 + 16 * b
    P = 144
    KV = lambda b: 152 + 16 * b
    aK1, aK2, aV = 184, 185, 186
    e.label("A_start")
    e("v_lshlrev_b32 v2, 4, v1")
    e("v_and_b32 v3, 31, v1"); e("v_lshlrev_b32 v4, 2, v3")
    e("v_lshrrev_b32 v5, 5, v1")
    e("s_mov_b32 s9, 5462")
    for j in range(3):
        e(f"v_add_u32 v131, {64*j}, v1"); e("v_mul_lo_u32 v132, v131, s9"); e("v_lshrrev_b32 v132, 16, v132")
        e("v_mul_u32_u24 v133, 12, v132"); e("v_sub_u32 v131, v131, v133"); e("v_lshlrev_b32 v131, 4, v131")
        e("v_mul_u32_u24 v132, 1152, v132"); e(f"v_add_u32 v{134+j}, v131, v132")
    xfrag_addr(e, 146, 131)
    e("v_lshlrev_b32 v131, 3, v5"); e("v_bfe_u32 v132, v1, 2, 2"); e("v_add_u32 v131, v131, v132"); e("v_mul_u32_u24 v137, 192, v131")
    e("v_bfe_u32 v131, v1, 4, 1"); e("v_lshlrev_b32 v131, 5, v131"); e("v_add_u32 v137, v137, v131")
    e("v_and_b32 v131, 3, v1"); e("v_lshlrev_b32 v131, 3, v131"); e("v_add_u32 v137, v137, v131")
    e(f"v_add_u32 v138, {288*192}, v137")
    KVL = 110592
    KVDMA = int(os.environ.get('KVDMA', '1'))
    e("v_lshlrev_b32 v150, 4, v0")
    e("s_cmp_ge_u32 s3, 2"); e("s_cbranch_scc1 A_nokv0")
    e("s_mov_b32 s9, 58255")
    for k in range(6):
        e(f"v_lshlrev_b32 v151, 2, v0"); e(f"v_add_u32 v151, {k*1024}, v151")
        e("v_mul_lo_u32 v152, v151, s9"); e("v_lshrrev_b32 v152, 19, v152")
        e("v_mul_u32_u24 v153, 9, v152"); e("v_sub_u32 v151, v151, v153")
        e("v_lshlrev_b32 v152, 6, v152"); e(f"v_add_u32 v152, {KVL}, v152")
        for j in range(4):
            e(f"v_add_u32 v153, {j}, v151"); e("v_cmp_lt_u32 vcc, 8, v153"); e("v_lshlrev_b32 v153, 2, v153")
            e(f"v_add_u32 v{232+4*k+j}, v152, v153"); e(f"v_add_u32 v153, 28, v{232+4*k+j}")
            e(f"v_cndmask_b32 v{232+4*k+j}, v{232+4*k+j}, v153, vcc")
    tr_lane_addr(e, 154, 1, 152, 153, 8); e(f"v_add_u32 v154, {KVL}, v154")
    e.label("A_nokv0")
    for c in range(3):
        e(f"s_add_u32 s9, s5, {4*c}"); e("s_mul_i32 s10, s9, 43691"); e("s_lshr_b32 s10, s10, 17")
        e("s_mul_i32 s11, s10, 3"); e("s_sub_u32 s11, s9, s11")
        e("s_cmp_eq_u32 s11, 1"); e("s_cselect_b64 vcc, -1, 0"); e(f"v_cndmask_b32 v{140+c}, v134, v135, vcc")
        e("s_cmp_eq_u32 s11, 2"); e("s_cselect_b64 vcc, -1, 0"); e(f"v_cndmask_b32 v{140+c}, v{140+c}, v136, vcc")
    common(e, True)
    e("s_mul_i32 s7, s3, 144")
    for c in range(3):
        e(f"s_add_u32 s9, s5, {4*c}"); e("s_mul_i32 s10, s9, 43691"); e("s_lshr_b32 s10, s10, 17")
        e(f"s_mul_i32 s10, s10, {16*1152}"); e(f"s_add_u32 s{50+c}, s10, s7")
    e("s_lshl_b32 s53, s5, 10")
    coop(e, 120)
    def wdma_unit(k):
        return [f"s_add_u32 m0, s53, {k*4096}", f"s_add_u32 s10, s{50+k%3}, {(k//3)*4*16*1152}", f"buffer_load_dwordx4 v{140+k%3}, s[12:15], s10 offen lds"]
    e("s_waitcnt vmcnt(%d)" % (1 if int(os.environ.get("WQEARLY", "0")) else 2))
    for s_ in range(36): e(f"ds_read_b128 {ar(4*s_,4)}, v{146+s_%4} offset:{(s_//4)*128}")
    e("s_waitcnt lgkmcnt(0)"); stamp(e, 2); e("s_barrier")
    gen_mlp4.mktag(e)
    e("s_cmp_lt_u32 s3, 2"); e("s_cbranch_scc1 A_kvjob")
    for k in range(27):
        for x in wdma_unit(k): e(x)
    e("s_branch A_nokv2")
    e.label("A_kvjob")
    for k in range(6):
        if k == 5:
            e("s_cmp_lg_u32 s5, 0"); e("s_cbranch_scc1 A_kvw5"); e("s_mov_b64 exec, 0xffff")
        for j in range(4): e(f"ds_write_b32 v{232+4*k+j}, v{208+4*k+j}")
        if k == 5:
            e("s_mov_b64 exec, -1"); e.label("A_kvw5")
    e("s_waitcnt lgkmcnt(0)"); e("s_barrier")
    AP = int(os.environ.get("APROF", "0"))
    if AP == 2: stamp(e, 3)
    RSK = [156, 160, 164, 168, 172, 176]
    def rdk(s_):
        d = RSK[s_ % 6]
        e(f"ds_read_b64_tr_b16 {vr(d,2)}, v154 offset:{s_*1024}"); e(f"ds_read_b64_tr_b16 {vr(d+2,2)}, v154 offset:{s_*1024+256}")
    DK = 180; PKK = 196
    e("v_mov_b32 v207, 0")
    e("s_lshr_b32 s49, s6, 4"); e(f"s_mul_i32 s49, s49, {QB}"); e(f"s_add_u32 s49, s49, {WS_K1}"); e("s_and_b32 s45, s6, 15")
    e("s_cmp_eq_u32 s3, 1"); e("s_cbranch_scc1 A_V")
    for variant in ("K", "V"):
        if variant == "V": e.label("A_V")
        for s_ in range(5): rdk(s_)
        for s_ in range(36):
            e(f"s_waitcnt lgkmcnt({2*(min(35, s_+4)-s_)})")
            c0 = "0" if s_ == 0 else vr(DK,16)
            w_ = vr(RSK[s_%6],4); xx = ar(4*s_,4)
            e(f"v_mfma_f32_32x32x16_bf16 {vr(DK,16)}, {w_ if variant=='K' else xx}, {xx if variant=='K' else w_}, {c0}")
            if s_ + 5 < 36: rdk(s_ + 5)
            if s_ < 27 and KVDMA:
                for x in wdma_unit(s_): e(x)
        e("s_nop 7"); e("s_nop 3")
        if AP == 2: stamp(e, 4)
        if variant == "K":
            for i in range(5): e(f"v_cvt_pk_bf16_f32 v{PKK+i}, v{DK+2*i}, v{DK+2*i+1}")
            e("s_lshl_b32 s53, s45, 10"); e("s_add_u32 s53, s53, s49")
            e(f"buffer_store_dwordx4 {vr(PKK,4)}, v2, s[24:27], s53 offen sc1")
            e("s_lshl_b32 s53, s45, 7"); e("s_add_u32 s53, s53, s49"); e(f"s_add_u32 s53, s53, {KV_K2}")
            e("s_mov_b32 exec_hi, 0"); e(f"buffer_store_dword v{PKK+4}, v4, s[24:27], s53 offen sc1"); e("s_mov_b32 exec_hi, -1")
            e("v_cmp_gt_u32 vcc, 32, v1"); e("s_nop 1")
            e(f"v_cndmask_b32 v204, 0, v{PKK+4}, vcc"); e("v_mov_b32 v205, 0")
            for i in range(4): e(f"v_dot2_f32_bf16 v205, v{PKK+i}, v{PKK+i}, v205")
            e("v_dot2_f32_bf16 v205, v204, v204, v205")
            e("s_nop 3"); e("v_mov_b32 v206, v205"); e("s_nop 1"); e("v_permlane32_swap_b32 v205, v206"); e("s_nop 1"); e("v_add_f32 v205, v205, v206")
            for dpp in ("quad_perm:[1,0,3,2]", "quad_perm:[2,3,0,1]", "row_half_mirror", "row_mirror"):
                e("s_nop 1"); e(f"v_max_f32_dpp v205, v205, v205 {dpp} row_mask:0xf bank_mask:0xf")
            e("ds_swizzle_b32 v206, v205 offset:0x401F"); e("s_waitcnt lgkmcnt(0)"); e("v_max_f32 v205, v205, v206")
            e("s_lshl_b32 s53, s6, 2"); e(f"s_add_u32 s53, s53, {WS_KN}"); e("v_mov_b32 v206, 0")
            e("s_mov_b64 exec, 1"); e(f"buffer_store_dword v205, v206, s[24:27], s53 offen sc1"); e("s_mov_b64 exec, -1")
            e("s_branch A_kvpub")
        else:
            for i in range(8): e(f"v_cvt_pk_bf16_f32 v{PKK+i}, v{DK+2*i}, v{DK+2*i+1}")
            e("v_cmp_eq_u32 vcc, 18, v3"); e("v_mov_b32 v204, 0x3f803f80"); e("s_nop 0")
            for i in range(8): e(f"v_cndmask_b32 v{PKK+i}, v{PKK+i}, v204, vcc")
            e("v_cmp_eq_u32 vcc, 19, v3"); e("s_nop 1")
            for i in range(8): e(f"v_cndmask_b32 v{PKK+i}, v{PKK+i}, v207, vcc")
            e(f"v_mul_u32_u24 v205, {VP}, v3"); e("v_lshlrev_b32 v206, 4, v5"); e("v_add_u32 v205, v205, v206")
            e("s_lshl_b32 s53, s45, 6"); e("s_add_u32 s53, s53, s49"); e(f"s_add_u32 s53, s53, {KV_V}")
            e("v_cmp_gt_u32 vcc, 20, v3"); e("s_and_saveexec_b64 s[54:55], vcc")
            e(f"buffer_store_dwordx4 {vr(PKK,4)}, v205, s[24:27], s53 offen sc1")
            e(f"buffer_store_dwordx4 {vr(PKK+4,4)}, v205, s[24:27], s53 offen offset:32 sc1")
            e("s_mov_b64 exec, s[54:55]")
    e.label("A_kvpub")
    if not KVDMA:
        e("s_lshl_b32 s53, s5, 10")
        NST = 27
        for k in range(27):
            for x in wdma_unit(k): e(x)
        e("s_waitcnt vmcnt(27)"); e("s_barrier")
        e("s_cmp_lg_u32 s5, 0"); e("s_cbranch_scc1 A_nokv2")
        e("s_lshl_b32 s9, s4, 1"); e("s_add_u32 s9, s9, s3"); e("s_lshl_b32 s9, s9, 2"); e(f"s_add_u32 s9, s9, {WS_KVFLAG}")
        e("v_mbcnt_lo_u32_b32 v204, -1, 0"); e("v_lshlrev_b32 v204, 7, v204"); e(f"v_mov_b32 v205, s{gen_mlp4.TAGR}")
        e("s_mov_b64 exec, 0xff")
        e("buffer_store_dword v205, v204, s[24:27], s9 offen sc1")
        e("s_mov_b64 exec, -1")
        e("s_branch A_nokv2")
    e("s_waitcnt vmcnt(0)")
    if AP == 2: stamp(e, 5)
    e("s_barrier")
    e("s_cmp_lg_u32 s5, 0"); e("s_cbranch_scc1 A_nokv2")
    e("s_lshl_b32 s9, s4, 1"); e("s_add_u32 s9, s9, s3"); e("s_lshl_b32 s9, s9, 2"); e(f"s_add_u32 s9, s9, {WS_KVFLAG}")
    e("v_mbcnt_lo_u32_b32 v204, -1, 0"); e("v_lshlrev_b32 v204, 7, v204"); e(f"v_mov_b32 v205, s{gen_mlp4.TAGR}")
    e("s_mov_b64 exec, 0xff")
    e("buffer_store_dword v205, v204, s[24:27], s9 offen sc1")
    e("s_mov_b64 exec, -1")
    if AP == 2:
        e("s_waitcnt vmcnt(0)"); stamp(e, 6); stamp_rt(e, 7); stamp_flush(e, 0, 58)
    e.label("A_nokv2")
    AP = int(os.environ.get("APROF", "0"))
    e("s_waitcnt vmcnt(18)")
    if AP == 1: stamp(e, 3)
    if AP == 2: e("s_endpgm")
    e("s_barrier")
    OFS = [0, 32, 72, 104]
    def wrd(gk):
        s_, hh = gk // 4, gk % 4
        d = 144 + 4 * (gk % 8)
        a_ = 137 if s_ < 18 else 138
        o = (s_ % 18) * 3072 + OFS[hh]
        e(f"ds_read_b64_tr_b16 {ar(d,2)}, v{a_} offset:{o}"); e(f"ds_read_b64_tr_b16 {ar(d+2,2)}, v{a_} offset:{o+768}")
    for gk in range(6): wrd(gk)
    for gk in range(144):
        s_, hh = gk // 4, gk % 4
        if gk % 2 == 0: e(f"s_waitcnt lgkmcnt({2*max(0, min(143, gk+5) - (gk+1))})")
        c0 = "0" if s_ == 0 else vr(O(hh),16)
        e(f"v_mfma_f32_32x32x16_bf16 {vr(O(hh),16)}, {ar(144+4*(gk%8),4)}, {ar(4*s_,4)}, {c0}")
        if gk + 6 == 48: e("s_waitcnt vmcnt(9)"); e("s_barrier")
        if gk + 6 == 96: e("s_waitcnt vmcnt(0)"); e("s_barrier")
        if gk + 6 < 144: wrd(gk + 6)
        if gk == int(os.environ.get('A_POLL', '123')):
            if AP == 1: e("s_waitcnt lgkmcnt(0)"); stamp(e, 4)
            e("s_and_b32 s57, s2, 7"); e("s_lshl_b32 s57, s57, 7"); e(f"s_add_u32 s57, s57, {WS_KVFLAG}")
            gen_mlp4.poll_flags(e, "A_kv", 0xffffffff, 120)
            if AP == 1: stamp(e, 5)
            e("v_lshlrev_b32 v6, 2, v1"); e(f"s_mov_b32 s11, {WS_KN}")
            e("buffer_load_dword v7, v6, s[24:27], s11 offen")
            e("s_lshl_b32 s18, s5, 10")
            for k in range(10):
                e(f"s_add_u32 m0, s18, {3*QB + k*4096}"); e(f"s_add_u32 s7, s18, {WS_K1 + k*4096}")
                e("buffer_load_dwordx4 v2, s[24:27], s7 offen lds")
    e("s_nop 7"); e("s_nop 3")
    e("v_cmp_gt_u32 vcc, 32, v1"); e("s_nop 1"); e("s_mov_b64 s[12:13], vcc")
    e(f"s_mov_b32 s9, {hexf(QSCALE)}")
    for i in range(4):
        Dq = O(i); odd = i % 2
        nr = 12 if odd else 10
        for r in range(nr): e(f"v_mul_f32 v{Dq+r}, s9, v{Dq+r}")
        PKq = 112
        for k in range(nr // 2): e(f"v_cvt_pk_bf16_f32 v{PKq+k}, v{Dq+2*k}, v{Dq+2*k+1}")
        if not odd:
            for k in range(4): e(f"v_mov_b32 v{Q1(i)+k}, v{PKq+k}")
            e(f"v_mov_b32 v{Q2(i)}, v{PKq+4}")
        else:
            e(f"v_mov_b32 v{Q1(i)}, v{PKq+1}"); e(f"v_mov_b32 v{Q1(i)+2}, v{PKq+3}"); e(f"v_mov_b32 v{Q2(i)}, v{PKq+5}")
            for (src_a, src_b, dst) in ((0, 2, 1), (2, 4, 3)):
                e(f"v_mov_b32 v120, v{PKq+src_a}"); e(f"v_mov_b32 v121, v{PKq+src_b}"); e("s_nop 1")
                e("v_permlane32_swap_b32 v120, v121"); e("s_nop 1")
                e(f"v_cndmask_b32 v{Q1(i)+dst}, v120, v121, s[12:13]")
    if not AP: stamp(e, 3)
    e("s_barrier")
    n0 = 10
    def emit_stage(lst, name):
        e("s_lshl_b32 s18, s5, 10")
        for k in range(30):
            if k == 29: e("s_cmp_lg_u32 s5, 0"); e(f"s_cbranch_scc1 {name}_x")
            e(f"s_add_u32 m0, s18, {k*4096}"); e(f"s_add_u32 s7, s18, {WS_K1 + QB + k*4096}")
            e("buffer_load_dwordx4 v2, s[24:27], s7 offen lds")
        e.label(f"{name}_x")
    st1 = None
    DEFER = int(os.environ.get("A_DEFER", "1"))
    def wpf():
        e("s_lshl_b32 s16, s4, 3"); e("s_add_u32 s16, s16, s3"); e("s_lshl_b32 s16, s16, 2"); e("s_add_u32 s16, s16, s5")
        e("v_lshlrev_b32 v201, 7, v1")
        e("s_lshl_b32 s17, s16, 13")
        e(f"s_add_u32 s18, s17, {512*8192}")
        e("buffer_load_dword v204, v201, s[28:31], s17 offen")
        e("buffer_load_dword v205, v201, s[28:31], s18 offen")
        e("buffer_load_dword v206, v201, s[32:35], s17 offen")
        e("buffer_load_dword v207, v201, s[32:35], s18 offen")
        e("s_load_dwordx2 s[8:9], s[0:1], 32"); e("s_waitcnt lgkmcnt(0)")
        e("s_and_b32 s9, s9, 0xffff"); e("s_mov_b32 s10, 663552"); e("s_mov_b32 s11, 0x20000")
        e("buffer_load_dword v203, v201, s[8:11], s17 offen")
    if DEFER: n1 = 0; NPF = 0
    else:
        n1 = emit_stage(st1, "A_s1"); wpf(); NPF = 4
    for b in range(2):
        e(f"v_mov_b32 v{KV(b)+5}, 0x3f803f80"); e(f"v_mov_b32 v{KV(b)+6}, 0"); e(f"v_mov_b32 v{KV(b)+7}, 0")
    e(f"s_waitcnt vmcnt({n0 + n1 + NPF})")
    for dpp in ("quad_perm:[1,0,3,2]", "quad_perm:[2,3,0,1]", "row_half_mirror", "row_mirror"):
        e("s_nop 1"); e(f"v_max_f32_dpp v7, v7, v7 {dpp} row_mask:0xf bank_mask:0xf")
    e("ds_swizzle_b32 v8, v7 offset:0x401F"); e("s_waitcnt lgkmcnt(0)"); e("v_max_f32 v7, v7, v8")
    e("v_mov_b32 v8, v7"); e("s_nop 1"); e("v_permlane32_swap_b32 v7, v8"); e("s_nop 1"); e("v_max_f32 v7, v7, v8")
    e("v_cmp_gt_u32 vcc, 32, v1")
    e("s_mov_b64 s[12:13], vcc")
    for i in range(4):
        e(f"v_cndmask_b32 v{Q2(i)}, 0, v{Q2(i)}, s[12:13]")
        e("v_mov_b32 v8, 0")
        for k in range(4): e(f"v_dot2_f32_bf16 v8, v{Q1(i)+k}, v{Q1(i)+k}, v8")
        e(f"v_dot2_f32_bf16 v8, v{Q2(i)}, v{Q2(i)}, v8")
        e("s_nop 3"); e("v_mov_b32 v9, v8"); e("s_nop 1"); e("v_permlane32_swap_b32 v8, v9"); e("s_nop 1"); e("v_add_f32 v8, v8, v9")
        e("v_mul_f32 v8, v8, v7"); e("v_sqrt_f32 v8, v8"); e("s_nop 0")
        e(f"v_mul_f32 v8, {hexf(-1.001)}, v8")
        e(f"v_cvt_pk_bf16_f32 v9, v8, v8"); e("v_lshlrev_b32 v9, 16, v9"); e("v_sub_f32 v9, v8, v9")
        e(f"v_cvt_pk_bf16_f32 v9, v8, v9")
        e(f"v_cndmask_b32 v{Q2(i)+1}, 0, v9, s[12:13]")
        e(f"v_mov_b32 v{Q2(i)+2}, 0"); e(f"v_mov_b32 v{Q2(i)+3}, 0")
    e("s_mov_b32 s14, 0")
    e(f"s_waitcnt vmcnt({n1 + NPF}) lgkmcnt(0)")
    e("s_barrier")
    if AP == 1:
        stamp(e, 6); stamp_rt(e, 7); stamp_flush(e, 0, 58); e("s_endpgm")
    stamp(e, 4)
    e.label("A_run")
    e(f"v_add_u32 v{aK1}, {3*QB}, v2"); e(f"v_add_u32 v{aK2}, {3*QB + KV_K2}, v4")
    e(f"v_min_u32 v8, 19, v3"); e(f"v_mul_u32_u24 v8, {VP}, v8"); e("v_lshlrev_b32 v9, 4, v5"); e("v_add_u32 v8, v8, v9")
    e(f"v_add_u32 v{aV}, {3*QB + KV_V}, v8")
    def ldK(b, joff):
        e(f"ds_read_b128 {vr(KV(b),4)}, v{aK1} offset:{joff*1024}")
        e(f"ds_read_b32 v{KV(b)+4}, v{aK2} offset:{joff*128}")
    def ldV(b, joff):
        e(f"ds_read_b128 {vr(KV(b)+8,4)}, v{aV} offset:{joff*64}")
        e(f"ds_read_b128 {vr(KV(b)+12,4)}, v{aV} offset:{joff*64+32}")
    def qk1(sb, b, i): return f"v_mfma_f32_32x32x16_bf16 {vr(S(sb),16)}, {vr(KV(b),4)}, {vr(Q1(i),4)}, 0"
    def qk2(sb, b, i): return f"v_mfma_f32_32x32x16_bf16 {vr(S(sb),16)}, {vr(KV(b)+4,4)}, {vr(Q2(i),4)}, {vr(S(sb),16)}"
    def pv(i, b, m, czero=False): return f"v_mfma_f32_32x32x16_bf16 {vr(O(i),16)}, {vr(KV(b)+8+4*m,4)}, {vr(P+4*m,4)}, " + ("0" if czero else vr(O(i),16))
    ldK(0, 0); ldV(0, 0)
    e("s_lshl_b32 s18, s5, 10")
    e("s_lshl_b32 s16, s4, 3"); e("s_add_u32 s16, s16, s3"); e("s_lshl_b32 s16, s16, 2"); e("s_add_u32 s16, s16, s5")
    e("v_lshlrev_b32 v201, 7, v1"); e("s_lshl_b32 s17, s16, 13"); e(f"s_add_u32 s16, s17, {512*8192}")
    e("s_load_dwordx2 s[8:9], s[0:1], 32")
    e("s_waitcnt lgkmcnt(0)")
    e("s_and_b32 s9, s9, 0xffff"); e("s_mov_b32 s10, 663552"); e("s_mov_b32 s11, 0x20000")
    e("buffer_load_dword v203, v201, s[8:11], s17 offen")
    e(qk1(0, 0, 0)); e(qk2(0, 0, 0))
    e("s_nop 7"); e("s_nop 3")
    UN = 4
    NIT = 64 // UN
    e(f"s_mov_b32 s15, {NIT}")
    e("s_cmp_eq_u32 s14, 0"); e("s_cselect_b32 s20, -1, 0")
    def iteration(first):
        side = {}
        def put(slot, *ins): side.setdefault(slot, []).extend(ins)
        if first:
            put(0, "s_mov_b32 s21, 4096"); put(1, "s_mov_b32 s22, 512"); put(3, "s_mov_b32 s23, 256")
            fr = [sl for sl in range(4, 61) if not ((sl // 4) % 4 == 1 and sl % 4 >= 2) and not ((sl // 4) % 4 == 2 and sl % 4 in (0, 1, 3)) and not ((sl // 4) % 4 == 3 and sl % 4 == 3)]
            k = 0
            for u in range(29):
                put(fr[k], f"s_add_u32 m0, s18, {u*4096}", f"s_add_u32 s7, s18, {WS_K1 + QB + u*4096}", "buffer_load_dwordx4 v2, s[24:27], s7 offen lds"); k += 1
            put(fr[k], "s_cmp_eq_u32 s5, 0", "s_cselect_b32 s19, 4096, 0", f"s_add_u32 s19, s19, {28*4096}", "s_add_u32 m0, s18, s19", f"s_add_u32 s7, s18, {WS_K1 + QB}", "s_add_u32 s7, s7, s19",
                "buffer_load_dwordx4 v2, s[24:27], s7 offen lds"); k += 1
            for x in ("buffer_load_dword v204, v201, s[28:31], s17 offen", "buffer_load_dword v205, v201, s[28:31], s16 offen",
                      "buffer_load_dword v206, v201, s[32:35], s17 offen", "buffer_load_dword v207, v201, s[32:35], s16 offen"):
                put(fr[k], x); k += 1
        else:
            sc = ["s_and_b32 s19, s15, s20", f"s_mov_b32 s9, {QB}", "s_cmp_eq_u32 s15, 13", f"s_cselect_b32 s9, {(-3*QB) & 0xffffffff}, s9",
                  f"s_sub_u32 s21, s9, {12*1024}", f"s_sub_u32 s22, s9, {12*128}", f"s_sub_u32 s23, s9, {12*64}", "s_and_b32 s9, s15, 3", "s_cmp_eq_u32 s9, 1",
                  "s_cselect_b32 s21, s21, 4096", "s_cselect_b32 s22, s22, 512", "s_cselect_b32 s23, s23, 256"]
            free = [sl for sl in range(0, 48) if (sl // 4) % 4 in (0, 3) and not ((sl // 4) % 4 == 0 and sl % 4 == 2)]
            for k, x in enumerate(sc): put(free[k], x)
        for jj in range(UN):
            b = jj % 2; last = jj == UN - 1
            joff = 0 if last else jj + 1
            s1 = 4 * (4 * jj + 1); s2 = 4 * (4 * jj + 2)
            if last:
                if not first:
                    put(s1 + 0, f"s_cmp_lg_u32 s19, {NIT - (16 // UN) + 1}")
                    put(s1 + 1, "s_cbranch_scc1 A_nost", "s_waitcnt vmcnt(0)", "s_barrier", "A_nost:")
                put(s1 + 1, f"v_add_u32 v{aK1}, s21, v{aK1}", f"v_add_u32 v{aK2}, s22, v{aK2}")
            put(s1 + 2, f"ds_read_b128 {vr(KV(1-b),4)}, v{aK1} offset:{joff*1024}")
            put(s1 + 3, f"ds_read_b32 v{KV(1-b)+4}, v{aK2} offset:{joff*128}")
            if last: put(s2 + 0, f"v_add_u32 v{aV}, s23, v{aV}")
            put(s2 + 0, f"ds_read_b128 {vr(KV(1-b)+8,4)}, v{aV} offset:{joff*64}")
            put(s2 + 1, f"ds_read_b128 {vr(KV(1-b)+12,4)}, v{aV} offset:{joff*64+32}")
            put(s2 + 3, "s_waitcnt lgkmcnt(2)")
            put(4 * (4 * jj + 3) + 3, "s_waitcnt lgkmcnt(0)")
        put(61, "s_sub_u32 s15, s15, 1")
        if not first: put(62, "s_cmp_lg_u32 s15, 0")
        def S_(slot):
            for x in side.get(slot, []):
                if x.endswith(":"): e.label(x[:-1])
                else: e(x)
        for jj in range(UN):
            b = jj % 2
            for i in range(4):
                n = jj * 4 + i
                sb = n % 2
                i2 = (i + 1) % 4; b2 = b if i < 3 else 1 - b
                ip = (i - 1) % 4; bp = b if i > 0 else 1 - b
                def E(r): e(f"v_exp_f32 v{S(sb)+r}, v{S(sb)+r}")
                def C(k): e(f"v_cvt_pk_bf16_f32 v{P+k}, v{S(sb)+2*k}, v{S(sb)+2*k+1}")
                e(qk1(1 - sb, b2, i2)); S_(4 * n + 0)
                E(0); E(1); E(2); E(3)
                e(qk2(1 - sb, b2, i2)); S_(4 * n + 1)
                E(4); E(5); E(6); E(7); C(0); C(1)
                if not (first and n == 0): e(pv(ip, bp, 1))
                S_(4 * n + 2)
                E(8); E(9); E(10); E(11); C(2); C(3); E(12); E(13)
                e(pv(i, b, 0, czero=(first and jj == 0))); S_(4 * n + 3)
                E(14); E(15); C(4); C(5); C(6); C(7)
    iteration(True)
    if int(os.environ.get("LPROF", "0")): stamp(e, 3)
    e.label("A_loop")
    iteration(False)
    e("s_cbranch_scc1 A_loop")
    e("s_nop 1")
    e(pv(3, 1, 1))
    e("s_nop 7"); e("s_nop 3")
    e("s_cmp_lg_u32 s14, 0"); e("s_cbranch_scc1 A_fin")
    e(f"v_mov_b32 v10, {hexf(2.0**-40)}")
    e("s_mov_b64 s[16:17], 0")
    for i in range(4):
        e(f"v_cmp_nge_f32 vcc, v{O(i)+10}, v10"); e("s_nop 1"); e("s_or_b64 s[16:17], s[16:17], vcc")
    e("s_and_b32 s16, s16, -1")
    e("s_cbranch_scc0 A_fin")
    e("s_mov_b32 s14, 1")
    for i in range(4):
        e(f"v_mov_b32 v{Q2(i)+1}, 0"); e(f"v_mov_b32 v{O(i)}, 0xff800000")
    e("s_mov_b32 s15, 0")
    e.label("A_max")
    e("s_lshr_b32 s9, s15, 4"); e(f"s_mul_i32 s9, s9, {QB}"); e("s_and_b32 s10, s15, 15")
    e("s_lshl_b32 s11, s10, 10"); e("s_add_u32 s11, s11, s9"); e(f"v_add_u32 v{aK1}, s11, v2")
    e("s_lshl_b32 s11, s10, 7"); e("s_add_u32 s11, s11, s9"); e(f"s_add_u32 s11, s11, {KV_K2}"); e(f"v_add_u32 v{aK2}, s11, v4")
    ldK(0, 0); e("s_waitcnt lgkmcnt(0)")
    for i in range(4):
        e(qk1(0, 0, i)); e(qk2(0, 0, i)); e("s_nop 7"); e("s_nop 3")
        for r in range(0, 16, 2): e(f"v_max3_f32 v{O(i)}, v{S(0)+r}, v{S(0)+r+1}, v{O(i)}")
    e("s_add_u32 s15, s15, 1"); e("s_cmp_lg_u32 s15, 64"); e("s_cbranch_scc1 A_max")
    for i in range(4):
        e(f"v_mov_b32 v8, v{O(i)}"); e(f"v_mov_b32 v9, v{O(i)}"); e("s_nop 1"); e("v_permlane32_swap_b32 v8, v9"); e("s_nop 1")
        e("v_max_f32 v8, v8, v9"); e("v_sub_f32 v8, 0, v8")
        e(f"v_cvt_pk_bf16_f32 v9, v8, v8"); e("v_lshlrev_b32 v9, 16, v9"); e("v_sub_f32 v9, v8, v9")
        e(f"v_cvt_pk_bf16_f32 v9, v8, v9")
        e(f"v_cndmask_b32 v{Q2(i)+1}, 0, v9, s[12:13]")
    e("s_branch A_run")
    e.label("A_fin")
    stamp(e, 5)
    e("s_lshl_b32 s8, s6, 5"); e("s_lshl_b32 s9, s3, 2"); e("s_add_u32 s8, s8, s9"); e("s_lshl_b32 s8, s8, 10"); e(f"s_add_u32 s8, s8, {WS_O1}")
    e("s_lshl_b32 s9, s6, 12"); e("s_lshr_b32 s10, s3, 1"); e("s_lshl_b32 s10, s10, 10"); e("s_add_u32 s9, s9, s10")
    e("s_and_b32 s10, s3, 1"); e("s_lshl_b32 s10, s10, 9"); e("s_add_u32 s9, s9, s10"); e(f"s_add_u32 s9, s9, {WS_O2}")
    e("v_lshlrev_b32 v10, 4, v3")
    for i in range(4):
        e(f"v_mov_b32 v8, v{O(i)+10}"); e(f"v_mov_b32 v9, v{O(i)+10}"); e("s_nop 1"); e("v_permlane32_swap_b32 v8, v9"); e("s_nop 1")
        e("v_rcp_f32 v8, v8"); e("s_nop 0")
        for r in range(10): e(f"v_mul_f32 v{O(i)+r}, v8, v{O(i)+r}")
        for k in range(5): e(f"v_cvt_pk_bf16_f32 v{188+k}, v{O(i)+2*k}, v{O(i)+2*k+1}")
        e(f"buffer_store_dwordx4 {vr(188,4)}, v2, s[24:27], s8 offen offset:{i*1024}" + (" sc1" if gen_mlp4.TAIL else ""))
        e("s_mov_b32 exec_hi, 0")
        e(f"buffer_store_dword v192, v10, s[24:27], s9 offen offset:{i*4}" + (" sc1" if gen_mlp4.TAIL else ""))
        e("s_mov_b32 exec_hi, -1")
        e("s_nop 1")
    if gen_mlp4.TAIL:
        e("s_waitcnt vmcnt(0)"); e("s_barrier")
        e("s_cmp_lg_u32 s5, 0"); e("s_cbranch_scc1 A_nf")
        e("s_lshl_b32 s9, s4, 7"); e("s_lshl_b32 s10, s3, 2"); e("s_add_u32 s9, s9, s10"); e(f"s_add_u32 s9, s9, {WS_FLAG + 64}")
        gen_mlp4.set_flag(e, 9, 8)
        e.label("A_nf")
        gen_mlp4.arrive(e, 8)
    if PROF:
        e("s_waitcnt vmcnt(0)"); stamp(e, 6); stamp_rt(e, 7); stamp_flush(e, 0, 58)
    e("s_endpgm")


def gen_fusedK(e, roles):
    K = "main_kernel"
    kernel_head(e, K)
    e("s_cmp_ge_u32 s2, 256"); e("s_cbranch_scc1 MK_end")
    stamp_rt(e, 0); stamp(e, 1)
    if int(os.environ.get("CODEPF", "1")):
        e("s_getpc_b64 s[68:69]")
        e.label("MK_pc")
        e("v_lshrrev_b32 v126, 6, v0"); e("s_lshr_b32 s7, s2, 3"); e("s_lshl_b32 s7, s7, 2"); e("v_add_u32 v126, s7, v126")
        e("v_lshlrev_b32 v126, 3, v126"); e("v_and_b32 v127, 7, v0"); e("v_add_u32 v126, v126, v127"); e("v_lshlrev_b32 v126, 7, v126")
        e("v_and_b32 v127, 63, v0"); e("v_cmp_gt_u32 vcc, 8, v127"); e("s_nop 3"); e("s_mov_b64 s[8:9], vcc")
        e("s_mov_b32 s7, MK_codeend-MK_pc"); e("v_cmp_gt_u32 vcc, s7, v126"); e("s_nop 3"); e("s_and_b64 vcc, vcc, s[8:9]")
        e("s_and_saveexec_b64 s[8:9], vcc"); e("s_cbranch_execz MK_nopf")
        e("global_load_dword v128, v126, s[68:69]")
        e.label("MK_nopf")
        e("s_mov_b64 exec, s[8:9]")
    e("s_load_dwordx4 s[40:43], s[0:1], 0")
    e("s_load_dwordx4 s[56:59], s[0:1], 96")
    e("s_load_dwordx4 s[44:47], s[0:1], 16")
    e("s_load_dwordx4 s[52:55], s[0:1], 48")
    e("s_load_dwordx2 s[50:51], s[0:1], 64")
    e("s_load_dwordx2 s[48:49], s[0:1], 80")
    e("s_and_b32 s3, s2, 7"); e("s_lshr_b32 s4, s2, 3")
    e("v_lshrrev_b32 v2, 6, v0"); e("v_and_b32 v1, 63, v0"); e("s_nop 0"); e("v_readfirstlane_b32 s5, v2")
    e("s_cmp_ge_u32 s4, 16"); e("s_cbranch_scc1 MK_ida")
    e("s_lshr_b32 s6, s3, 1"); e("s_and_b32 s7, s3, 1"); e("s_and_b32 s8, s4, 3"); e("s_lshr_b32 s9, s4, 2")
    e("s_lshl_b32 s6, s6, 2"); e("s_add_u32 s4, s6, s8"); e("s_lshl_b32 s7, s7, 2"); e("s_add_u32 s3, s7, s9")
    e("s_branch MK_idd")
    e.label("MK_ida")
    e("s_sub_u32 s4, s4, 16")
    e("s_lshl_b32 s6, s3, 1"); e("s_and_b32 s7, s4, 1"); e("s_lshr_b32 s3, s4, 1"); e("s_add_u32 s4, s6, s7")
    e.label("MK_idd")
    e("s_lshl_b32 s6, s4, 2"); e("s_add_u32 s6, s6, s5")
    def common(e, attn):
        e("s_waitcnt lgkmcnt(0)")
        AP3 = int(os.environ.get("APROF", "0")) == 3
        if AP3: stamp(e, 2)
        srd(e, 64, 40, 2048 * 1152)
        if int(os.environ.get("COOPX", "1")):
            e("s_lshr_b32 s7, s2, 3"); e("s_lshl_b32 s7, s7, 2"); e("s_add_u32 s7, s7, s5")
            e("s_and_b32 s8, s2, 7"); e("s_lshr_b32 s9, s8, 1")
            e("v_lshlrev_b32 v118, 7, v1")
            e("s_mul_i32 s10, s7, 4608"); e("s_mul_i32 s11, s9, 589824"); e("s_add_u32 s10, s10, s11")
            e("s_mov_b32 exec_hi, 15")
            e("buffer_load_dword v119, v118, s[64:67], s10 offen")
            e("s_mov_b32 exec_hi, -1")
        e("s_mov_b64 s[94:95], s[42:43]")
        if int(os.environ.get("WQEARLY", "0")):
            srd(e, 12, 94, 576 * 1152)
            e("s_lshr_b32 s7, s2, 3"); e("s_lshl_b32 s7, s7, 2"); e("s_add_u32 s7, s7, s5"); e("s_mul_i32 s10, s7, 5248")
            e("v_lshlrev_b32 v117, 7, v1")
            e("s_mov_b32 exec_hi, 0x1ff")
            e("buffer_load_dword v129, v117, s[12:15], s10 offen")
            e("s_mov_b32 exec_hi, -1")
        if attn:
            e("s_cmp_eq_u32 s3, 0"); e("s_cselect_b32 s92, s44, s46"); e("s_cselect_b32 s93, s45, s47")
            srd(e, 16, 92, 576 * 36)
            e("s_cmp_ge_u32 s3, 2"); e("s_cbranch_scc1 A_nokv1")
            for k in range(6):
                e(f"s_mov_b32 s9, {k*4096}"); e(f"buffer_load_dwordx4 {vr(208+4*k,4)}, v150, s[16:19], s9 offen")
            e.label("A_nokv1")
        xdma(e, 112)
        if AP3:
            stamp(e, 3); e("s_waitcnt vmcnt(30)"); stamp(e, 4); e("s_waitcnt vmcnt(0)"); stamp(e, 5); stamp(e, 6); stamp_rt(e, 7); stamp_flush(e, 0, 58); e("s_endpgm")
        e(f"s_add_u32 s96, s58, {WS_EPOCH}"); e("s_addc_u32 s97, s59, 0")
        e("s_load_dword s98, s[96:97], 0")
        srd(e, 24, 58, WS_END); srd(e, 28, 52, 576 * 9216); srd(e, 32, 50, 4608 * 1152); srd(e, 36, 54, 9216); srd(e, 60, 56, 256)
        srd(e, 12, 94, 576 * 1152)
        if not attn: srd(e, 20, 48, 1152)
    e("s_lshr_b32 s7, s2, 3"); e("s_cmp_ge_u32 s7, 16")
    if roles == "attn": e("s_cbranch_scc0 MK_end"); e("s_branch A_start")
    elif roles == "mlp": e("s_cbranch_scc1 MK_end")
    else: e("s_cbranch_scc1 A_start")
    gen_mlp4.gen_mlp4(e, common, xfrag_addr, coop)
    gen_attn_f(e, common)
    e.label("MK_end"); e("s_endpgm")
    e.label("MK_codeend")
    return kernel_desc(K, 512, 100, 256)
def add(body, descs, launches, which):
    roles = "both"
    if which in ("attn", "mlp"): roles = which
    descs.append(gen_fusedK(body, roles)); launches.append(f"; @launch kernel=main_kernel grid=(256,1,1) block=(256,1,1) lds={LDS_MAIN}")
    if not gen_mlp4.TAIL:
        import gen_final
        gen_final.add(body, descs, launches)
```

```python
import os, math
from gen import *
X_NODMA = int(os.environ.get("X_NODMA", "0")); X_NOGELU = int(os.environ.get("X_NOGELU", "0"))
ST_SC1 = " sc1" if int(os.environ.get("ST_SC1", "1")) else ""
PRERED = int(os.environ.get('PRERED', '1'))
SLOT = [0, 36864, 73728, 110592]; BIAS = 147456

TAIL = int(os.environ.get('TAIL', '1'))
INMODE = 3 if TAIL else 0
INRED = False
INPUB = bool(TAIL)
RCL = []
NEXTRA = [0]
MP2 = int(os.environ.get('MPROF2', '0'))
OUTSC = os.environ.get('OUTSC', '')
WS_DUMMY = WS_FLAG - 0x1000
TAGR = 98

def poll_flags(e, name, lo_mask, vtmp, sreg=57, cmp=None, inv=True):
    e("s_cmp_lg_u32 s5, 0"); e(f"s_cbranch_scc1 {name}_w")
    e("v_mbcnt_lo_u32_b32 v{0}, -1, 0".format(vtmp)); e(f"v_lshlrev_b32 v{vtmp}, 2, v{vtmp}")
    e(f"s_mov_b32 exec_lo, {hex(lo_mask)}"); e("s_mov_b32 exec_hi, 0")
    e.label(f"{name}_p")
    e(f"buffer_load_dword v{vtmp+1}, v{vtmp}, s[24:27], s{sreg} offen sc1")
    e("s_waitcnt vmcnt(0)")
    e(f"v_cmp_ne_u32 vcc, s{cmp or TAGR}, v{vtmp+1}"); e("s_nop 7")
    e(f"s_cbranch_vccz {name}_d")
    e("s_sleep 4"); e(f"s_branch {name}_p")
    e.label(f"{name}_d")
    e("s_mov_b64 exec, -1")
    if inv: e("buffer_inv sc1"); e("s_waitcnt vmcnt(0)")
    e.label(f"{name}_w")
    e("s_barrier")
def set_flag(e, word_sreg_expr, vtmp):
    e("s_mov_b64 exec, 1"); e(f"v_mov_b32 v{vtmp}, 0"); e(f"v_mov_b32 v{vtmp+1}, s{TAGR}")
    e(f"buffer_store_dword v{vtmp+1}, v{vtmp}, s[24:27], s{word_sreg_expr} offen sc1")
    e("s_mov_b64 exec, -1")

def mktag(e):
    e(f"s_add_u32 s{TAGR}, s{TAGR}, 1")
def arrive(e, vt):
    e("s_mov_b64 s[94:95], exec")
    e("s_cmp_eq_u32 s5, 0"); e("s_cselect_b64 exec, 1, 0")
    e(f"v_mov_b32 v{vt}, 0"); e(f"v_mov_b32 v{vt+1}, 1")
    e("s_cbranch_execz L_arr%d" % len(ARR));
    e(f"buffer_atomic_add v{vt+1}, v{vt}, s[60:63], 0 offen offset:4")
    e.label("L_arr%d" % len(ARR)); ARR.append(1)
    e("s_mov_b64 exec, s[94:95]")
ARR = []
def gen_tail(e, vL16):
    SPL = 64 * 18 * 2048
    e("s_load_dwordx2 s[42:43], s[0:1], 72"); e("s_load_dwordx2 s[92:93], s[0:1], 88")
    e("s_waitcnt vmcnt(0) lgkmcnt(0)"); e("s_barrier")
    srd(e, 20, 42, 1152); srd(e, 12, 92, 2048 * 1152)
    e("s_add_u32 s96, s97, 9")
    e("s_cmp_lg_u32 s5, 0"); e("s_cbranch_scc1 T_nf1")
    e("s_mov_b64 exec, 1"); e("v_mov_b32 v13, 0"); e("v_mov_b32 v14, s96")
    e("buffer_store_dword v14, v13, s[24:27], s99 offen sc1")
    e("s_mov_b64 exec, -1")
    e.label("T_nf1")
    arrive(e, 13)
    e("v_mbcnt_lo_u32_b32 v1, -1, 0"); e("v_mbcnt_hi_u32_b32 v1, -1, v1")
    e("s_lshl_b32 s52, s3, 7")
    e("v_and_b32 v6, 31, v1"); e("v_lshrrev_b32 v7, 5, v1")
    tr_lane_addr(e, 8, 1, 2, 3, 4)
    e("v_bfe_u32 v2, v1, 3, 1"); e("v_lshlrev_b32 v3, 2, v7"); e("v_add_u32 v2, v2, v3"); e("v_mul_u32_u24 v2, 18, v2")
    e("v_bfe_u32 v3, v1, 2, 1"); e("v_add_u32 v2, v2, v3"); e("v_add_u32 v2, 16, v2"); e("v_lshlrev_b32 v9, 6, v2")
    e("v_bfe_u32 v2, v1, 4, 1"); e("v_lshlrev_b32 v2, 5, v2"); e("v_add_u32 v9, v9, v2")
    e("v_and_b32 v2, 3, v1"); e("v_lshlrev_b32 v2, 3, v2"); e("v_add_u32 v9, v9, v2")
    e("v_add_u32 v10, 36864, v8"); e("v_add_u32 v11, 36864, v9")
    e("s_add_u32 s8, s3, 1"); e("s_cmp_eq_u32 s3, 7"); e("s_cselect_b32 s8, 9, s8")
    e("s_add_u32 s10, s97, s8"); e("s_sub_u32 s11, 9, s8")
    e("s_cmp_lg_u32 s5, 0"); e("s_cbranch_scc1 T_pp_w")
    e("v_lshlrev_b32 v13, 2, v1")
    e.label("T_pp_p")
    e("s_mov_b64 exec, 0xff"); e("buffer_load_dword v14, v13, s[24:27], s57 offen sc1"); e("s_waitcnt vmcnt(0)")
    e("v_subrev_u32 v14, s10, v14"); e("v_cmp_lt_u32 vcc, s11, v14"); e("s_mov_b64 exec, -1"); e("s_nop 4")
    e("s_cbranch_vccz T_pp_w"); e("s_sleep 2"); e("s_branch T_pp_p")
    e.label("T_pp_w")
    e("s_barrier")
    e("s_mul_i32 s50, s6, 18"); e("s_lshl_b32 s54, s3, 1"); e("s_add_u32 s50, s50, s54"); e("s_lshl_b32 s50, s50, 11"); e(f"s_add_u32 s50, s50, {WS_P}")
    e("s_lshl_b32 s46, s6, 7"); e(f"s_add_u32 s46, s46, {WS_G}"); e("v_lshlrev_b32 v4, 2, v6"); e("v_lshlrev_b32 v3, 3, v7")
    e("buffer_load_dword v5, v4, s[24:27], s46 offen sc1")
    def ps_sum(PS, ntiles, lbase, b2reg):
        for sp in range(NSPLIT):
            for j in range(ntiles):
                for k in range(8):
                    src = lbase + 8 * ntiles * sp + 8 * j + k
                    c0 = "0" if sp == 0 else f"v{PS+16*j+2*k}"; c1 = "0" if sp == 0 else f"v{PS+16*j+2*k+1}"
                    e(f"v_dot2_f32_bf16 v{PS+16*j+2*k}, v{src}, s64, {c0}"); e(f"v_dot2_f32_bf16 v{PS+16*j+2*k+1}, v{src}, s65, {c1}")
        e("s_nop 3")
        for j in range(ntiles):
            for r in range(16): e(f"v_mul_f32 v{PS+16*j+r}, {hexf(1/KAPPA)}, v{PS+16*j+r}")
            for k in range(8):
                e(f"v_dot2_f32_bf16 v{PS+16*j+2*k}, v{b2reg+8*j+k}, s64, v{PS+16*j+2*k}"); e(f"v_dot2_f32_bf16 v{PS+16*j+2*k+1}, v{b2reg+8*j+k}, s65, v{PS+16*j+2*k+1}")
        e("s_nop 3")
    MB = 159744
    e(f"v_mov_b32 v14, {MB}"); e("v_mov_b32 v12, 0".replace("v12", "v13"))
    e("s_cmp_lg_u32 s5, 0"); e("s_cbranch_scc1 T_mbi"); e("ds_write_b32 v14, v13"); e.label("T_mbi")
    for j in range(2):
        for q in range(4): e(f"buffer_load_dwordx2 {vr(80+8*j+2*q,2)}, v3, s[20:23], s52 offen offset:{j*64+q*16}")
    for sp in range(NSPLIT):
        e(f"s_add_u32 s54, s50, {sp*SPL}")
        for u in range(4): e(f"buffer_load_dwordx4 {vr(96+16*sp+4*u,4)}, v{vL16}, s[24:27], s54 offen offset:{u*1024} sc1")
    e("s_lshr_b32 s47, s3, 1")
    e("s_and_b32 s8, s3, 1"); e("s_lshl_b32 s48, s8, 6"); e("s_add_u32 s48, s48, 1024")
    e("s_mul_i32 s49, s6, 18"); e("s_add_u32 s49, s49, s8"); e("s_add_u32 s49, s49, 16"); e("s_lshl_b32 s49, s49, 11"); e(f"s_add_u32 s49, s49, {WS_P}")
    e("v_mul_u32_u24 v2, 1152, v6"); e("v_lshlrev_b32 v4, 4, v7"); e("v_add_u32 v2, v2, v4")
    e(f"s_mul_i32 s51, s6, {32*1152}"); e("s_add_u32 s51, s51, s52")
    e("s_lshl_b32 s55, s6, 15"); e(f"s_add_u32 s55, s55, {WS_O1}")
    e("s_lshl_b32 s56, s6, 12"); e(f"s_add_u32 s56, s56, {WS_O2}")
    ACC = [16, 32]
    def rdk(k, img, slot):
        d = 144 + 4 * slot
        am, ae = (8, 9) if img == 0 else (10, 11)
        if k < 32: a_, o1, o2 = am, k * 1152, k * 1152 + 512
        else: a_, o1, o2 = ae, (k - 32) * 8 * 1152, (k - 32) * 8 * 1152 + 2 * 1152
        e(f"ds_read_b64_tr_b16 {ar(d,2)}, v{a_} offset:{o1}"); e(f"ds_read_b64_tr_b16 {ar(d+2,2)}, v{a_} offset:{o2}")
    def mm_block(ks):
        fr = [(k, img) for k in ks for img in range(2)]
        for i, (k, img) in enumerate(fr): rdk(k, img, i)
        for i, (k, img) in enumerate(fr):
            e(f"s_waitcnt lgkmcnt({min(15, 2*(len(fr)-1-i))})")
            e(f"v_mfma_f32_32x32x16_bf16 {vr(ACC[img],16)}, {ar(144+4*i,4)}, {ar(4*k,4)}, {vr(ACC[img],16)}")
    for r in range(32): e(f"v_mov_b32 v{16+r}, 0")
    e("s_waitcnt lgkmcnt(0)"); e("s_barrier")
    e("s_mov_b32 s8, 0x2000"); e("s_mov_b32 s9, 0")
    e("s_cmp_eq_u32 s5, s47"); e("s_cbranch_scc1 T_own"); e("s_mov_b32 s8, 0x3000"); e("s_mov_b32 s9, 0x1000"); e.label("T_own")
    e("v_mbcnt_lo_u32_b32 v15, -1, 0"); e("v_lshlrev_b32 v15, 2, v15")
    e.label("T_round")
    e("s_cmp_lg_u32 s5, 0"); e("s_cbranch_scc1 T_rd_mb")
    e("s_mov_b32 exec_lo, 0xff00ff"); e("s_mov_b32 exec_hi, 0")
    e("buffer_load_dword v13, v15, s[24:27], s57 offen sc1")
    e("s_waitcnt vmcnt(0)")
    e(f"v_cmp_eq_u32 vcc, s{TAGR}, v13"); e("s_nop 4"); e("s_lshr_b32 s10, vcc_lo, 16")
    e("v_cmp_eq_u32 vcc, s96, v13"); e("s_mov_b64 exec, -1"); e("s_nop 4")
    e("s_and_b32 s7, vcc_lo, 0xff"); e("s_cmp_eq_u32 s7, 0xff"); e("s_cselect_b32 s7, 0x1000, 0"); e("s_or_b32 s10, s10, s7")
    e("v_mov_b32 v13, s10"); e("ds_write_b32 v14, v13")
    e("s_branch T_have")
    e.label("T_rd_mb")
    e("ds_read_b32 v13, v14"); e("s_waitcnt vmcnt(0) lgkmcnt(0)"); e("v_readfirstlane_b32 s10, v13"); e("s_nop 3")
    e.label("T_have")
    e("s_andn2_b32 s46, s8, s9")
    e("s_lshr_b32 s11, s10, 1"); e("s_and_b32 s11, s11, s10")
    for x in range(4):
        e(f"s_bitcmp1_b32 s11, {2*x}"); e(f"s_cselect_b32 s7, {1 << (8+x)}, 0"); e("s_or_b32 s10, s10, s7")
    e("s_bitcmp1_b32 s9, 13"); e("s_cbranch_scc1 T_b12"); e("s_andn2_b32 s10, s10, 0x1000"); e.label("T_b12")
    e("s_andn2_b32 s11, s10, s8"); e("s_or_b32 s8, s8, s11")
    for g in range(8):
        e(f"s_bitcmp1_b32 s11, {g}"); e(f"s_cbranch_scc0 T_nl{g}")
        e(f"s_add_u32 s54, s55, {g*4096}")
        for i in range(4): e(f"buffer_load_dwordx4 {ar(16*g+4*i,4)}, v{vL16}, s[24:27], s54 offen offset:{i*1024} sc1")
        e.label(f"T_nl{g}")
    for x in range(4):
        e(f"s_bitcmp1_b32 s11, {8+x}"); e(f"s_cbranch_scc0 T_nlx{x}")
        e(f"buffer_load_dwordx4 {ar(128+4*x,4)}, v{vL16}, s[24:27], s56 offen offset:{x*1024} sc1")
        e.label(f"T_nlx{x}")
    e("s_bitcmp1_b32 s11, 12"); e("s_cbranch_scc0 T_nle")
    for q in range(4): e(f"buffer_load_dwordx2 {vr(240+2*q,2)}, v3, s[20:23], s48 offen offset:{q*16}")
    for sp in range(NSPLIT):
        e(f"s_add_u32 s54, s49, {sp*SPL}")
        for u in range(2): e(f"buffer_load_dwordx4 {vr(96+8*sp+4*u,4)}, v{vL16}, s[24:27], s54 offen offset:{u*1024} sc1")
    e.label("T_nle")
    e("s_or_b32 s9, s9, s46")
    e("s_bitcmp1_b32 s46, 13"); e("s_cbranch_scc0 T_nc13")
    ps_sum(48, 2, 96, 80)
    if not MP2: stamp(e, 5)
    e.label("T_nc13")
    e("s_bitcmp1_b32 s46, 12"); e("s_cbranch_scc0 T_nc12")
    ps_sum(224, 1, 96, 240)
    e.label("T_nc12")
    for g in range(8):
        e(f"s_bitcmp1_b32 s46, {g}"); e(f"s_cbranch_scc0 T_nc{g}")
        mm_block([4 * g + i for i in range(4)])
        e.label(f"T_nc{g}")
    for x in range(4):
        e(f"s_bitcmp1_b32 s46, {8+x}"); e(f"s_cbranch_scc0 T_ncx{x}")
        mm_block([32 + x])
        e.label(f"T_ncx{x}")
    e("s_cmp_eq_u32 s9, 0x3fff"); e("s_cbranch_scc1 T_alld")
    e("s_or_b32 s7, s11, s46"); e("s_cmp_lg_u32 s7, 0"); e("s_cbranch_scc1 T_round")
    e("s_sleep 3"); e("s_branch T_round")
    e.label("T_alld")
    if not MP2: stamp(e, 4)
    def out_tile(A, PS, pk, soff, off):
        for r in range(16):
            e(f"v_sub_f32 v{A+r}, v{A+r}, v{PS+r}"); e(f"v_fma_f32 v{A+r}, v5, v{A+r}, v{PS+r}")
        for k in range(8): e(f"v_cvt_pk_bf16_f32 v{pk+k}, v{A+2*k}, v{A+2*k+1}")
        e("s_nop 1")
        for base in (pk, pk + 4):
            e(f"v_permlane32_swap_b32 v{base}, v{base+2}"); e(f"v_permlane32_swap_b32 v{base+1}, v{base+3}")
        e("s_nop 1")
        e(f"buffer_store_dwordx4 {vr(pk,4)}, v2, s[12:15], s{soff} offen offset:{off}" + OUTSC)
        e(f"buffer_store_dwordx4 {vr(pk+4,4)}, v2, s[12:15], s{soff} offen offset:{off+32}" + OUTSC)
    e("s_cmp_lg_u32 s5, s47"); e("s_cbranch_scc1 T_noE0")
    e("v_add_u32 v8, 73728, v8"); e("v_add_u32 v9, 73728, v9")
    def rdE(k):
        d = 144 + 4 * (k % 8)
        if k < 32: a_, o1, o2 = 8, k * 1152, k * 1152 + 512
        else: a_, o1, o2 = 9, (k - 32) * 8 * 1152, (k - 32) * 8 * 1152 + 2 * 1152
        e(f"ds_read_b64_tr_b16 {ar(d,2)}, v{a_} offset:{o1}"); e(f"ds_read_b64_tr_b16 {ar(d+2,2)}, v{a_} offset:{o2}")
    for k in range(6): rdE(k)
    for k in range(36):
        e(f"s_waitcnt lgkmcnt({2*(min(35, k+5)-k)})")
        c = "0" if k == 0 else vr(96, 16)
        e(f"v_mfma_f32_32x32x16_bf16 {vr(96,16)}, {ar(144+4*(k%8),4)}, {ar(4*k,4)}, {c}")
        if k + 6 < 36: rdE(k + 6)
    e.label("T_noE0")
    e("s_nop 7"); e("s_nop 3")
    for j in range(2): out_tile(ACC[j], 48 + 16 * j, 80 + 8 * j, 51, j * 64)
    e("s_cmp_lg_u32 s5, s47"); e("s_cbranch_scc1 T_done")
    e(f"s_mul_i32 s8, s6, {32*1152}"); e("s_add_u32 s8, s8, s48")
    out_tile(96, 224, 112, 8, 0)
    e.label("T_done")
    e("s_or_b32 s8, s3, s4"); e("s_or_b32 s8, s8, s5"); e("s_cmp_lg_u32 s8, 0"); e("s_cbranch_scc1 T_end")
    e("s_mov_b64 exec, 1"); e("v_mov_b32 v13, 0")
    e.label("T_ep")
    e("buffer_load_dword v14, v13, s[60:63], 0 offen offset:4 sc1")
    e("s_waitcnt vmcnt(0)")
    e("v_readfirstlane_b32 s8, v14"); e("s_nop 3")
    e("s_cmp_ge_u32 s8, 256"); e("s_cbranch_scc1 T_epd")
    e("s_sleep 2"); e("s_branch T_ep")
    e.label("T_epd")
    e(f"v_mov_b32 v14, s{TAGR}"); e(f"s_mov_b32 s8, {WS_EPOCH}")
    e("buffer_store_dword v14, v13, s[24:27], s8 offen")
    e("s_mov_b64 exec, -1")
    e.label("T_end")

GWL = BIAS + 2304
def gen_mlp4(e, common, xfrag_addr, coop):
    YF = lambda s: ar(4 * s, 4)
    NR = 8
    RING = lambda k: 144 + 4 * (k % NR)
    SB = lambda b, u: 16 + 32 * b + 16 * u
    PR = lambda c: 112 + 8 * c
    PK = 80
    T = [96, 97, 98, 99, 100, 101]
    aX = [104, 105, 106, 107]; aY = [108, 109, 110, 111]
    dW1 = [2, 3, 4, 5]; dW2 = [6, 7, 8, 9]; aB, cC0, vL16 = 10, 11, 12
    D = 6
    e.label("M_start")
    e(f"v_lshlrev_b32 v{vL16}, 4, v1")
    e("v_lshlrev_b32 v13, 3, v0"); e("v_lshlrev_b32 v14, 4, v0")
    e("v_and_b32 v74, 31, v1"); e("v_lshrrev_b32 v75, 5, v1")
    e("v_and_b32 v15, 3, v1"); e("v_lshlrev_b32 v15, 4, v15")
    e("v_lshrrev_b32 v16, 5, v1"); e("v_lshlrev_b32 v16, 6, v16"); e("v_add_u32 v15, v15, v16")
    e("v_bfe_u32 v16, v1, 2, 3")
    e(f"v_mul_u32_u24 v{dW1[0]}, 9216, v16"); e(f"v_add_u32 v{dW1[0]}, v{dW1[0]}, v15")
    e(f"v_mul_u32_u24 v{dW2[0]}, 1152, v16"); e(f"v_add_u32 v{dW2[0]}, v{dW2[0]}, v15")
    S1, S2 = 8 * 9216, 8 * 1152
    for q in range(1, 4):
        e(f"v_add_u32 v{dW1[q]}, {q*(S1-1024)}, v{dW1[0]}"); e(f"v_add_u32 v{dW2[q]}, {q*(S2-1024)}, v{dW2[0]}")
    e("v_lshrrev_b32 v15, 5, v1")
    e("v_bfe_u32 v16, v1, 2, 2"); e("v_lshlrev_b32 v16, 6, v16")
    e("v_bfe_u32 v17, v1, 4, 1"); e("v_lshlrev_b32 v17, 5, v17"); e("v_add_u32 v16, v16, v17")
    e("v_and_b32 v17, 3, v1"); e("v_lshlrev_b32 v17, 3, v17"); e("v_add_u32 v16, v16, v17")
    e("v_lshlrev_b32 v17, 10, v15"); e("v_add_u32 v17, v17, v16")
    e("v_lshlrev_b32 v18, 8, v15"); e("v_add_u32 v18, v18, v16")
    for k in range(4):
        e(f"v_add_u32 v{aX[k]}, {SLOT[k]}, v17"); e(f"v_add_u32 v{aY[k]}, {SLOT[k]}, v18")
    e("v_lshlrev_b32 v15, 4, v15"); e(f"v_add_u32 v{aB}, {BIAS}, v15")
    e(f"v_mov_b32 v{cC0}, {hexf(GC0)}")
    xfrag_addr(e, 68, 72)
    common(e, False)
    e("v_cmp_gt_u32 vcc, 144, v0"); e("s_nop 1"); e("s_mov_b64 s[46:47], vcc")
    e(f"s_mul_i32 s40, s5, {72*9216}"); e("s_mul_i32 s42, s3, 1152"); e("s_add_u32 s40, s40, s42")
    e(f"s_mul_i32 s41, s3, {576*1152}"); e(f"s_mul_i32 s42, s5, {72*1152}"); e("s_add_u32 s41, s41, s42")
    e("s_mul_i32 s43, s5, 9216")
    vq = []
    def vm_issue(tag, ins):
        for x in ins: e(x)
        vq.append(tag)
    def vm_need(tag):
        idx = max((i for i, t in enumerate(vq) if t == tag), default=None)
        if idx is None: return None
        n = len(vq) - 1 - idx
        del vq[:idx + 1]
        return n
    REC = {"mode": None, "log": [], "over": None, "i": 0}
    def vm_wait(tag):
        n = vm_need(tag)
        if REC["mode"] == "rec": REC["log"].append(n)
        if REC["mode"] == "use":
            n = REC["over"][REC["i"]]; REC["i"] += 1
        if n is not None: e(f"s_waitcnt vmcnt({n})")
    def dma_groups(phi, ybase=None, solo=False):
        slot = SLOT[phi % 4]; out = []
        t, hh = phi // 2, phi % 2
        for ii in range(9):
            q = 0 if solo else ii % 4; g = []
            if phi < 18:
                if q == 0: g += [f"s_add_u32 m0, s43, {slot + ii*1024}", f"s_add_u32 s44, s40, {hh*288*9216 + ii*S1 + t*128}"]
                g.append(f"buffer_load_dwordx4 v{dW1[q]}, s[28:31], s44 offen offset:{q*1024} lds")
            else:
                np_ = (t - 9) if ybase is None else (t - ybase)
                if q == 0: g += [f"s_add_u32 m0, s43, {slot + ii*1024}", f"s_add_u32 s44, s41, {hh*288*1152 + ii*S2 + np_*128}"]
                g.append(f"buffer_load_dwordx4 v{dW2[q]}, s[32:35], s44 offen offset:{q*1024} lds")
            out.append(g)
        return out
    class LT:
        def __init__(self): self.q = []
        def issue(self, tag, ins):
            for x in ins: e(x); self.q.append(tag)
        def wait(self, tag):
            idx = max((i for i, t in enumerate(self.q) if t == tag), default=None)
            if idx is None: return
            n = len(self.q) - 1 - idx
            e(f"s_waitcnt lgkmcnt({min(n, 15)})")
            self.q = self.q[idx + 1:] if n <= 15 else self.q[len(self.q) - 15:]
    lt = LT()
    def frag_rd(phi, i):
        s, u = i // 2, i % 2
        d = RING(phi * 36 + i)
        if phi < 18:
            a = aX[phi % 4]; o1 = s * 2048 + u * 512; o2 = o1 + 256
        else:
            a = aY[phi % 4]; o1 = s * 2048 + u * 512; o2 = o1 + 1024
        return [f"ds_read_b64_tr_b16 {ar(d,2)}, v{a} offset:{o1}", f"ds_read_b64_tr_b16 {ar(d+2,2)}, v{a} offset:{o2}"]
    def mfma(phi, i):
        t, hh = phi // 2, phi % 2
        s, u = i // 2, i % 2
        ks = 18 * hh + s
        A = ar(RING(phi * 36 + i), 4); Dst = vr(SB(t % 2, u), 16)
        if phi < 18: return f"v_mfma_f32_32x32x16_bf16 {Dst}, {A}, {YF(ks)}, {Dst}"
        B = vr(PR(ks // 2) + 4 * (ks % 2), 4)
        C = "0" if ks == 0 else Dst
        return f"v_mfma_f32_32x32x16_bf16 {Dst}, {A}, {B}, {C}"
    def gelu(x, t):
        return [f"v_fma_f32 v{t}, v{x}, v{x}, v{cC0}", f"v_mul_f32 v{t}, v{x}, v{t}", f"v_exp_f32 v{t}, -v{t}",
                f"v_add_f32 v{t}, 1.0, v{t}", f"v_rcp_f32 v{t}, v{t}", f"v_mul_f32 v{x}, v{x}, v{t}"]
    def gelu_tile(b, u, c):
        out = []
        base = SB(b, u)
        for g0 in (0, 3, 6, 9, 12, 14):
            grp = list(range(g0, g0 + 3)) if g0 < 12 else [g0, g0 + 1]
            seqs = [gelu(base + r, T[(i + (3 if (g0 // 3) % 2 else 0)) % 6]) for i, r in enumerate(grp)]
            for op in range(6):
                for sq in seqs: out.append(sq[op])
        for k in range(8): out.append(f"v_cvt_pk_bf16_f32 v{PR(c)+k}, v{base+2*k}, v{base+2*k+1}")
        return out
    def bias_rd(b, u, c): return [f"ds_read_b128 {vr(SB(b,u)+4*q,4)}, v{aB} offset:{c*128+q*32}" for q in range(4)]
    def cost(x): return 8 if x.startswith(("v_exp", "v_rcp")) else 4
    WP = 2
    def need(gk):
        if gk % WP == 0:
            for kk in range(gk + WP - 1, gk - 1, -1):
                if ("f", kk) in lt.q:
                    lt.wait(("f", kk)); return
    def spread(items, n):
        tot = sum(cost(x) for x in items if isinstance(x, str)) or 1
        out = [[] for _ in range(n)]; acc = 0; g = 0
        for x in items:
            while g < n - 1 and acc >= tot * (g + 1) / n: g += 1
            out[g].append(x); acc += cost(x) if isinstance(x, str) else 4
        return out
    def phase(phi, fills, dma, next_phi, extra=None, ybase=None, pend=None):
        dma = list(dma)
        for i in range(36):
            gk = phi * 36 + i
            e(mfma(phi, i))
            nxt = i + D
            if nxt == 36 and next_phi is not None:
                vm_wait(("d", next_phi))
                e("s_barrier")
            if nxt < 36: lt.issue(("f", gk + D), frag_rd(phi, nxt))
            elif next_phi is not None: lt.issue(("f", gk + D), frag_rd(next_phi, nxt - 36))
            if extra and i in extra: extra[i]()
            if dma and i % 4 == 1:
                g = dma.pop(0)
                if not X_NODMA: vm_issue(("d", phi + 3), g)
            if pend:
                pend(i)
            if not X_NOGELU:
                for x in fills[i]:
                    if isinstance(x, tuple): vm_issue(x[0], [x[1]])
                    else: e(x)
            need(gk + 1)
        assert not dma
    XR = 112
    vq.extend([("x", 0)] * 36)
    e("s_mul_i32 s42, s3, 1152")
    e("s_mov_b64 s[50:51], exec"); e("s_mov_b64 exec, s[46:47]")
    vm_issue("bias", ["buffer_load_dwordx2 v[60:61], v13, s[36:39], s42 offen"])
    e("s_mov_b64 exec, s[50:51]")
    e("v_cmp_gt_u32 vcc, 72, v0"); e("s_nop 1"); e("s_mov_b64 s[54:55], vcc"); e("s_mov_b64 exec, s[54:55]")
    vm_issue("gw", ["buffer_load_dwordx4 v[64:67], v14, s[20:23], 0 offen"])
    e("s_mov_b64 exec, s[50:51]")
    coop(e, 48); vq.extend(["pf"] if int(os.environ.get("WQEARLY", "0")) else ["pf", "pf"])
    n = vm_need(("x", 0)); e(f"s_waitcnt vmcnt({n})")
    for s_ in range(36): e(f"ds_read_b128 {vr(XR+4*s_,4)}, v{68+s_%4} offset:{(s_//4)*128}")
    n = vm_need("gw"); e(f"s_waitcnt vmcnt({n}) lgkmcnt(0)"); stamp(e, 2); e("s_barrier")
    mktag(e)
    pend = [(("d", ph), g) for ph in range(3) for g in dma_groups(ph, solo=True)]
    e("s_mov_b64 exec, s[46:47]")
    e("v_and_b32 v63, 0xffff0000, v61"); e("v_lshlrev_b32 v62, 16, v61"); e("v_and_b32 v61, 0xffff0000, v60"); e("v_lshlrev_b32 v60, 16, v60")
    for r in range(60, 64): e(f"v_mul_f32 v{r}, {hexf(KAPPA)}, v{r}")
    e(f"v_add_u32 v76, {BIAS}, v14"); e("ds_write_b128 v76, v[60:63]")
    e("s_mov_b64 exec, s[54:55]"); e(f"v_add_u32 v76, {GWL}, v14"); e("ds_write_b128 v76, v[64:67]")
    e("s_mov_b64 exec, s[50:51]")
    A0, A1, A2 = 78, 79, 80
    e("s_mov_b32 s56, 0x3f803f80")
    e(f"v_mov_b32 v{A0}, 0"); e(f"v_mov_b32 v{A1}, 0"); e(f"v_mov_b32 v81, 0"); e(f"v_mov_b32 v82, 0")
    for i in range(144):
        e(f"v_dot2_f32_bf16 v{A0 if i%2==0 else 81}, v{XR+i}, s56, v{A0 if i%2==0 else 81}")
        e(f"v_dot2_f32_bf16 v{A1 if i%2==0 else 82}, v{XR+i}, v{XR+i}, v{A1 if i%2==0 else 82}")
        if i % 5 == 0 and pend:
            tag, g = pend.pop(0); vm_issue(tag, g)
    assert not pend
    e("s_nop 3")
    e(f"v_add_f32 v{A0}, v{A0}, v81"); e(f"v_add_f32 v{A1}, v{A1}, v82")
    for r in (A0, A1):
        e(f"v_mov_b32 v83, v{r}"); e("s_nop 1"); e(f"v_permlane32_swap_b32 v{r}, v83"); e("s_nop 1"); e(f"v_add_f32 v{r}, v{r}, v83")
    e(f"v_mul_f32 v{A0}, {hexf(1/576)}, v{A0}"); e(f"v_mul_f32 v{A1}, {hexf(1/576)}, v{A1}")
    e(f"v_fma_f32 v{A1}, -v{A0}, v{A0}, v{A1}"); e(f"v_max_f32 v{A1}, 0, v{A1}"); e(f"v_add_f32 v{A1}, {hexf(1e-5)}, v{A1}")
    e(f"v_rsq_f32 v{A1}, v{A1}"); e("s_nop 0"); e(f"v_mul_f32 v{A1}, {hexf(KAPPA)}, v{A1}")
    e(f"v_mul_f32 v{A0}, v{A0}, v{A1}")
    e("s_waitcnt lgkmcnt(0)"); e("s_barrier")
    e("s_cmp_lg_u32 s3, 2"); e("s_cbranch_scc1 M_nogate")
    e("v_lshlrev_b32 v83, 4, v75"); e(f"v_add_u32 v83, {GWL}, v83"); e(f"v_mov_b32 v{A2}, 0")
    for g0 in range(0, 36, 4):
        for k in range(4): e(f"ds_read_b128 {vr(84+4*k,4)}, v83 offset:{(g0+k)*32}")
        e("s_waitcnt lgkmcnt(0)")
        for k in range(4):
            for j in range(4): e(f"v_dot2_f32_bf16 v{A2}, v{XR+4*(g0+k)+j}, v{84+4*k+j}, v{A2}")
    e("s_nop 3"); e(f"v_mov_b32 v83, v{A2}"); e("s_nop 1"); e(f"v_permlane32_swap_b32 v{A2}, v83"); e("s_nop 1"); e(f"v_add_f32 v{A2}, v{A2}, v83")
    e(f"v_mul_f32 v{A2}, {hexf(-math.log2(math.e))}, v{A2}"); e(f"v_exp_f32 v{A2}, v{A2}"); e("s_nop 0")
    e(f"v_add_f32 v{A2}, 1.0, v{A2}"); e(f"v_rcp_f32 v{A2}, v{A2}")
    e("s_lshl_b32 s53, s6, 7"); e(f"s_add_u32 s53, s53, {WS_G}"); e("v_lshlrev_b32 v83, 2, v74")
    e("s_mov_b32 exec_hi, 0"); e(f"buffer_store_dword v{A2}, v83, s[24:27], s53 offen sc1"); e("s_mov_b32 exec_hi, -1")
    e("s_waitcnt vmcnt(0)")
    e.label("M_nogate")
    e(f"v_mov_b32 v84, v{A1}"); e(f"v_mov_b32 v85, v{A1}"); e(f"v_sub_f32 v86, 0, v{A0}"); e(f"v_sub_f32 v87, 0, v{A0}")
    for i in range(144):
        t0 = 16 + 2 * (i % 4)
        e(f"v_lshlrev_b32 v{t0}, 16, v{XR+i}"); e(f"v_and_b32 v{t0+1}, 0xffff0000, v{XR+i}")
        e(f"v_pk_fma_f32 v[{t0}:{t0+1}], v[{t0}:{t0+1}], v[84:85], v[86:87]")
        if i > 0:
            p0 = 16 + 2 * ((i - 1) % 4)
            e(f"v_cvt_pk_bf16_f32 v{p0}, v{p0}, v{p0+1}"); e(f"v_accvgpr_write_b32 a{i-1}, v{p0}")
    p0 = 16 + 2 * (143 % 4)
    e(f"v_cvt_pk_bf16_f32 v{p0}, v{p0}, v{p0+1}"); e(f"v_accvgpr_write_b32 a143, v{p0}")
    if int(os.environ.get("DBG_Y", "0")):
        e("s_mul_i32 s53, s6, 36864")
        for s_ in range(36):
            e(f"s_add_u32 s44, s53, {s_*1024}"); e("s_nop 4")
            e(f"buffer_store_dwordx4 {ar(4*s_,4)}, v{vL16}, s[24:27], s44 offen")
        e("s_waitcnt vmcnt(0)")
    n = vm_need(("d", 0)); e(f"s_waitcnt vmcnt({n})")
    stamp(e, 3)
    e("s_barrier")
    lt.issue("b", bias_rd(0, 0, 0) + bias_rd(0, 1, 1))
    for k in range(D): lt.issue(("f", k), frag_rd(0, k))
    lt.wait("b")
    need(0)
    def pend_fn(phi): return None
    for t in range(9):
        fl = []
        if t > 0:
            fl = gelu_tile(1 - t % 2, 0, 2 * (t - 1)) + gelu_tile(1 - t % 2, 1, 2 * (t - 1) + 1)
        buckets = [[] for _ in range(72)]
        if fl:
            sp = spread(fl, 62)
            for i in range(62): buckets[3 + i] = sp[i]
        for hh in range(2):
            phi = 2 * t + hh
            extra = {}
            if hh == 1 and t < 8:
                extra[30] = (lambda tt=t: lt.issue("b", bias_rd((tt + 1) % 2, 0, 2 * (tt + 1)) + bias_rd((tt + 1) % 2, 1, 2 * (tt + 1) + 1)))
            dm = dma_groups(phi + 3)
            phase(phi, buckets[36 * hh: 36 * hh + 36], dm, phi + 1, extra)
        if t == 0 and not MP2:
            stamp(e, 4)
        if t == 8 and MP2: stamp(e, 4)
    def epi(b, np_imm):
        out = []
        for u in range(2):
            base = SB(b, u)
            for k in range(8): out.append(f"v_cvt_pk_bf16_f32 v{PK+8*u+k}, v{base+2*k}, v{base+2*k+1}")
            out.append((("s", 0), f"buffer_store_dwordx4 {vr(PK+8*u,4)}, v{vL16}, s[24:27], s52 offen offset:{u*2048}{ST_SC1}"))
            out.append((("s", 0), f"buffer_store_dwordx4 {vr(PK+8*u+4,4)}, v{vL16}, s[24:27], s52 offen offset:{u*2048+1024}{ST_SC1}"))
        return out
    e("s_lshl_b32 s52, s3, 6"); e("s_add_u32 s52, s52, s6"); e(f"s_mul_i32 s52, s52, {18*2048}"); e(f"s_add_u32 s52, s52, {WS_P}")
    RL = 4
    SPL = 64 * 18 * 2048
    def red_compute():
        out = []
        for sp in range(NSPLIT):
            t0 = 96 + 2 * (sp % 2)
            out += [f"v_accvgpr_read_b32 v{t0}, a{2*sp}", f"v_accvgpr_read_b32 v{t0+1}, a{2*sp+1}"]
            for j in range(2):
                c0 = "0" if sp == 0 else f"v{100+2*j}"; c1 = "0" if sp == 0 else f"v{101+2*j}"
                out += [f"v_dot2_f32_bf16 v{100+2*j}, v{t0+j}, s64, {c0}", f"v_dot2_f32_bf16 v{101+2*j}, v{t0+j}, s65, {c1}"]
        out += ["s_nop 2", "v_cvt_pk_bf16_f32 v96, v100, v101", "v_cvt_pk_bf16_f32 v97, v102, v103", "s_nop 0"]
        out.append((("rs", 0), "buffer_store_dwordx2 v[96:97], v1, s[24:27], s47 offen sc1"))
        return out
    def wo_groups(img):
        base = "s53" if img < 2 else "s54"
        return [[f"s_add_u32 m0, s43, {SLOT[img] + ii*1024}", f"s_add_u32 s44, {base}, {ii*16*1152 + (img*64 if img < 2 else 0)}",
                 "buffer_load_dwordx4 v13, s[16:19], s44 offen lds"] for ii in range(9)]
    def ystep(t, first=False, ybase=9, last=False):
        extra = [{}, {}]
        if first:
            fl = gelu_tile(1 - t % 2, 0, 16) + gelu_tile(1 - t % 2, 1, 17)
            sp = spread(fl, 56); buckets = [[] for _ in range(72)]
            for i in range(56): buckets[3 + i] = sp[i]
        else:
            fl = epi(1 - t % 2, 0)
            buckets = [[] for _ in range(72)]
            pos = 3
            for x in fl:
                while pos % 4 == 1: pos += 1
                buckets[pos].append(x)
                if len(buckets[pos]) >= 2 or isinstance(x, tuple): pos += 1
            buckets[pos + 1].append("s_add_u32 s52, s52, 4096")
        if INPUB and not first:
            buckets[31] += ["s_add_u32 s46, s46, 1", "s_max_i32 s8, s46, 0", "s_add_u32 s8, s8, s97", "v_mov_b32 v14, s8", "s_mov_b64 exec, 1",
                            (("fl", 0), "buffer_store_dword v14, v15, s[24:27], s99 offen sc1"), "s_mov_b64 exec, -1"]
        if INRED and not first:
            if True:
                extra[0][23] = lambda: vm_wait(("r", 7))
                rc = red_compute(); pos = 24
                for x in rc:
                    while pos % 4 == 1 or pos == 31: pos += 1
                    buckets[pos].append(x)
                    if len(buckets[pos]) >= 3 or isinstance(x, tuple): pos += 1
                assert pos < 36 + 22, pos
            def chk():
                vm_wait(("fload", 0))
                e("s_add_u32 s9, s48, 1"); e("s_max_i32 s9, s9, 0"); e("s_add_u32 s10, s97, s9"); e("s_sub_u32 s11, 9, s9")
                lab = f"M_rc{len(RCL)}"; RCL.append(1)
                e("s_cmp_lt_i32 s48, 0"); e(f"s_cbranch_scc1 {lab}b")
                e.label(lab + "a")
                e("v_subrev_u32 v14, s10, v13"); e("s_mov_b64 exec, 0xff"); e("v_cmp_lt_u32 vcc, s11, v14"); e("s_mov_b64 exec, -1"); e("s_nop 4")
                e(f"s_cbranch_vccz {lab}b")
                e("s_sleep 2"); e("s_mov_b64 exec, 0xff"); e("buffer_load_dword v13, v0, s[24:27], s57 offen sc1"); e("s_mov_b64 exec, -1"); e("s_waitcnt vmcnt(0)"); e(f"s_branch {lab}a")
                e.label(lab + "b")
                e("s_max_i32 s9, s48, 0"); e("s_lshl_b32 s9, s9, 12"); e("s_add_u32 s49, s45, s9")
                e(f"s_add_u32 s47, s49, {WS_B - WS_P}"); e(f"s_add_u32 s9, s45, {8*4096 + WS_B - WS_P}"); e("s_cmp_lt_i32 s48, 0"); e("s_cselect_b32 s47, s9, s47")
                e("s_add_u32 s48, s48, 1")
            extra[1][23] = chk
            pos = 36 + 24
            for sp in range(NSPLIT):
                while pos % 4 == 1: pos += 1
                buckets[pos] += [f"s_add_u32 s8, s49, {sp*SPL}", (("r", sp), f"buffer_load_dwordx2 {ar(2*sp,2)}, v1, s[24:27], s8 offen sc1")]
                pos += 1
            buckets[4] = ["s_mov_b64 exec, 0xff", (("fload", 0), "buffer_load_dword v13, v0, s[24:27], s57 offen sc1"), "s_mov_b64 exec, -1"] + buckets[4]
        for hh in range(2):
            phi = 2 * t + hh
            nphi = phi + 1
            if last and phi + 3 >= 36: dm = wo_groups(phi - 33) if TAIL else []
            else: dm = dma_groups(phi + 3, ybase)
            phase(phi, buckets[36 * hh: 36 * hh + 36], dm, None if phi == 35 else nphi, extra[hh])
    if INPUB:
        e("s_lshl_b32 s57, s4, 7"); e(f"s_add_u32 s57, s57, {WS_FLAG}")
        e("s_lshl_b32 s99, s3, 2"); e("s_add_u32 s99, s99, s57")
        e(f"s_lshl_b32 s97, s{TAGR}, 4")
        e("s_mov_b32 s46, -1")
        e(f"s_mov_b32 s48, {1 - RL}")
        e("s_lshr_b32 s8, s3, 1"); e("s_lshl_b32 s9, s4, 2"); e("s_add_u32 s8, s8, s9"); e("s_mul_i32 s8, s8, 18")
        e("s_and_b32 s9, s3, 1"); e("s_add_u32 s8, s8, s9"); e("s_lshl_b32 s45, s8, 11")
        e("s_and_b32 s9, s5, 1"); e("s_lshl_b32 s9, s9, 10"); e("s_add_u32 s45, s45, s9"); e("s_lshr_b32 s9, s5, 1"); e("s_lshl_b32 s9, s9, 9"); e("s_add_u32 s45, s45, s9")
        e(f"s_add_u32 s45, s45, {WS_P}")
        e(f"s_add_u32 s47, s45, {8*4096 + WS_B - WS_P}")
        e("s_mov_b32 s64, 0x3f80"); e("s_mov_b32 s65, 0x3f800000")
        e("v_lshlrev_b32 v0, 2, v1"); e("v_lshlrev_b32 v1, 3, v1"); e("v_mov_b32 v15, 0")
    ystep(9, first=True)
    e("s_mov_b32 s15, 3")
    def retag(dphi):
        for i, tg in enumerate(vq):
            if isinstance(tg, tuple) and tg[0] == "d": vq[i] = ("d", tg[1] + dphi)
        lt.q[:] = [(tg[0], tg[1] + dphi * 36) if isinstance(tg, tuple) else tg for tg in lt.q]
    vq0, lq0, keep = list(vq), list(lt.q), e.l
    logs = []
    for rep in range(3):
        e.l = []; REC["mode"] = "rec"; REC["log"] = []; nl = len(RCL)
        ystep(10); ystep(11)
        del RCL[nl:]
        logs.append(REC["log"]); retag(-4)
    vq_steady, lq_steady = list(vq), list(lt.q)
    assert lq_steady == lq0, (lq_steady, lq0)
    over = []
    for vals in zip(*logs):
        v = [x for x in vals if x is not None]
        over.append(min(v) if v else None)
    e.l = keep; vq[:] = vq0; lt.q[:] = lq0
    REC["mode"] = "use"; REC["over"] = over; REC["i"] = 0
    e.label("M_loop")
    ystep(10); ystep(11)
    REC["mode"] = None
    e("s_add_u32 s41, s41, 256")
    e("s_sub_u32 s15, s15, 1"); e("s_cmp_lg_u32 s15, 0"); e("s_cbranch_scc1 M_loop")
    vq[:] = vq_steady; lt.q[:] = lq_steady
    retag(12)
    if TAIL:
        e("s_load_dwordx2 s[92:93], s[0:1], 32"); e("s_waitcnt lgkmcnt(0)"); lt.q[:] = []
        srd(e, 16, 92, 576 * 1152)
        e("v_mbcnt_lo_u32_b32 v14, -1, 0"); e("v_mbcnt_hi_u32_b32 v14, -1, v14")
        e("v_lshrrev_b32 v13, 2, v14"); e("v_mul_u32_u24 v13, 1152, v13"); e("v_and_b32 v14, 3, v14"); e("v_lshlrev_b32 v14, 4, v14"); e("v_add_u32 v13, v13, v14")
        e(f"s_mul_i32 s53, s5, {144*1152}"); e("s_and_b32 s8, s3, 1"); e("s_lshl_b32 s8, s8, 6"); e("s_add_u32 s54, s53, s8"); e("s_add_u32 s54, s54, 1024")
        e("s_lshl_b32 s8, s3, 7"); e("s_add_u32 s53, s53, s8")
    ystep(16, ybase=15, last=True); ystep(17, ybase=15, last=True)
    e("s_nop 7"); e("s_nop 3")
    stamp(e, 5)
    for x in epi(1, 0):
        if isinstance(x, tuple): e("s_nop 0"); e(x[1])
        else: e(x)
    if PRERED and not TAIL:
            e("s_waitcnt vmcnt(0)"); e("s_barrier")
            e("s_lshl_b32 s9, s4, 3"); e("s_add_u32 s9, s9, 64")
            e("v_mov_b32 v13, 0"); e("v_mov_b32 v14, 1")
            e("s_cmp_lg_u32 s5, 0"); e("s_cbranch_scc1 M_nosig")
            e("s_mov_b64 exec, 1")
            e("buffer_atomic_add v14, v13, s[60:63], s9 offen")
            e.label("M_poll")
            e("buffer_load_dword v15, v13, s[60:63], s9 offen sc1")
            e("s_waitcnt vmcnt(0)")
            e("v_readfirstlane_b32 s10, v15"); e("s_nop 3")
            e("s_cmp_ge_u32 s10, 8"); e("s_cbranch_scc1 M_polled")
            e("s_sleep 1"); e("s_branch M_poll")
            e.label("M_polled")
            e("s_mov_b64 exec, -1")
            e.label("M_nosig")
            e("s_barrier")
            e("s_mul_i32 s11, s3, 18"); e("s_add_u32 s11, s11, s5")
            e(f"s_mul_i32 s12, s4, {4*18*2048}")
            e("s_lshl_b32 s13, s11, 10"); e("s_add_u32 s12, s12, s13")
            e(f"s_add_u32 s13, s12, {WS_P}"); e(f"s_add_u32 s14, s12, {WS_B}")
            e("s_mov_b32 s16, 0x3f80"); e("s_mov_b32 s17, 0x3f800000")
            for k in range(5):
                if k == 4: e("s_cmp_ge_u32 s5, 2"); e("s_cbranch_scc1 M_skip5a")
                for sp in range(NSPLIT):
                    e(f"s_add_u32 s18, s13, {sp*64*18*2048 + k*4096}")
                    e(f"buffer_load_dwordx4 {vr(96+32*k+4*sp,4)}, v{vL16}, s[24:27], s18 offen sc1")
                if k == 4: e.label("M_skip5a")
            for k in range(5):
                if k == 4: e("s_cmp_ge_u32 s5, 2"); e("s_cbranch_scc1 M_skip5b")
                if k == 0: e("s_waitcnt vmcnt(0)")
                for sp in range(NSPLIT):
                    for j in range(4):
                        src = 96 + 32 * k + 4 * sp + j
                        c0 = "0" if sp == 0 else f"v{16+2*j}"; c1 = "0" if sp == 0 else f"v{17+2*j}"
                        e(f"v_dot2_f32_bf16 v{16+2*j}, v{src}, s16, {c0}"); e(f"v_dot2_f32_bf16 v{17+2*j}, v{src}, s17, {c1}")
                e("s_nop 3")
                for j in range(4): e(f"v_cvt_pk_bf16_f32 v{24+j+4*(k%2)}, v{16+2*j}, v{17+2*j}")
                e(f"s_add_u32 s18, s14, {k*4096}")
                e(f"buffer_store_dwordx4 {vr(24+4*(k%2),4)}, v{vL16}, s[24:27], s18 offen")
                if k == 4: e.label("M_skip5b")
    if TAIL:
        gen_tail(e, vL16)
    if PROF:
        e("s_waitcnt vmcnt(0)"); stamp(e, 6); stamp_rt(e, 7); stamp_flush(e, 0, 58)
    e("s_endpgm")
LOOPCHK = []
```

```python
import os, math
from gen import *
X_NODMA = int(os.environ.get("X_NODMA", "0")); X_NOGELU = int(os.environ.get("X_NOGELU", "0"))
ST_SC1 = " sc1" if int(os.environ.get("ST_SC1", "1")) else ""
PRERED = int(os.environ.get('PRERED', '1'))
SLOT = [0, 36864, 73728, 110592]; BIAS = 147456

TAIL = int(os.environ.get('TAIL', '1'))
INMODE = 3 if TAIL else 0
INRED = False
INPUB = bool(TAIL)
RCL = []
NEXTRA = [0]
MP2 = int(os.environ.get('MPROF2', '0'))
OUTSC = os.environ.get('OUTSC', ' nt')
WS_DUMMY = WS_FLAG - 0x1000
TAGR = 98

def poll_flags(e, name, lo_mask, vtmp, sreg=57, cmp=None, inv=True):
    e("s_cmp_lg_u32 s5, 0"); e(f"s_cbranch_scc1 {name}_w")
    e("v_mbcnt_lo_u32_b32 v{0}, -1, 0".format(vtmp)); e(f"v_lshlrev_b32 v{vtmp}, 2, v{vtmp}")
    e(f"s_mov_b32 exec_lo, {hex(lo_mask)}"); e("s_mov_b32 exec_hi, 0")
    e.label(f"{name}_p")
    e(f"buffer_load_dword v{vtmp+1}, v{vtmp}, s[24:27], s{sreg} offen sc1")
    e("s_waitcnt vmcnt(0)")
    e(f"v_cmp_ne_u32 vcc, s{cmp or TAGR}, v{vtmp+1}"); e("s_nop 7")
    e(f"s_cbranch_vccz {name}_d")
    e("s_sleep 4"); e(f"s_branch {name}_p")
    e.label(f"{name}_d")
    e("s_mov_b64 exec, -1")
    if inv: e("buffer_inv sc1"); e("s_waitcnt vmcnt(0)")
    e.label(f"{name}_w")
    e("s_barrier")
def set_flag(e, word_sreg_expr, vtmp):
    e("s_mov_b64 exec, 1"); e(f"v_mov_b32 v{vtmp}, 0"); e(f"v_mov_b32 v{vtmp+1}, s{TAGR}")
    e(f"buffer_store_dword v{vtmp+1}, v{vtmp}, s[24:27], s{word_sreg_expr} offen sc1")
    e("s_mov_b64 exec, -1")

def mktag(e):
    e(f"s_add_u32 s{TAGR}, s{TAGR}, 1")
def arrive(e, vt):
    e("s_mov_b64 s[94:95], exec")
    e("s_cmp_eq_u32 s5, 0"); e("s_cselect_b64 exec, 1, 0")
    e(f"v_mov_b32 v{vt}, 0"); e(f"v_mov_b32 v{vt+1}, 1")
    e("s_cbranch_execz L_arr%d" % len(ARR));
    e(f"buffer_atomic_add v{vt+1}, v{vt}, s[60:63], 0 offen offset:4")
    e.label("L_arr%d" % len(ARR)); ARR.append(1)
    e("s_mov_b64 exec, s[94:95]")
ARR = []
def gen_tail(e, vL16):
    SPL = 64 * 18 * 2048
    e("s_load_dwordx2 s[42:43], s[0:1], 72"); e("s_load_dwordx2 s[92:93], s[0:1], 88")
    e("s_waitcnt vmcnt(0) lgkmcnt(0)"); e("s_barrier")
    srd(e, 20, 42, 1152); srd(e, 12, 92, 2048 * 1152)
    e("s_add_u32 s96, s97, 9")
    e("s_cmp_lg_u32 s5, 0"); e("s_cbranch_scc1 T_nf1")
    e("s_mov_b64 exec, 1"); e("v_mov_b32 v13, 0"); e("v_mov_b32 v14, s96")
    e("buffer_store_dword v14, v13, s[24:27], s99 offen sc1")
    e("s_mov_b64 exec, -1")
    e.label("T_nf1")
    arrive(e, 13)
    e("v_mbcnt_lo_u32_b32 v1, -1, 0"); e("v_mbcnt_hi_u32_b32 v1, -1, v1")
    e("s_lshl_b32 s52, s3, 7")
    e("v_and_b32 v6, 31, v1"); e("v_lshrrev_b32 v7, 5, v1")
    tr_lane_addr(e, 8, 1, 2, 3, 4)
    e("v_bfe_u32 v2, v1, 3, 1"); e("v_lshlrev_b32 v3, 2, v7"); e("v_add_u32 v2, v2, v3"); e("v_mul_u32_u24 v2, 18, v2")
    e("v_bfe_u32 v3, v1, 2, 1"); e("v_add_u32 v2, v2, v3"); e("v_add_u32 v2, 16, v2"); e("v_lshlrev_b32 v9, 6, v2")
    e("v_bfe_u32 v2, v1, 4, 1"); e("v_lshlrev_b32 v2, 5, v2"); e("v_add_u32 v9, v9, v2")
    e("v_and_b32 v2, 3, v1"); e("v_lshlrev_b32 v2, 3, v2"); e("v_add_u32 v9, v9, v2")
    e("v_add_u32 v10, 36864, v8"); e("v_add_u32 v11, 36864, v9")
    e("s_add_u32 s8, s3, 1"); e("s_cmp_eq_u32 s3, 7"); e("s_cselect_b32 s8, 9, s8")
    e("s_add_u32 s10, s97, s8"); e("s_sub_u32 s11, 9, s8")
    e("s_cmp_lg_u32 s5, 0"); e("s_cbranch_scc1 T_pp_w")
    e("v_lshlrev_b32 v13, 2, v1")
    e.label("T_pp_p")
    e("s_mov_b64 exec, 0xff"); e("buffer_load_dword v14, v13, s[24:27], s57 offen sc1"); e("s_waitcnt vmcnt(0)")
    e("v_subrev_u32 v14, s10, v14"); e("v_cmp_lt_u32 vcc, s11, v14"); e("s_mov_b64 exec, -1"); e("s_nop 4")
    e("s_cbranch_vccz T_pp_w"); e("s_sleep 2"); e("s_branch T_pp_p")
    e.label("T_pp_w")
    e("s_barrier")
    e("s_mul_i32 s50, s6, 18"); e("s_lshl_b32 s54, s3, 1"); e("s_add_u32 s50, s50, s54"); e("s_lshl_b32 s50, s50, 11"); e(f"s_add_u32 s50, s50, {WS_P}")
    e("s_lshl_b32 s46, s6, 7"); e(f"s_add_u32 s46, s46, {WS_G}"); e("v_lshlrev_b32 v4, 2, v6"); e("v_lshlrev_b32 v3, 3, v7")
    e("buffer_load_dword v5, v4, s[24:27], s46 offen sc1")
    def ps_sum(PS, ntiles, lbase, b2reg):
        for sp in range(NSPLIT):
            for j in range(ntiles):
                for k in range(8):
                    src = lbase + 8 * ntiles * sp + 8 * j + k
                    c0 = "0" if sp == 0 else f"v{PS+16*j+2*k}"; c1 = "0" if sp == 0 else f"v{PS+16*j+2*k+1}"
                    e(f"v_dot2_f32_bf16 v{PS+16*j+2*k}, v{src}, s64, {c0}"); e(f"v_dot2_f32_bf16 v{PS+16*j+2*k+1}, v{src}, s65, {c1}")
        e("s_nop 3")
        for j in range(ntiles):
            for r in range(16): e(f"v_mul_f32 v{PS+16*j+r}, {hexf(1/KAPPA)}, v{PS+16*j+r}")
            for k in range(8):
                e(f"v_dot2_f32_bf16 v{PS+16*j+2*k}, v{b2reg+8*j+k}, s64, v{PS+16*j+2*k}"); e(f"v_dot2_f32_bf16 v{PS+16*j+2*k+1}, v{b2reg+8*j+k}, s65, v{PS+16*j+2*k+1}")
        e("s_nop 3")
    MB = 159744
    e(f"v_mov_b32 v14, {MB}"); e("v_mov_b32 v12, 0".replace("v12", "v13"))
    e("s_cmp_lg_u32 s5, 0"); e("s_cbranch_scc1 T_mbi"); e("ds_write_b32 v14, v13"); e.label("T_mbi")
    for j in range(2):
        for q in range(4): e(f"buffer_load_dwordx2 {vr(80+8*j+2*q,2)}, v3, s[20:23], s52 offen offset:{j*64+q*16}")
    for sp in range(NSPLIT):
        e(f"s_add_u32 s54, s50, {sp*SPL}")
        for u in range(4): e(f"buffer_load_dwordx4 {vr(96+16*sp+4*u,4)}, v{vL16}, s[24:27], s54 offen offset:{u*1024} sc1")
    e("s_lshr_b32 s47, s3, 1")
    e("s_and_b32 s8, s3, 1"); e("s_lshl_b32 s48, s8, 6"); e("s_add_u32 s48, s48, 1024")
    e("s_mul_i32 s49, s6, 18"); e("s_add_u32 s49, s49, s8"); e("s_add_u32 s49, s49, 16"); e("s_lshl_b32 s49, s49, 11"); e(f"s_add_u32 s49, s49, {WS_P}")
    e("v_mul_u32_u24 v2, 1152, v6"); e("v_lshlrev_b32 v4, 4, v7"); e("v_add_u32 v2, v2, v4")
    e(f"s_mul_i32 s51, s6, {32*1152}"); e("s_add_u32 s51, s51, s52")
    e("s_lshl_b32 s55, s6, 15"); e(f"s_add_u32 s55, s55, {WS_O1}")
    e("s_lshl_b32 s56, s6, 12"); e(f"s_add_u32 s56, s56, {WS_O2}")
    ACC = [16, 32]
    def rdk(k, img, slot):
        d = 144 + 4 * slot
        am, ae = (8, 9) if img == 0 else (10, 11)
        if k < 32: a_, o1, o2 = am, k * 1152, k * 1152 + 512
        else: a_, o1, o2 = ae, (k - 32) * 8 * 1152, (k - 32) * 8 * 1152 + 2 * 1152
        e(f"ds_read_b64_tr_b16 {ar(d,2)}, v{a_} offset:{o1}"); e(f"ds_read_b64_tr_b16 {ar(d+2,2)}, v{a_} offset:{o2}")
    def mm_block(ks):
        fr = [(k, img) for k in ks for img in range(2)]
        for i, (k, img) in enumerate(fr): rdk(k, img, i)
        for i, (k, img) in enumerate(fr):
            e(f"s_waitcnt lgkmcnt({min(15, 2*(len(fr)-1-i))})")
            e(f"v_mfma_f32_32x32x16_bf16 {vr(ACC[img],16)}, {ar(144+4*i,4)}, {ar(4*k,4)}, {vr(ACC[img],16)}")
    for r in range(32): e(f"v_mov_b32 v{16+r}, 0")
    e("s_waitcnt lgkmcnt(0)"); e("s_barrier")
    e("s_mov_b32 s8, 0x2000"); e("s_mov_b32 s9, 0")
    e("s_cmp_eq_u32 s5, s47"); e("s_cbranch_scc1 T_own"); e("s_mov_b32 s8, 0x3000"); e("s_mov_b32 s9, 0x1000"); e.label("T_own")
    e("v_mbcnt_lo_u32_b32 v15, -1, 0"); e("v_lshlrev_b32 v15, 2, v15")
    e.label("T_round")
    e("s_cmp_lg_u32 s5, 0"); e("s_cbranch_scc1 T_rd_mb")
    e("s_mov_b32 exec_lo, 0xff00ff"); e("s_mov_b32 exec_hi, 0")
    e("buffer_load_dword v13, v15, s[24:27], s57 offen sc1")
    e("s_waitcnt vmcnt(0)")
    e(f"v_cmp_eq_u32 vcc, s{TAGR}, v13"); e("s_nop 4"); e("s_lshr_b32 s10, vcc_lo, 16")
    e("v_cmp_eq_u32 vcc, s96, v13"); e("s_mov_b64 exec, -1"); e("s_nop 4")
    e("s_and_b32 s7, vcc_lo, 0xff"); e("s_cmp_eq_u32 s7, 0xff"); e("s_cselect_b32 s7, 0x1000, 0"); e("s_or_b32 s10, s10, s7")
    e("v_mov_b32 v13, s10"); e("ds_write_b32 v14, v13")
    e("s_branch T_have")
    e.label("T_rd_mb")
    e("ds_read_b32 v13, v14"); e("s_waitcnt vmcnt(0) lgkmcnt(0)"); e("v_readfirstlane_b32 s10, v13"); e("s_nop 3")
    e.label("T_have")
    e("s_andn2_b32 s46, s8, s9")
    e("s_lshr_b32 s11, s10, 1"); e("s_and_b32 s11, s11, s10")
    for x in range(4):
        e(f"s_bitcmp1_b32 s11, {2*x}"); e(f"s_cselect_b32 s7, {1 << (8+x)}, 0"); e("s_or_b32 s10, s10, s7")
    e("s_bitcmp1_b32 s9, 13"); e("s_cbranch_scc1 T_b12"); e("s_andn2_b32 s10, s10, 0x1000"); e.label("T_b12")
    e("s_andn2_b32 s11, s10, s8"); e("s_or_b32 s8, s8, s11")
    for g in range(8):
        e(f"s_bitcmp1_b32 s11, {g}"); e(f"s_cbranch_scc0 T_nl{g}")
        e(f"s_add_u32 s54, s55, {g*4096}")
        for i in range(4): e(f"buffer_load_dwordx4 {ar(16*g+4*i,4)}, v{vL16}, s[24:27], s54 offen offset:{i*1024} sc1")
        e.label(f"T_nl{g}")
    for x in range(4):
        e(f"s_bitcmp1_b32 s11, {8+x}"); e(f"s_cbranch_scc0 T_nlx{x}")
        e(f"buffer_load_dwordx4 {ar(128+4*x,4)}, v{vL16}, s[24:27], s56 offen offset:{x*1024} sc1")
        e.label(f"T_nlx{x}")
    e("s_bitcmp1_b32 s11, 12"); e("s_cbranch_scc0 T_nle")
    for q in range(4): e(f"buffer_load_dwordx2 {vr(240+2*q,2)}, v3, s[20:23], s48 offen offset:{q*16}")
    for sp in range(NSPLIT):
        e(f"s_add_u32 s54, s49, {sp*SPL}")
        for u in range(2): e(f"buffer_load_dwordx4 {vr(96+8*sp+4*u,4)}, v{vL16}, s[24:27], s54 offen offset:{u*1024} sc1")
    e.label("T_nle")
    e("s_or_b32 s9, s9, s46")
    e("s_bitcmp1_b32 s46, 13"); e("s_cbranch_scc0 T_nc13")
    ps_sum(48, 2, 96, 80)
    if not MP2: stamp(e, 5)
    e.label("T_nc13")
    e("s_bitcmp1_b32 s46, 12"); e("s_cbranch_scc0 T_nc12")
    ps_sum(224, 1, 96, 240)
    e.label("T_nc12")
    for g in range(8):
        e(f"s_bitcmp1_b32 s46, {g}"); e(f"s_cbranch_scc0 T_nc{g}")
        mm_block([4 * g + i for i in range(4)])
        e.label(f"T_nc{g}")
    for x in range(4):
        e(f"s_bitcmp1_b32 s46, {8+x}"); e(f"s_cbranch_scc0 T_ncx{x}")
        mm_block([32 + x])
        e.label(f"T_ncx{x}")
    e("s_cmp_eq_u32 s9, 0x3fff"); e("s_cbranch_scc1 T_alld")
    e("s_or_b32 s7, s11, s46"); e("s_cmp_lg_u32 s7, 0"); e("s_cbranch_scc1 T_round")
    e("s_sleep 3"); e("s_branch T_round")
    e.label("T_alld")
    if not MP2: stamp(e, 4)
    def out_tile(A, PS, pk, soff, off):
        for r in range(16):
            e(f"v_sub_f32 v{A+r}, v{A+r}, v{PS+r}"); e(f"v_fma_f32 v{A+r}, v5, v{A+r}, v{PS+r}")
        for k in range(8): e(f"v_cvt_pk_bf16_f32 v{pk+k}, v{A+2*k}, v{A+2*k+1}")
        e("s_nop 1")
        for base in (pk, pk + 4):
            e(f"v_permlane32_swap_b32 v{base}, v{base+2}"); e(f"v_permlane32_swap_b32 v{base+1}, v{base+3}")
        e("s_nop 1")
        e(f"buffer_store_dwordx4 {vr(pk,4)}, v2, s[12:15], s{soff} offen offset:{off}" + OUTSC)
        e(f"buffer_store_dwordx4 {vr(pk+4,4)}, v2, s[12:15], s{soff} offen offset:{off+32}" + OUTSC)
    e("s_cmp_lg_u32 s5, s47"); e("s_cbranch_scc1 T_noE0")
    e("v_add_u32 v8, 73728, v8"); e("v_add_u32 v9, 73728, v9")
    def rdE(k):
        d = 144 + 4 * (k % 8)
        if k < 32: a_, o1, o2 = 8, k * 1152, k * 1152 + 512
        else: a_, o1, o2 = 9, (k - 32) * 8 * 1152, (k - 32) * 8 * 1152 + 2 * 1152
        e(f"ds_read_b64_tr_b16 {ar(d,2)}, v{a_} offset:{o1}"); e(f"ds_read_b64_tr_b16 {ar(d+2,2)}, v{a_} offset:{o2}")
    for k in range(6): rdE(k)
    for k in range(36):
        e(f"s_waitcnt lgkmcnt({2*(min(35, k+5)-k)})")
        c = "0" if k == 0 else vr(96, 16)
        e(f"v_mfma_f32_32x32x16_bf16 {vr(96,16)}, {ar(144+4*(k%8),4)}, {ar(4*k,4)}, {c}")
        if k + 6 < 36: rdE(k + 6)
    e.label("T_noE0")
    e("s_nop 7"); e("s_nop 3")
    for j in range(2): out_tile(ACC[j], 48 + 16 * j, 80 + 8 * j, 51, j * 64)
    e("s_cmp_lg_u32 s5, s47"); e("s_cbranch_scc1 T_done")
    e(f"s_mul_i32 s8, s6, {32*1152}"); e("s_add_u32 s8, s8, s48")
    out_tile(96, 224, 112, 8, 0)
    e.label("T_done")
    e("s_or_b32 s8, s3, s4"); e("s_or_b32 s8, s8, s5"); e("s_cmp_lg_u32 s8, 0"); e("s_cbranch_scc1 T_end")
    e("s_mov_b64 exec, 1"); e("v_mov_b32 v13, 0")
    e.label("T_ep")
    e("buffer_load_dword v14, v13, s[60:63], 0 offen offset:4 sc1")
    e("s_waitcnt vmcnt(0)")
    e("v_readfirstlane_b32 s8, v14"); e("s_nop 3")
    e("s_cmp_ge_u32 s8, 256"); e("s_cbranch_scc1 T_epd")
    e("s_sleep 2"); e("s_branch T_ep")
    e.label("T_epd")
    e(f"v_mov_b32 v14, s{TAGR}"); e(f"s_mov_b32 s8, {WS_EPOCH}")
    e("buffer_store_dword v14, v13, s[24:27], s8 offen")
    e("s_mov_b64 exec, -1")
    e.label("T_end")

GWL = BIAS + 2304
def gen_mlp4(e, common, xfrag_addr, coop):
    YF = lambda s: ar(4 * s, 4)
    NR = int(os.environ.get('XNR', '8'))
    RING = lambda k: 144 + 4 * (k % NR)
    SB = lambda b, u: 16 + 32 * b + 16 * u
    PR = lambda c: 112 + 8 * c
    PK = 80
    T = [96, 97, 98, 99, 100, 101]
    aX = [104, 105, 106, 107]; aY = [108, 109, 110, 111]
    dW1 = [2, 3, 4, 5]; dW2 = [6, 7, 8, 9]; aB, cC0, vL16 = 10, 11, 12
    D = int(os.environ.get('XD', '7'))
    e.label("M_start")
    e(f"v_lshlrev_b32 v{vL16}, 4, v1")
    e("v_lshlrev_b32 v13, 3, v0"); e("v_lshlrev_b32 v14, 4, v0")
    e("v_and_b32 v74, 31, v1"); e("v_lshrrev_b32 v75, 5, v1")
    e("v_and_b32 v15, 3, v1"); e("v_lshlrev_b32 v15, 4, v15")
    e("v_lshrrev_b32 v16, 5, v1"); e("v_lshlrev_b32 v16, 6, v16"); e("v_add_u32 v15, v15, v16")
    e("v_bfe_u32 v16, v1, 2, 3")
    e(f"v_mul_u32_u24 v{dW1[0]}, 9216, v16"); e(f"v_add_u32 v{dW1[0]}, v{dW1[0]}, v15")
    e(f"v_mul_u32_u24 v{dW2[0]}, 1152, v16"); e(f"v_add_u32 v{dW2[0]}, v{dW2[0]}, v15")
    S1, S2 = 8 * 9216, 8 * 1152
    for q in range(1, 4):
        e(f"v_add_u32 v{dW1[q]}, {q*(S1-1024)}, v{dW1[0]}"); e(f"v_add_u32 v{dW2[q]}, {q*(S2-1024)}, v{dW2[0]}")
    e("v_lshrrev_b32 v15, 5, v1")
    e("v_bfe_u32 v16, v1, 2, 2"); e("v_lshlrev_b32 v16, 6, v16")
    e("v_bfe_u32 v17, v1, 4, 1"); e("v_lshlrev_b32 v17, 5, v17"); e("v_add_u32 v16, v16, v17")
    e("v_and_b32 v17, 3, v1"); e("v_lshlrev_b32 v17, 3, v17"); e("v_add_u32 v16, v16, v17")
    e("v_lshlrev_b32 v17, 10, v15"); e("v_add_u32 v17, v17, v16")
    e("v_lshlrev_b32 v18, 8, v15"); e("v_add_u32 v18, v18, v16")
    for k in range(4):
        e(f"v_add_u32 v{aX[k]}, {SLOT[k]}, v17"); e(f"v_add_u32 v{aY[k]}, {SLOT[k]}, v18")
    e("v_lshlrev_b32 v15, 4, v15"); e(f"v_add_u32 v{aB}, {BIAS}, v15")
    e(f"v_mov_b32 v{cC0}, {hexf(GC0)}")
    xfrag_addr(e, 68, 72)
    common(e, False)
    e("v_cmp_gt_u32 vcc, 144, v0"); e("s_nop 1"); e("s_mov_b64 s[46:47], vcc")
    e(f"s_mul_i32 s40, s5, {72*9216}"); e("s_mul_i32 s42, s3, 1152"); e("s_add_u32 s40, s40, s42")
    e(f"s_mul_i32 s41, s3, {576*1152}"); e(f"s_mul_i32 s42, s5, {72*1152}"); e("s_add_u32 s41, s41, s42")
    e("s_mul_i32 s43, s5, 9216")
    vq = []
    def vm_issue(tag, ins):
        for x in ins: e(x)
        vq.append(tag)
    def vm_need(tag):
        idx = max((i for i, t in enumerate(vq) if t == tag), default=None)
        if idx is None: return None
        n = len(vq) - 1 - idx
        del vq[:idx + 1]
        return n
    REC = {"mode": None, "log": [], "over": None, "i": 0}
    def vm_wait(tag):
        n = vm_need(tag)
        if REC["mode"] == "rec": REC["log"].append(n)
        if REC["mode"] == "use":
            n = REC["over"][REC["i"]]; REC["i"] += 1
        if n is not None: e(f"s_waitcnt vmcnt({n})")
    def dma_groups(phi, ybase=None, solo=False):
        slot = SLOT[phi % 4]; out = []
        t, hh = phi // 2, phi % 2
        for ii in range(9):
            q = 0 if solo else ii % 4; g = []
            if phi < 18:
                if q == 0: g += [f"s_add_u32 m0, s43, {slot + ii*1024}", f"s_add_u32 s44, s40, {hh*288*9216 + ii*S1 + t*128}"]
                g.append(f"buffer_load_dwordx4 v{dW1[q]}, s[28:31], s44 offen offset:{q*1024} lds")
            else:
                np_ = (t - 9) if ybase is None else (t - ybase)
                if q == 0: g += [f"s_add_u32 m0, s43, {slot + ii*1024}", f"s_add_u32 s44, s41, {hh*288*1152 + ii*S2 + np_*128}"]
                g.append(f"buffer_load_dwordx4 v{dW2[q]}, s[32:35], s44 offen offset:{q*1024} lds")
            out.append(g)
        return out
    class LT:
        def __init__(self): self.q = []
        def issue(self, tag, ins):
            for x in ins: e(x); self.q.append(tag)
        def wait(self, tag):
            idx = max((i for i, t in enumerate(self.q) if t == tag), default=None)
            if idx is None: return
            n = len(self.q) - 1 - idx
            e(f"s_waitcnt lgkmcnt({min(n, 15)})")
            self.q = self.q[idx + 1:] if n <= 15 else self.q[len(self.q) - 15:]
    lt = LT()
    def frag_rd(phi, i):
        s, u = i // 2, i % 2
        d = RING(phi * 36 + i)
        if phi < 18:
            a = aX[phi % 4]; o1 = s * 2048 + u * 512; o2 = o1 + 256
        else:
            a = aY[phi % 4]; o1 = s * 2048 + u * 512; o2 = o1 + 1024
        return [f"ds_read_b64_tr_b16 {ar(d,2)}, v{a} offset:{o1}", f"ds_read_b64_tr_b16 {ar(d+2,2)}, v{a} offset:{o2}"]
    def mfma(phi, i):
        t, hh = phi // 2, phi % 2
        s, u = i // 2, i % 2
        ks = 18 * hh + s
        A = ar(RING(phi * 36 + i), 4); Dst = vr(SB(t % 2, u), 16)
        if phi < 18: return f"v_mfma_f32_32x32x16_bf16 {Dst}, {A}, {YF(ks)}, {Dst}"
        B = vr(PR(ks // 2) + 4 * (ks % 2), 4)
        C = "0" if ks == 0 else Dst
        return f"v_mfma_f32_32x32x16_bf16 {Dst}, {A}, {B}, {C}"
    def gelu(x, t):
        return [f"v_fma_f32 v{t}, v{x}, v{x}, v{cC0}", f"v_mul_f32 v{t}, v{x}, v{t}", f"v_exp_f32 v{t}, -v{t}",
                f"v_add_f32 v{t}, 1.0, v{t}", f"v_rcp_f32 v{t}, v{t}", f"v_mul_f32 v{x}, v{x}, v{t}"]
    def gelu_tile(b, u, c):
        out = []
        base = SB(b, u)
        for g0 in (0, 3, 6, 9, 12, 14):
            grp = list(range(g0, g0 + 3)) if g0 < 12 else [g0, g0 + 1]
            seqs = [gelu(base + r, T[(i + (3 if (g0 // 3) % 2 else 0)) % 6]) for i, r in enumerate(grp)]
            for op in range(6):
                for sq in seqs: out.append(sq[op])
        for k in range(8): out.append(f"v_cvt_pk_bf16_f32 v{PR(c)+k}, v{base+2*k}, v{base+2*k+1}")
        return out
    def bias_rd(b, u, c): return [f"ds_read_b128 {vr(SB(b,u)+4*q,4)}, v{aB} offset:{c*128+q*32}" for q in range(4)]
    def cost(x): return 8 if x.startswith(("v_exp", "v_rcp")) else 4
    WP = int(os.environ.get('WP', '4'))
    def need(gk):
        if gk % WP == 0:
            for kk in range(gk + WP - 1, gk - 1, -1):
                if ("f", kk) in lt.q:
                    lt.wait(("f", kk)); return
    def spread(items, n):
        tot = sum(cost(x) for x in items if isinstance(x, str)) or 1
        out = [[] for _ in range(n)]; acc = 0; g = 0
        for x in items:
            while g < n - 1 and acc >= tot * (g + 1) / n: g += 1
            out[g].append(x); acc += cost(x) if isinstance(x, str) else 4
        return out
    def phase(phi, fills, dma, next_phi, extra=None, ybase=None, pend=None):
        dma = list(dma)
        for i in range(36):
            gk = phi * 36 + i
            e(mfma(phi, i))
            nxt = i + D
            if nxt == 36 and next_phi is not None:
                vm_wait(("d", next_phi))
                e("s_barrier")
            if nxt < 36: lt.issue(("f", gk + D), frag_rd(phi, nxt))
            elif next_phi is not None: lt.issue(("f", gk + D), frag_rd(next_phi, nxt - 36))
            if extra and i in extra: extra[i]()
            if dma and i % 4 == 1:
                g = dma.pop(0)
                if not X_NODMA: vm_issue(("d", phi + 3), g)
            if pend:
                pend(i)
            if not X_NOGELU:
                for x in fills[i]:
                    if isinstance(x, tuple): vm_issue(x[0], [x[1]])
                    else: e(x)
            need(gk + 1)
        assert not dma
    XR = 112
    vq.extend([("x", 0)] * 36)
    e("s_mul_i32 s42, s3, 1152")
    e("s_mov_b64 s[50:51], exec"); e("s_mov_b64 exec, s[46:47]")
    vm_issue("bias", ["buffer_load_dwordx2 v[60:61], v13, s[36:39], s42 offen"])
    e("s_mov_b64 exec, s[50:51]")
    e("v_cmp_gt_u32 vcc, 72, v0"); e("s_nop 1"); e("s_mov_b64 s[54:55], vcc"); e("s_mov_b64 exec, s[54:55]")
    vm_issue("gw", ["buffer_load_dwordx4 v[64:67], v14, s[20:23], 0 offen"])
    e("s_mov_b64 exec, s[50:51]")
    coop(e, 48); vq.extend(["pf"] if int(os.environ.get("WQEARLY", "0")) else ["pf", "pf"])
    n = vm_need(("x", 0)); e(f"s_waitcnt vmcnt({n})")
    for s_ in range(36): e(f"ds_read_b128 {vr(XR+4*s_,4)}, v{68+s_%4} offset:{(s_//4)*128}")
    n = vm_need("gw"); e(f"s_waitcnt vmcnt({n}) lgkmcnt(0)"); stamp(e, 2); e("s_barrier")
    mktag(e)
    pend = [(("d", ph), g) for ph in range(3) for g in dma_groups(ph, solo=True)]
    e("s_mov_b64 exec, s[46:47]")
    e("v_and_b32 v63, 0xffff0000, v61"); e("v_lshlrev_b32 v62, 16, v61"); e("v_and_b32 v61, 0xffff0000, v60"); e("v_lshlrev_b32 v60, 16, v60")
    for r in range(60, 64): e(f"v_mul_f32 v{r}, {hexf(KAPPA)}, v{r}")
    e(f"v_add_u32 v76, {BIAS}, v14"); e("ds_write_b128 v76, v[60:63]")
    e("s_mov_b64 exec, s[54:55]"); e(f"v_add_u32 v76, {GWL}, v14"); e("ds_write_b128 v76, v[64:67]")
    e("s_mov_b64 exec, s[50:51]")
    A0, A1, A2 = 78, 79, 80
    e("s_mov_b32 s56, 0x3f803f80")
    e(f"v_mov_b32 v{A0}, 0"); e(f"v_mov_b32 v{A1}, 0"); e(f"v_mov_b32 v81, 0"); e(f"v_mov_b32 v82, 0")
    for i in range(144):
        e(f"v_dot2_f32_bf16 v{A0 if i%2==0 else 81}, v{XR+i}, s56, v{A0 if i%2==0 else 81}")
        e(f"v_dot2_f32_bf16 v{A1 if i%2==0 else 82}, v{XR+i}, v{XR+i}, v{A1 if i%2==0 else 82}")
        if i % 5 == 0 and pend:
            tag, g = pend.pop(0); vm_issue(tag, g)
    assert not pend
    e("s_nop 3")
    e(f"v_add_f32 v{A0}, v{A0}, v81"); e(f"v_add_f32 v{A1}, v{A1}, v82")
    for r in (A0, A1):
        e(f"v_mov_b32 v83, v{r}"); e("s_nop 1"); e(f"v_permlane32_swap_b32 v{r}, v83"); e("s_nop 1"); e(f"v_add_f32 v{r}, v{r}, v83")
    e(f"v_mul_f32 v{A0}, {hexf(1/576)}, v{A0}"); e(f"v_mul_f32 v{A1}, {hexf(1/576)}, v{A1}")
    e(f"v_fma_f32 v{A1}, -v{A0}, v{A0}, v{A1}"); e(f"v_max_f32 v{A1}, 0, v{A1}"); e(f"v_add_f32 v{A1}, {hexf(1e-5)}, v{A1}")
    e(f"v_rsq_f32 v{A1}, v{A1}"); e("s_nop 0"); e(f"v_mul_f32 v{A1}, {hexf(KAPPA)}, v{A1}")
    e(f"v_mul_f32 v{A0}, v{A0}, v{A1}")
    e("s_waitcnt lgkmcnt(0)"); e("s_barrier")
    e("s_cmp_lg_u32 s3, 2"); e("s_cbranch_scc1 M_nogate")
    e("v_lshlrev_b32 v83, 4, v75"); e(f"v_add_u32 v83, {GWL}, v83"); e(f"v_mov_b32 v{A2}, 0")
    for g0 in range(0, 36, 4):
        for k in range(4): e(f"ds_read_b128 {vr(84+4*k,4)}, v83 offset:{(g0+k)*32}")
        e("s_waitcnt lgkmcnt(0)")
        for k in range(4):
            for j in range(4): e(f"v_dot2_f32_bf16 v{A2}, v{XR+4*(g0+k)+j}, v{84+4*k+j}, v{A2}")
    e("s_nop 3"); e(f"v_mov_b32 v83, v{A2}"); e("s_nop 1"); e(f"v_permlane32_swap_b32 v{A2}, v83"); e("s_nop 1"); e(f"v_add_f32 v{A2}, v{A2}, v83")
    e(f"v_mul_f32 v{A2}, {hexf(-math.log2(math.e))}, v{A2}"); e(f"v_exp_f32 v{A2}, v{A2}"); e("s_nop 0")
    e(f"v_add_f32 v{A2}, 1.0, v{A2}"); e(f"v_rcp_f32 v{A2}, v{A2}")
    e("s_lshl_b32 s53, s6, 7"); e(f"s_add_u32 s53, s53, {WS_G}"); e("v_lshlrev_b32 v83, 2, v74")
    e("s_mov_b32 exec_hi, 0"); e(f"buffer_store_dword v{A2}, v83, s[24:27], s53 offen sc1"); e("s_mov_b32 exec_hi, -1")
    e("s_waitcnt vmcnt(0)")
    e.label("M_nogate")
    e(f"v_mov_b32 v84, v{A1}"); e(f"v_mov_b32 v85, v{A1}"); e(f"v_sub_f32 v86, 0, v{A0}"); e(f"v_sub_f32 v87, 0, v{A0}")
    for i in range(144):
        t0 = 16 + 2 * (i % 4)
        e(f"v_lshlrev_b32 v{t0}, 16, v{XR+i}"); e(f"v_and_b32 v{t0+1}, 0xffff0000, v{XR+i}")
        e(f"v_pk_fma_f32 v[{t0}:{t0+1}], v[{t0}:{t0+1}], v[84:85], v[86:87]")
        if i > 0:
            p0 = 16 + 2 * ((i - 1) % 4)
            e(f"v_cvt_pk_bf16_f32 v{p0}, v{p0}, v{p0+1}"); e(f"v_accvgpr_write_b32 a{i-1}, v{p0}")
    p0 = 16 + 2 * (143 % 4)
    e(f"v_cvt_pk_bf16_f32 v{p0}, v{p0}, v{p0+1}"); e(f"v_accvgpr_write_b32 a143, v{p0}")
    if int(os.environ.get("DBG_Y", "0")):
        e("s_mul_i32 s53, s6, 36864")
        for s_ in range(36):
            e(f"s_add_u32 s44, s53, {s_*1024}"); e("s_nop 4")
            e(f"buffer_store_dwordx4 {ar(4*s_,4)}, v{vL16}, s[24:27], s44 offen")
        e("s_waitcnt vmcnt(0)")
    n = vm_need(("d", 0)); e(f"s_waitcnt vmcnt({n})")
    stamp(e, 3)
    e("s_barrier")
    lt.issue("b", bias_rd(0, 0, 0) + bias_rd(0, 1, 1))
    for k in range(D): lt.issue(("f", k), frag_rd(0, k))
    lt.wait("b")
    need(0)
    def pend_fn(phi): return None
    for t in range(9):
        fl = []
        if t > 0:
            fl = gelu_tile(1 - t % 2, 0, 2 * (t - 1)) + gelu_tile(1 - t % 2, 1, 2 * (t - 1) + 1)
        buckets = [[] for _ in range(72)]
        if fl:
            XS = int(os.environ.get("XS", "0"))
            if XS == 0:
                sp = spread(fl, 62)
                for i in range(62): buckets[3 + i] = sp[i]
            else:
                gaps = list(range(3, 65)); q = list(fl); capD = int(os.environ.get("XS_D", "8")); capN = int(os.environ.get("XS_N", "16"))
                tot = sum(cost(x) for x in q); capsum = sum((capD if g % 4 == 1 else capN) for g in gaps)
                scale = max(1.0, tot / capsum); acc = 0.0; used = 0
                for g in gaps:
                    acc += (capD if g % 4 == 1 else capN) * scale
                    while q and used + cost(q[0]) <= acc + 3.9:
                        used += cost(q[0]); buckets[g].append(q.pop(0))
                buckets[64] += q
        for hh in range(2):
            phi = 2 * t + hh
            extra = {}
            if hh == 1 and t < 8:
                extra[30] = (lambda tt=t: lt.issue("b", bias_rd((tt + 1) % 2, 0, 2 * (tt + 1)) + bias_rd((tt + 1) % 2, 1, 2 * (tt + 1) + 1)))
            dm = dma_groups(phi + 3)
            phase(phi, buckets[36 * hh: 36 * hh + 36], dm, phi + 1, extra)
        if t == 0 and not MP2:
            stamp(e, 4)
        if t == 8 and MP2: stamp(e, 4)
    def epi(b, np_imm):
        out = []
        for u in range(2):
            base = SB(b, u)
            for k in range(8): out.append(f"v_cvt_pk_bf16_f32 v{PK+8*u+k}, v{base+2*k}, v{base+2*k+1}")
            out.append((("s", 0), f"buffer_store_dwordx4 {vr(PK+8*u,4)}, v{vL16}, s[24:27], s52 offen offset:{u*2048}{ST_SC1}"))
            out.append((("s", 0), f"buffer_store_dwordx4 {vr(PK+8*u+4,4)}, v{vL16}, s[24:27], s52 offen offset:{u*2048+1024}{ST_SC1}"))
        return out
    e("s_lshl_b32 s52, s3, 6"); e("s_add_u32 s52, s52, s6"); e(f"s_mul_i32 s52, s52, {18*2048}"); e(f"s_add_u32 s52, s52, {WS_P}")
    RL = 4
    SPL = 64 * 18 * 2048
    def red_compute():
        out = []
        for sp in range(NSPLIT):
            t0 = 96 + 2 * (sp % 2)
            out += [f"v_accvgpr_read_b32 v{t0}, a{2*sp}", f"v_accvgpr_read_b32 v{t0+1}, a{2*sp+1}"]
            for j in range(2):
                c0 = "0" if sp == 0 else f"v{100+2*j}"; c1 = "0" if sp == 0 else f"v{101+2*j}"
                out += [f"v_dot2_f32_bf16 v{100+2*j}, v{t0+j}, s64, {c0}", f"v_dot2_f32_bf16 v{101+2*j}, v{t0+j}, s65, {c1}"]
        out += ["s_nop 2", "v_cvt_pk_bf16_f32 v96, v100, v101", "v_cvt_pk_bf16_f32 v97, v102, v103", "s_nop 0"]
        out.append((("rs", 0), "buffer_store_dwordx2 v[96:97], v1, s[24:27], s47 offen sc1"))
        return out
    def wo_groups(img):
        base = "s53" if img < 2 else "s54"
        return [[f"s_add_u32 m0, s43, {SLOT[img] + ii*1024}", f"s_add_u32 s44, {base}, {ii*16*1152 + (img*64 if img < 2 else 0)}",
                 "buffer_load_dwordx4 v13, s[16:19], s44 offen lds"] for ii in range(9)]
    def ystep(t, first=False, ybase=9, last=False):
        extra = [{}, {}]
        if first:
            fl = gelu_tile(1 - t % 2, 0, 16) + gelu_tile(1 - t % 2, 1, 17)
            sp = spread(fl, 56); buckets = [[] for _ in range(72)]
            for i in range(56): buckets[3 + i] = sp[i]
        else:
            fl = epi(1 - t % 2, 0)
            buckets = [[] for _ in range(72)]
            pos = 3
            for x in fl:
                while pos % 4 == 1: pos += 1
                buckets[pos].append(x)
                if len(buckets[pos]) >= 2 or isinstance(x, tuple): pos += 1
            buckets[pos + 1].append("s_add_u32 s52, s52, 4096")
        if INPUB and not first:
            buckets[31] += ["s_add_u32 s46, s46, 1", "s_max_i32 s8, s46, 0", "s_add_u32 s8, s8, s97", "v_mov_b32 v14, s8", "s_mov_b64 exec, 1",
                            (("fl", 0), "buffer_store_dword v14, v15, s[24:27], s99 offen sc1"), "s_mov_b64 exec, -1"]
        if INRED and not first:
            if True:
                extra[0][23] = lambda: vm_wait(("r", 7))
                rc = red_compute(); pos = 24
                for x in rc:
                    while pos % 4 == 1 or pos == 31: pos += 1
                    buckets[pos].append(x)
                    if len(buckets[pos]) >= 3 or isinstance(x, tuple): pos += 1
                assert pos < 36 + 22, pos
            def chk():
                vm_wait(("fload", 0))
                e("s_add_u32 s9, s48, 1"); e("s_max_i32 s9, s9, 0"); e("s_add_u32 s10, s97, s9"); e("s_sub_u32 s11, 9, s9")
                lab = f"M_rc{len(RCL)}"; RCL.append(1)
                e("s_cmp_lt_i32 s48, 0"); e(f"s_cbranch_scc1 {lab}b")
                e.label(lab + "a")
                e("v_subrev_u32 v14, s10, v13"); e("s_mov_b64 exec, 0xff"); e("v_cmp_lt_u32 vcc, s11, v14"); e("s_mov_b64 exec, -1"); e("s_nop 4")
                e(f"s_cbranch_vccz {lab}b")
                e("s_sleep 2"); e("s_mov_b64 exec, 0xff"); e("buffer_load_dword v13, v0, s[24:27], s57 offen sc1"); e("s_mov_b64 exec, -1"); e("s_waitcnt vmcnt(0)"); e(f"s_branch {lab}a")
                e.label(lab + "b")
                e("s_max_i32 s9, s48, 0"); e("s_lshl_b32 s9, s9, 12"); e("s_add_u32 s49, s45, s9")
                e(f"s_add_u32 s47, s49, {WS_B - WS_P}"); e(f"s_add_u32 s9, s45, {8*4096 + WS_B - WS_P}"); e("s_cmp_lt_i32 s48, 0"); e("s_cselect_b32 s47, s9, s47")
                e("s_add_u32 s48, s48, 1")
            extra[1][23] = chk
            pos = 36 + 24
            for sp in range(NSPLIT):
                while pos % 4 == 1: pos += 1
                buckets[pos] += [f"s_add_u32 s8, s49, {sp*SPL}", (("r", sp), f"buffer_load_dwordx2 {ar(2*sp,2)}, v1, s[24:27], s8 offen sc1")]
                pos += 1
            buckets[4] = ["s_mov_b64 exec, 0xff", (("fload", 0), "buffer_load_dword v13, v0, s[24:27], s57 offen sc1"), "s_mov_b64 exec, -1"] + buckets[4]
        for hh in range(2):
            phi = 2 * t + hh
            nphi = phi + 1
            if last and phi + 3 >= 36: dm = wo_groups(phi - 33) if TAIL else []
            else: dm = dma_groups(phi + 3, ybase)
            phase(phi, buckets[36 * hh: 36 * hh + 36], dm, None if phi == 35 else nphi, extra[hh])
    if INPUB:
        e("s_lshl_b32 s57, s4, 7"); e(f"s_add_u32 s57, s57, {WS_FLAG}")
        e("s_lshl_b32 s99, s3, 2"); e("s_add_u32 s99, s99, s57")
        e(f"s_lshl_b32 s97, s{TAGR}, 4")
        e("s_mov_b32 s46, -1")
        e(f"s_mov_b32 s48, {1 - RL}")
        e("s_lshr_b32 s8, s3, 1"); e("s_lshl_b32 s9, s4, 2"); e("s_add_u32 s8, s8, s9"); e("s_mul_i32 s8, s8, 18")
        e("s_and_b32 s9, s3, 1"); e("s_add_u32 s8, s8, s9"); e("s_lshl_b32 s45, s8, 11")
        e("s_and_b32 s9, s5, 1"); e("s_lshl_b32 s9, s9, 10"); e("s_add_u32 s45, s45, s9"); e("s_lshr_b32 s9, s5, 1"); e("s_lshl_b32 s9, s9, 9"); e("s_add_u32 s45, s45, s9")
        e(f"s_add_u32 s45, s45, {WS_P}")
        e(f"s_add_u32 s47, s45, {8*4096 + WS_B - WS_P}")
        e("s_mov_b32 s64, 0x3f80"); e("s_mov_b32 s65, 0x3f800000")
        e("v_lshlrev_b32 v0, 2, v1"); e("v_lshlrev_b32 v1, 3, v1"); e("v_mov_b32 v15, 0")
    ystep(9, first=True)
    e("s_mov_b32 s15, 3")
    def retag(dphi):
        for i, tg in enumerate(vq):
            if isinstance(tg, tuple) and tg[0] == "d": vq[i] = ("d", tg[1] + dphi)
        lt.q[:] = [(tg[0], tg[1] + dphi * 36) if isinstance(tg, tuple) else tg for tg in lt.q]
    vq0, lq0, keep = list(vq), list(lt.q), e.l
    logs = []
    for rep in range(3):
        e.l = []; REC["mode"] = "rec"; REC["log"] = []; nl = len(RCL)
        ystep(10); ystep(11)
        del RCL[nl:]
        logs.append(REC["log"]); retag(-4)
    vq_steady, lq_steady = list(vq), list(lt.q)
    assert lq_steady == lq0, (lq_steady, lq0)
    over = []
    for vals in zip(*logs):
        v = [x for x in vals if x is not None]
        over.append(min(v) if v else None)
    e.l = keep; vq[:] = vq0; lt.q[:] = lq0
    REC["mode"] = "use"; REC["over"] = over; REC["i"] = 0
    e.label("M_loop")
    ystep(10); ystep(11)
    REC["mode"] = None
    e("s_add_u32 s41, s41, 256")
    e("s_sub_u32 s15, s15, 1"); e("s_cmp_lg_u32 s15, 0"); e("s_cbranch_scc1 M_loop")
    vq[:] = vq_steady; lt.q[:] = lq_steady
    retag(12)
    if TAIL:
        e("s_load_dwordx2 s[92:93], s[0:1], 32"); e("s_waitcnt lgkmcnt(0)"); lt.q[:] = []
        srd(e, 16, 92, 576 * 1152)
        e("v_mbcnt_lo_u32_b32 v14, -1, 0"); e("v_mbcnt_hi_u32_b32 v14, -1, v14")
        e("v_lshrrev_b32 v13, 2, v14"); e("v_mul_u32_u24 v13, 1152, v13"); e("v_and_b32 v14, 3, v14"); e("v_lshlrev_b32 v14, 4, v14"); e("v_add_u32 v13, v13, v14")
        e(f"s_mul_i32 s53, s5, {144*1152}"); e("s_and_b32 s8, s3, 1"); e("s_lshl_b32 s8, s8, 6"); e("s_add_u32 s54, s53, s8"); e("s_add_u32 s54, s54, 1024")
        e("s_lshl_b32 s8, s3, 7"); e("s_add_u32 s53, s53, s8")
    ystep(16, ybase=15, last=True); ystep(17, ybase=15, last=True)
    e("s_nop 7"); e("s_nop 3")
    stamp(e, 5)
    for x in epi(1, 0):
        if isinstance(x, tuple): e("s_nop 0"); e(x[1])
        else: e(x)
    if PRERED and not TAIL:
            e("s_waitcnt vmcnt(0)"); e("s_barrier")
            e("s_lshl_b32 s9, s4, 3"); e("s_add_u32 s9, s9, 64")
            e("v_mov_b32 v13, 0"); e("v_mov_b32 v14, 1")
            e("s_cmp_lg_u32 s5, 0"); e("s_cbranch_scc1 M_nosig")
            e("s_mov_b64 exec, 1")
            e("buffer_atomic_add v14, v13, s[60:63], s9 offen")
            e.label("M_poll")
            e("buffer_load_dword v15, v13, s[60:63], s9 offen sc1")
            e("s_waitcnt vmcnt(0)")
            e("v_readfirstlane_b32 s10, v15"); e("s_nop 3")
            e("s_cmp_ge_u32 s10, 8"); e("s_cbranch_scc1 M_polled")
            e("s_sleep 1"); e("s_branch M_poll")
            e.label("M_polled")
            e("s_mov_b64 exec, -1")
            e.label("M_nosig")
            e("s_barrier")
            e("s_mul_i32 s11, s3, 18"); e("s_add_u32 s11, s11, s5")
            e(f"s_mul_i32 s12, s4, {4*18*2048}")
            e("s_lshl_b32 s13, s11, 10"); e("s_add_u32 s12, s12, s13")
            e(f"s_add_u32 s13, s12, {WS_P}"); e(f"s_add_u32 s14, s12, {WS_B}")
            e("s_mov_b32 s16, 0x3f80"); e("s_mov_b32 s17, 0x3f800000")
            for k in range(5):
                if k == 4: e("s_cmp_ge_u32 s5, 2"); e("s_cbranch_scc1 M_skip5a")
                for sp in range(NSPLIT):
                    e(f"s_add_u32 s18, s13, {sp*64*18*2048 + k*4096}")
                    e(f"buffer_load_dwordx4 {vr(96+32*k+4*sp,4)}, v{vL16}, s[24:27], s18 offen sc1")
                if k == 4: e.label("M_skip5a")
            for k in range(5):
                if k == 4: e("s_cmp_ge_u32 s5, 2"); e("s_cbranch_scc1 M_skip5b")
                if k == 0: e("s_waitcnt vmcnt(0)")
                for sp in range(NSPLIT):
                    for j in range(4):
                        src = 96 + 32 * k + 4 * sp + j
                        c0 = "0" if sp == 0 else f"v{16+2*j}"; c1 = "0" if sp == 0 else f"v{17+2*j}"
                        e(f"v_dot2_f32_bf16 v{16+2*j}, v{src}, s16, {c0}"); e(f"v_dot2_f32_bf16 v{17+2*j}, v{src}, s17, {c1}")
                e("s_nop 3")
                for j in range(4): e(f"v_cvt_pk_bf16_f32 v{24+j+4*(k%2)}, v{16+2*j}, v{17+2*j}")
                e(f"s_add_u32 s18, s14, {k*4096}")
                e(f"buffer_store_dwordx4 {vr(24+4*(k%2),4)}, v{vL16}, s[24:27], s18 offen")
                if k == 4: e.label("M_skip5b")
    if TAIL:
        gen_tail(e, vL16)
    if PROF:
        e("s_waitcnt vmcnt(0)"); stamp(e, 6); stamp_rt(e, 7); stamp_flush(e, 0, 58)
    e("s_endpgm")
LOOPCHK = []
```
